```python
import torch

def _softmax(x, axis=-1):
    return torch.softmax(x, dim=axis)
def _gelu(x):
    return torch.nn.functional.gelu(x, approximate="tanh")
def _silu(x):
    return torch.nn.functional.silu(x)
def _sigmoid(x):
    return torch.sigmoid(x)
def _layernorm(x, axis=-1, eps=1e-5):
    m = x.mean(dim=axis, keepdim=True)
    v = x.var(dim=axis, keepdim=True, unbiased=False)
    return (x - m) / torch.sqrt(v + eps)
def _scatter_add(tgt, idx, src, axis=0):
    return tgt.clone().index_add_(axis, idx, src)
def _segment_sum(src, seg, n):
    out = torch.zeros((n,) + src.shape[1:], dtype=src.dtype)
    return out.index_add_(0, seg, src)
def _pad(x, pw):
    flat = tuple(v for pair in reversed(pw) for v in pair)
    return torch.nn.functional.pad(x, flat)

kernel_name = 'sequential_preLN__grouped_kv_mqa__geglu_ffn__prompt'

def setup_inputs():

    _w = (lambda a: (lambda t: t.to(torch.bfloat16) if t.is_floating_point() else t)(torch.as_tensor(a)))
    def _A_setup():
        B, S, D, H = 1, 2048, 1024, 32
        Dh = D // H
        return {
            "x": _w((lambda *s: torch.randn(*s, dtype=torch.bfloat16) * 0.05)(B, S, D)),
            "wq": _w((lambda *s: torch.randn(*s, dtype=torch.bfloat16) * 0.05)(D, H * Dh)),
            "wk": _w((lambda *s: torch.randn(*s, dtype=torch.bfloat16) * 0.05)(D, Dh)),
            "wv": _w((lambda *s: torch.randn(*s, dtype=torch.bfloat16) * 0.05)(D, Dh)),
            "wo": _w((lambda *s: torch.randn(*s, dtype=torch.bfloat16) * 0.05)(H * Dh, D)),
        }
    _A_in = _A_setup()

    def _B_setup():
        B, S, D, F = 1, 2048, 1024, 3584
        return {
            "x": _w((lambda *s: torch.randn(*s, dtype=torch.bfloat16) * 0.05)(B, S, D)),
            "w_gate": _w((lambda *s: torch.randn(*s, dtype=torch.bfloat16) * 0.05)(D, F)),
            "w_up": _w((lambda *s: torch.randn(*s, dtype=torch.bfloat16) * 0.05)(D, F)),
            "w_down": _w((lambda *s: torch.randn(*s, dtype=torch.bfloat16) * 0.05)(F, D)),
        }
    _B_in = _B_setup()

    return {
        "A_x": _A_in["x"],
        "A_wq": _A_in["wq"],
        "A_wk": _A_in["wk"],
        "A_wv": _A_in["wv"],
        "A_wo": _A_in["wo"],
        "B_x": _B_in["x"],
        "B_w_gate": _B_in["w_gate"],
        "B_w_up": _B_in["w_up"],
        "B_w_down": _B_in["w_down"],
    }

def reference(A_x, A_wq, A_wk, A_wv, A_wo, B_x, B_w_gate, B_w_up, B_w_down):
    def _A_ref(x, wq, wk, wv, wo):
        B, S, D = x.shape
        H = 32
        Dh = D // H
        q = (lambda x, *d: x.permute(*d))((x @ wq).reshape(B, S, H, Dh), 0, 2, 1, 3)
        k = x @ wk
        v = x @ wv
        scores = torch.einsum("bhqd,bkd->bhqk", q, k) * (Dh ** -0.5)
        p = _softmax(scores, axis=-1)
        o = torch.einsum("bhqk,bkd->bhqd", p, v)
        return (lambda x, *d: x.permute(*d))(o, 0, 2, 1, 3).reshape(B, S, H * Dh) @ wo

    def _B_ref(x, w_gate, w_up, w_down):
        return (_gelu(x @ w_gate) * (x @ w_up)) @ w_down

    x = A_x
    h = x + _A_ref(_layernorm(x, axis=-1), A_wq, A_wk, A_wv, A_wo)
    h2 = h + _B_ref(_layernorm(h, axis=-1), B_w_gate, B_w_up, B_w_down)
    return h2
```

```python
import re

TRANS = ("v_exp_f32", "v_log_f32", "v_rcp_f32", "v_rsq_f32", "v_sqrt_f32", "v_sin_f32", "v_cos_f32",
         "v_rcp_iflag_f32", "v_exp_f16", "v_rcp_f16")


def vr(base, n=1):
    return f"v{base}" if n == 1 else f"v[{base}:{base + n - 1}]"


def ar(base, n=1):
    return f"a{base}" if n == 1 else f"a[{base}:{base + n - 1}]"


def sr(base, n=1):
    return f"s{base}" if n == 1 else f"s[{base}:{base + n - 1}]"


class R:
    def __init__(self, kind, base, n=1):
        self.kind, self.base, self.n = kind, base, n

    def __str__(self):
        if self.n == 1:
            return f"{self.kind}{self.base}"
        return f"{self.kind}[{self.base}:{self.base + self.n - 1}]"

    def sub(self, off, n=1):
        assert off + n <= self.n, (off, n, self.n)
        return R(self.kind, self.base + off, n)

    def __getitem__(self, i):
        return self.sub(i, 1)


def V(b, n=1): return R("v", b, n)
def Ac(b, n=1): return R("a", b, n)
def S(b, n=1): return R("s", b, n)


_REG_RE = re.compile(r"^(-|abs\(|\|)?\s*([vas])(\d+|\[(\d+):(\d+)\])\)?\|?$")


def parse_reg(tok):
    tok = tok.strip()
    if tok in ("vcc", "exec", "m0", "scc"):
        return [(tok, 0)]
    if tok in ("vcc_lo", "vcc_hi"):
        return [("vcc", 0)]
    if tok in ("exec_lo", "exec_hi"):
        return [("exec", 0)]
    m = _REG_RE.match(tok)
    if not m:
        return []
    k = m.group(2)
    if m.group(4) is not None:
        return [(k, i) for i in range(int(m.group(4)), int(m.group(5)) + 1)]
    return [(k, int(m.group(3)))]


class Ins:
    def __init__(self, text):
        self.text = text
        t = text.split(";")[0].split("//")[0].strip()
        self.t = t
        parts = t.split(None, 1)
        self.op = parts[0] if parts else ""
        rest = parts[1] if len(parts) > 1 else ""
        ops, depth, cur = [], 0, ""
        for ch in rest:
            if ch == "[":
                depth += 1
            if ch == "]":
                depth -= 1
            if ch == "," and depth == 0:
                ops.append(cur.strip()); cur = ""
            else:
                cur += ch
        if cur.strip():
            ops.append(cur.strip())
        mods = ""
        if ops:
            sp = ops[-1].split(None, 1)
            if len(sp) > 1 and not ops[-1].startswith("abs("):
                ops[-1] = sp[0]; mods = sp[1]
        self.ops, self.mods = ops, mods
        op = self.op
        self.is_mfma = op.startswith("v_mfma")
        self.is_valu = op.startswith("v_") and not self.is_mfma
        self.is_trans = any(op.startswith(x) for x in TRANS)
        self.is_ds = op.startswith("ds_")
        self.is_vmem = op.startswith("buffer_") or op.startswith("global_")
        self.is_salu = op.startswith("s_")
        self.is_dpp = "_dpp" in op or "row_" in mods or "quad_perm" in mods
        self.is_lds_dma = self.is_vmem and re.search(r"\blds\b", mods) is not None
        self.dst, self.src = [], []
        P = [parse_reg(o) for o in ops]
        flat = lambda L: [x for l in L for x in l]
        if self.is_mfma:
            self.dst = P[0]; self.srcA = P[1]; self.srcB = P[2]; self.srcC = P[3] if len(P) > 3 else []
            self.src = self.srcA + self.srcB + self.srcC
            self.passes = {"16x16x32": 4, "32x32x16": 8}[re.search(r"(\d+x\d+x\d+)", op).group(1)]
        elif self.is_valu:
            if op.startswith("v_cmp"):
                self.dst = P[0]; self.src = flat(P[1:])
                if op.startswith("v_cmpx"):
                    self.dst = self.dst + [("exec", 0)]
            elif op.startswith(("v_add_co", "v_sub_co", "v_subrev_co", "v_addc_co", "v_subb_co")):
                self.dst = P[0] + P[1]; self.src = flat(P[2:])
            elif op.startswith(("v_swap", "v_permlane16_swap", "v_permlane32_swap")):
                self.dst = P[0] + P[1]; self.src = P[0] + P[1]
            elif op.startswith(("v_fmac", "v_dot2c", "v_pk_fmac", "v_writelane")):
                self.dst = P[0]; self.src = flat(P)
            elif op.startswith("v_nop"):
                pass
            else:
                self.dst = P[0]; self.src = flat(P[1:])
                if op.startswith("v_cndmask") and len(ops) == 3:
                    self.src += [("vcc", 0)]
                if self.is_dpp or "_sdwa" in op:
                    self.src += P[0]
        elif self.is_ds:
            if op.startswith(("ds_read", "ds_bpermute", "ds_permute", "ds_swizzle")):
                self.dst = P[0]; self.src = flat(P[1:])
            else:
                self.src = flat(P)
        elif self.is_vmem:
            if "store" in op or ("atomic" in op):
                self.src = flat(P)
                self.store_data = P[1] if op.startswith("global_") else P[0]
            elif self.is_lds_dma:
                self.src = flat(P) + [("m0", 0)]
            else:
                self.dst = P[0]; self.src = flat(P[1:])
        elif self.is_salu:
            if op.startswith(("s_cmp", "s_bitcmp", "s_cbranch", "s_branch", "s_waitcnt", "s_barrier", "s_nop",
                              "s_endpgm", "s_setprio", "s_sleep")):
                self.src = flat(P)
            elif op.startswith(("s_and_saveexec", "s_or_saveexec")):
                self.dst = P[0] + [("exec", 0)]; self.src = flat(P[1:]) + [("exec", 0)]
            elif op.startswith(("s_addk", "s_mulk")):
                self.dst = P[0]; self.src = P[0]
            else:
                self.dst = P[0] if P else []; self.src = flat(P[1:])
        self.ws = 1
        if op == "s_nop":
            self.ws = int(ops[0], 0) + 1


def check_hazards(trace, name=""):
    ins = [Ins(t) for t in trace if t.strip() and not t.strip().endswith(":") and not t.strip().startswith((".", ";"))]
    probs = []
    W = 24
    for i, c in enumerate(ins):
        dist = 0
        csrc, cdst = set(c.src), set(c.dst)
        for j in range(i - 1, max(-1, i - W - 1), -1):
            p = ins[j]
            pd, ps = set(p.dst), set(p.src)
            need = 0
            why = ""
            vg = lambda s: {x for x in s if x[0] in "va"}
            sg = lambda s: {x for x in s if x[0] == "s" or x[0] == "vcc"}
            if p.is_mfma:
                n_other = {4: 8, 8: 12}[p.passes]
                n_ovl = {4: 6, 8: 10}[p.passes]
                n_war = {4: 3, 8: 7}[p.passes]
                if c.is_mfma:
                    if pd & (set(c.srcA) | set(c.srcB)):
                        need, why = n_other, "mfma D -> mfma A/B"
                    elif pd & set(c.srcC):
                        if not (c.srcC == p.dst and c.passes == p.passes):
                            need, why = n_ovl, "mfma D -> mfma C overlap"
                    elif pd & cdst and not (c.dst == p.dst and c.passes == p.passes):
                        need, why = n_ovl, "mfma D -> mfma D overlap"
                elif c.is_valu or c.is_vmem or c.is_ds:
                    if pd & (csrc | cdst):
                        need, why = n_other, "mfma D -> valu/mem"
                    elif c.is_valu and set(p.srcC) & cdst:
                        need, why = n_war, "mfma C WAR valu"
            elif p.is_valu:
                if c.is_mfma and vg(pd) & csrc:
                    need, why = 2, "valu -> mfma"
                if c.is_valu and c.op.startswith(("v_permlane",)) and vg(pd) & csrc:
                    need, why = max(need, 2), "valu -> permlane"
                if c.is_valu and c.is_dpp and vg(pd) & csrc:
                    need, why = max(need, 2), "valu -> dpp"
                if c.is_valu and c.op.startswith(("v_readlane", "v_readfirstlane")) and vg(pd) & csrc:
                    need, why = max(need, 1), "valu -> readlane"
                if p.is_trans and c.is_valu and not c.is_trans and vg(pd) & csrc:
                    need, why = max(need, 1), "trans -> valu"
                if p.is_trans and (c.is_mfma) and vg(pd) & csrc:
                    need, why = max(need, 2), "trans -> mfma"
                if sg(pd) & csrc:
                    if c.is_vmem:
                        need, why = max(need, 5), "valu sgpr -> vmem"
                    elif c.is_valu:
                        need, why = max(need, 2), "valu sgpr -> valu"
                        if c.op.startswith(("v_readlane", "v_writelane")):
                            need = max(need, 4)
                    elif c.is_salu:
                        need, why = max(need, 1), "valu sgpr -> salu (pad)"
                if ("exec", 0) in pd:
                    if c.is_mfma:
                        need, why = max(need, 4), "valu exec -> mfma"
                    if c.is_dpp:
                        need, why = max(need, 5), "valu exec -> dpp"
                if p.op.startswith("v_dot2") and (c.is_valu or c.is_mfma or c.is_vmem or c.is_ds) and vg(pd) & (csrc | cdst) and not (c.op == p.op and not (vg(pd) & set(parse_reg(c.ops[1]) + parse_reg(c.ops[2])))):
                    need, why = max(need, 3), "dot2 -> other"
                if "_sdwa" in p.op and c.is_valu and vg(pd) & csrc:
                    need, why = max(need, 1), "sdwa -> valu"
            elif p.is_vmem and hasattr(p, "store_data") and len(p.store_data) >= 3:
                if set(p.store_data) & cdst:
                    need, why = (2 if c.is_valu else 1), "wide store WAR"
            elif p.is_salu:
                if ("m0", 0) in pd and c.is_lds_dma:
                    need, why = 1, "m0 -> lds dma"
            if need > dist:
                probs.append(f"[{name}] {why}: need {need} have {dist}\n    P: {p.t}\n    C: {c.t}")
            dist += p.ws
            if dist >= 13:
                break
    return probs


class Asm:
    def __init__(self):
        self.lines = []
        self.trace = []
        self._loops = []

    def __call__(self, s):
        for l in s.split("\n"):
            l = l.strip()
            if not l:
                continue
            self.lines.append("    " + l if not l.endswith(":") else l)
            self.trace.append(l)

    def raw(self, s):
        self.lines.append(s)

    def label(self, name):
        self.lines.append(name + ":")

    def comment(self, s):
        self.lines.append("    ; " + s)

    def loop_begin(self, name):
        self.label(name)
        self._loops.append(len(self.trace))

    def loop_end(self):
        st = self._loops.pop()
        self.trace += self.trace[st:]

    def text(self):
        return "\n".join(self.lines) + "\n"


def interleave(main, fillers):
    out = list(fillers.get(-1, []))
    for i, m in enumerate(main):
        out.append(m)
        out += fillers.get(i, [])
    return out


def spread(fillers, items, lo, hi):
    n = len(items)
    if n == 0:
        return
    span = hi - lo
    for k, it in enumerate(items):
        pos = lo + (k * span) // n
        fillers.setdefault(pos, [])
        if isinstance(it, (list, tuple)):
            fillers[pos] += list(it)
        else:
            fillers[pos].append(it)


class VmTracker:
    def __init__(self):
        self.q = []

    def issue(self, tag):
        self.q.append(tag)

    def wait_for(self, pred):
        last = -1
        for i, t in enumerate(self.q):
            if pred(t):
                last = i
        if last < 0:
            return None
        n = len(self.q) - 1 - last
        self.q = self.q[last + 1:]
        return n
```

```python
import sys
sys.path.insert(0,'work')
from gen_common import *
def build(parts, launches):
    A = Asm()
    descs = []
    probs = []
    for fn, name, opts in parts:
        st = len(A.trace)
        descs.append(fn(A, name, opts))
        probs += check_hazards(A.trace[st:], name)
    head = open('sequential_preLN__grouped_kv_mqa__geglu_ffn__prompt.s.ref').read().split('\n')
    hdr = [l for l in head if l.startswith(';') and '@launch' not in l and 'Override' not in l and 'grid=ceil' not in l][:14]
    out = "\n".join(hdr) + "\n"
    for k,g,b,l in launches:
        out += f"; @launch kernel={k} grid=({g},1,1) block=({b},1,1) lds={l}\n"
    out += '.amdgcn_target "amdgcn-amd-amdhsa--gfx950"\n.text\n'
    out += A.text()
    out += '.section .rodata,"a"\n.p2align 6\n' + "\n.p2align 6\n".join(descs)
    return out, probs
```

```python
from asmlib import *

KA_X, KA_WQ, KA_WK, KA_WV, KA_WO, KA_BX, KA_WG, KA_WU, KA_WD, KA_OUT, KA_DBG, KA_WS = [8 * i for i in range(12)]

MB = 1 << 20
WS_Q = 0
WS_KV = 4 * MB
WS_NRM = WS_KV + 256 * 1024
WS_XM = WS_NRM + 4096
WS_WB = WS_XM + 8192
WS_VP = WS_WB + 4096
WS_O = 5 * MB
WS_H = 9 * MB
WS_HC = 13 * MB
WS_ACT = 17 * MB
ACT_BYTES = 2048 * 3584 * 2
STAGE_BYTES = 128 * 2048

EPS = 1e-5


def f32hex(x):
    import struct
    return "0x%08x" % struct.unpack("<I", struct.pack("<f", x))[0]


def kernel_begin(A, name):
    A.raw(f".globl {name}")
    A.raw(".p2align 8")
    A.raw(f".type {name},@function")
    A.raw(f"{name}:")


def kernel_desc(name, nv, na, ns):
    acc = (nv + 3) // 4 * 4
    if na:
        total = acc + na
    else:
        total = nv
    return f""".amdhsa_kernel {name}
  .amdhsa_next_free_vgpr {total}
  .amdhsa_next_free_sgpr {ns}
  .amdhsa_accum_offset {acc}
  .amdhsa_group_segment_fixed_size 0
  .amdhsa_kernarg_size 96
  .amdhsa_user_sgpr_count 2
  .amdhsa_user_sgpr_kernarg_segment_ptr 1
  .amdhsa_system_sgpr_workgroup_id_x 1
  .amdhsa_float_denorm_mode_32 3
.end_amdhsa_kernel
"""


def srd(A, s, base_pair, offset, nbytes):
    if offset:
        A(f"s_add_u32 s{s}, s{base_pair}, {offset}")
        A(f"s_addc_u32 s{s+1}, s{base_pair+1}, 0")
        A(f"s_and_b32 s{s+1}, s{s+1}, 0xffff")
    else:
        A(f"s_mov_b32 s{s}, s{base_pair}")
        A(f"s_and_b32 s{s+1}, s{base_pair+1}, 0xffff")
    A(f"s_mov_b32 s{s+2}, {nbytes}")
    A(f"s_mov_b32 s{s+3}, 0x20000")


def mfma16(d, a, b, c=None):
    return f"v_mfma_f32_16x16x32_bf16 {d}, {a}, {b}, {d if c is None else c}"


def mfma32(d, a, b, c=None):
    return f"v_mfma_f32_32x32x16_bf16 {d}, {a}, {b}, {d if c is None else c}"


def resolve_waits(seq_builder, n_iter):
    tr = VmTracker()
    seq_builder(tr, -1)
    best = None
    for it in range(n_iter):
        ns = seq_builder(tr, it)
        if best is None:
            best = list(ns)
        else:
            best = [min(a, b) if (a is not None and b is not None) else (a if b is None else b) for a, b in zip(best, ns)]
    return best


WS_PROF = 40 * MB
def stamp(A, opts, i):
    if not opts.get("prof"): return
    A(f"s_memtime s[{64+2*i}:{65+2*i}]")
    if i == 0: A("s_memrealtime s[72:73]")
    if i == 3: A("s_memrealtime s[74:75]")

def prof_store(A, opts, ws_pair, kidx):
    if not opts.get("prof"): return
    A("s_waitcnt lgkmcnt(0)")
    A(f"s_add_u32 s76, s{ws_pair}, {WS_PROF + kidx * 16384}")
    A(f"s_addc_u32 s77, s{ws_pair+1}, 0")
    A("v_mov_b32 v0, s64"); A("v_mov_b32 v1, s66"); A("v_mov_b32 v2, s68"); A("v_mov_b32 v3, s70")
    A("v_mov_b32 v4, s72"); A("v_mov_b32 v5, s74")
    A("s_lshl_b32 s78, s2, 5")
    A("v_mov_b32 v6, s78")
    A("s_nop 4")
    A("global_store_dwordx4 v6, v[0:3], s[76:77]")
    A("global_store_dwordx2 v6, v[4:5], s[76:77] offset:16")

def prof_report(arr, label):
    import numpy as np
    a = arr.astype(np.int64)
    d1 = (a[:,1]-a[:,0]) & 0xffffffff; d2 = (a[:,2]-a[:,1]) & 0xffffffff; d3 = (a[:,3]-a[:,2]) & 0xffffffff
    rt0 = a[:,4]; rt1 = a[:,5]
    tot = (rt1.max() - rt0.min())/100.0
    cyc = (a[:,3]-a[:,0]) & 0xffffffff
    clk = np.median(cyc / np.maximum((rt1-rt0),1) * 100)
    print(f"{label}: span {tot:6.2f}us | start spread {(rt0.max()-rt0.min())/100:.2f}us | per-WG {np.median(rt1-rt0)/100:6.2f}us | cyc pro {np.median(d1):.0f} loop {np.median(d2):.0f} epi {np.median(d3):.0f} (max pro {d1.max()} loop {d2.max()} epi {d3.max()}) clk {clk:.0f}MHz")
    return rt0.min(), rt1.max()
```

```python
from gen_common import *

sW, sTB, sCB = 24, 25, 26
sToff, sWoff, sM0b = 27, 28, 29
SRD_T, SRD_W, SRD_O, SRD_X = 8, 12, 16, 20
vT0, vT1 = 1, 2
vW0, vW1 = 3, 4
vR = 6
vt = 10
ACC = 16
RB = [48, 64]
XTRA = 80
TRING = 128


def acc(F, tl):
    return V(ACC + (F * 2 + tl) * 4, 4)


def tslot(stage_slot, s2, tl):
    return V(TRING + stage_slot * 16 + s2 * 8 + tl * 4, 4)


def ids(A, opts=None):
    A(f"v_lshrrev_b32 v{vt}, 6, v0")
    A(f"v_and_b32 v0, 63, v0")
    A(f"s_and_b32 s3, s2, 7")
    A(f"v_readfirstlane_b32 s{sW}, v{vt}")
    A(f"s_lshr_b32 s30, s2, 3")
    A(f"s_lshr_b32 s{sTB}, s3, 1")
    A(f"s_lshl_b32 s{sTB}, s{sTB}, 2")
    A(f"s_and_b32 s33, s30, 3")
    A(f"s_add_u32 s{sTB}, s{sTB}, s33")
    A(f"s_and_b32 s{sCB}, s3, 1")
    A(f"s_lshl_b32 s{sCB}, s{sCB}, 3")
    A(f"s_lshr_b32 s33, s30, 2")
    A(f"s_add_u32 s{sCB}, s{sCB}, s33")
    if opts and opts.get("map") == "same":
        A(f"s_mov_b32 s{sTB}, 0"); A(f"s_mov_b32 s{sCB}, 0")
    if opts and opts.get("map") == "sametb":
        A(f"s_mov_b32 s{sTB}, 0")
    if opts and opts.get("map") == "samecb":
        A(f"s_mov_b32 s{sCB}, 0")
    if opts and opts.get("map") == "rowmajor":
        A(f"s_lshr_b32 s{sTB}, s2, 4"); A(f"s_and_b32 s{sCB}, s2, 15")
    if opts and opts.get("map") == "m8x4":
        A(f"s_lshr_b32 s{sTB}, s3, 2"); A(f"s_lshl_b32 s{sTB}, s{sTB}, 3"); A(f"s_and_b32 s33, s30, 7"); A(f"s_add_u32 s{sTB}, s{sTB}, s33")
        A(f"s_and_b32 s{sCB}, s3, 3"); A(f"s_lshl_b32 s{sCB}, s{sCB}, 2"); A(f"s_lshr_b32 s33, s30, 3"); A(f"s_add_u32 s{sCB}, s{sCB}, s33")


def tf_voffsets(A):
    A(f"s_lshl_b32 s33, s{sTB}, 2")
    A(f"s_add_u32 s33, s33, s{sW}")
    A(f"s_lshl_b32 s33, s33, 12")
    A(f"v_lshlrev_b32 v{vT0}, 4, v0")
    A(f"v_add_u32 v{vT0}, s33, v{vT0}")


def w_setup(A, perm, rowstride):
    A(f"v_lshrrev_b32 v{vt}, 3, v0")
    A(f"s_lshl_b32 s33, s{sW}, 4")
    A(f"v_add_u32 v{vt}, s33, v{vt}")
    A(f"s_mov_b32 s34, {rowstride}")
    A(f"v_mul_lo_u32 v{vt}, v{vt}, s34")
    A(f"s_lshl_b32 s33, s{sCB}, 7")
    A(f"v_add_u32 v{vt}, s33, v{vt}")
    A(f"v_and_b32 v{vt+1}, 7, v0")
    if perm in "AB":
        A(f"v_bfe_u32 v{vt+2}, v0, 4, 2")
        A(f"v_lshlrev_b32 v{vt+2}, 1, v{vt+2}")
        A(f"v_xor_b32 v{vt+1}, v{vt+1}, v{vt+2}")
        A(f"v_lshl_add_u32 v{vW0}, v{vt+1}, 4, v{vt}")
        A(f"v_add_u32 v{vW1}, {8 * rowstride - 1024}, v{vW0}")
    else:
        A(f"v_bfe_u32 v{vt+2}, v0, 4, 1")
        A(f"v_lshlrev_b32 v{vt+2}, 1, v{vt+2}")
        A(f"v_xor_b32 v{vt+1}, v{vt+1}, v{vt+2}")
        A(f"v_lshl_add_u32 v{vW0}, v{vt+1}, 4, v{vt}")
        A(f"v_xor_b32 v{vt+1}, 4, v{vt+1}")
        A(f"v_lshl_add_u32 v{vW1}, v{vt+1}, 4, v{vt}")
        A(f"v_add_u32 v{vW1}, {8 * rowstride - 1024}, v{vW1}")
    A(f"s_lshl_b32 s{sM0b}, s{sW}, 11")
    A(f"v_lshrrev_b32 v{vt}, 4, v0")
    A(f"v_bfe_u32 v{vt+1}, v0, 2, 2")
    if perm == "A":
        A(f"v_lshl_add_u32 v{vt+2}, v{vt}, 2, v{vt+1}")
    elif perm == "B":
        A(f"v_lshrrev_b32 v{vt+2}, 1, v{vt}")
        A(f"v_lshlrev_b32 v{vt+2}, 4, v{vt+2}")
        A(f"v_and_b32 v{vt+3}, 1, v{vt}")
        A(f"v_lshl_add_u32 v{vt+2}, v{vt+3}, 2, v{vt+2}")
        A(f"v_add_u32 v{vt+2}, v{vt+2}, v{vt+1}")
    else:
        A(f"v_lshl_add_u32 v{vt+2}, v{vt}, 3, v{vt+1}")
    A(f"v_lshlrev_b32 v{vt+2}, 7, v{vt+2}")
    A(f"v_and_b32 v{vt+3}, 3, v0")
    A(f"v_lshl_add_u32 v{vt+2}, v{vt+3}, 3, v{vt+2}")
    A(f"v_lshrrev_b32 v{vt+1}, 1, v{vt+1}")
    A(f"v_and_b32 v{vt}, 1, v{vt}")
    A(f"v_lshl_or_b32 v{vt}, v{vt}, 1, v{vt+1}")
    A(f"v_lshl_or_b32 v{vR}, v{vt}, 5, v{vt+2}")
    for F in range(1, 4):
        A(f"v_xor_b32 v{vR+F}, {F << 5}, v{vR}")


def gs_main(A, name, opts, nstages, U, perm, rowstride, t_loads, pre_extra=None, step_extra=None, n_pre_extra=0,
            after_first_loads=None, iter_end=None, pre_reads=None, extra_after=0):
    di = {"A": 16, "B": 8, "N": 4}[perm]
    tstride = opts["tstride"]

    def w_dma(slot):
        return [[f"s_add_u32 m0, s{sM0b}, {slot * 8192}", "s_nop 0",
                 f"buffer_load_dwordx4 v{vW0}, s[{SRD_W}:{SRD_W+3}], s{sWoff} offen lds"],
                [f"buffer_load_dwordx4 v{vW1}, s[{SRD_W}:{SRD_W+3}], s{sWoff} offen offset:1024 lds"]]

    def tr_reads(rbuf, slot, s2):
        out = []
        for F in range(4):
            for i in range(2):
                off = slot * 8192 + (32 * s2 + di * i) * 128
                out.append(f"ds_read_b64_tr_b16 {V(RB[rbuf] + F * 4 + 2 * i, 2)}, v{vR+F} offset:{off}")
        return out

    NIT = nstages // U
    assert NIT * U == nstages

    def seq(tr, it):
        if it == -1:
            for s in range(U):
                for _ in range(2): tr.issue(("W", s))
                if s == 0:
                    for _ in range(n_pre_extra): tr.issue(("X", 0))
                if s < U - 1:
                    for _ in range(4): tr.issue(("T", s))
            for _ in range(extra_after): tr.issue(("Y", 0))
            return None
        ns = []
        for s in range(U * it, U * it + U):
            ns.append(tr.wait_for(lambda t: t == ("T", s)))
            for _ in range(4): tr.issue(("T", s + U - 1))
            ns.append(tr.wait_for(lambda t: t == ("W", s + 1)))
            for _ in range(2): tr.issue(("W", s + U))
        return ns

    waits = [63 if w is None else min(w, 63) for w in resolve_waits(seq, NIT)]

    A(f"s_mov_b32 s{sToff}, 0")
    A(f"s_mov_b32 s{sWoff}, 0")
    for s in range(U):
        for g in w_dma(s):
            for l in g: A(l)
        A(f"s_add_u32 s{sWoff}, s{sWoff}, {64 * rowstride}")
        if s == 0 and pre_extra:
            pre_extra()
        if s < U - 1:
            for l in t_loads(s, f"s{sToff}"): A(l)
            A(f"s_add_u32 s{sToff}, s{sToff}, {tstride}")
    if after_first_loads:
        after_first_loads()
    for i in range(32):
        A(f"v_mov_b32 v{ACC + i}, 0")
    n_after = n_pre_extra + (U - 1) * 4 + (U - 1) * 2 + extra_after
    A(f"s_waitcnt vmcnt({min(n_after, 63)})")
    A(f"s_barrier")
    for l in tr_reads(0, 0, 0): A(l)
    if pre_reads:
        pre_reads()

    stamp(A, opts, 1)
    LOOP = f"L_{name}_loop"
    A(f"s_mov_b32 s44, {NIT}")
    A.loop_begin(LOOP)
    wi = 0
    for sl in range(U):
        for s2 in range(2):
            n = waits[wi]; wi += 1
            A(f"s_waitcnt vmcnt({n}) lgkmcnt(0)")
            if s2 == 1:
                A("s_barrier")
            main = []
            for F in range(4):
                for tl in range(2):
                    main.append(mfma16(acc(F, tl), V(RB[s2] + F * 4, 4), tslot(sl, s2, tl)))
            xm, xf = step_extra(s2, sl) if step_extra else ([], [])
            main += xm
            f = {}
            if s2 == 0:
                ld = t_loads((sl + U - 1) % U, f"s{sToff}")
                f[-1] = [ld[0]]
                spread(f, ld[1:], 0, 3)
                f.setdefault(3, []).append(f"s_add_u32 s{sToff}, s{sToff}, {tstride}")
                spread(f, tr_reads(1, sl, 1), 0, 6)
            else:
                g = w_dma(sl)
                f[-1] = g[0]
                f[0] = list(g[1])
                f.setdefault(1, []).append(f"s_add_u32 s{sWoff}, s{sWoff}, {64 * rowstride}")
                spread(f, tr_reads(0, (sl + 1) % U, 0), 0, 6)
                if sl == U - 1:
                    if iter_end:
                        f.setdefault(len(main) - 1, []).extend(iter_end())
                    f.setdefault(6, []).append("s_sub_u32 s44, s44, 1")
                    f[6].append("s_cmp_lg_u32 s44, 0")
            spread(f, xf, 1, len(main) - 1)
            if sl == U - 1 and s2 == 1:
                pass
            for l in interleave(main, f): A(l)
    A(f"s_cbranch_scc1 {LOOP}")
    A.loop_end()
    stamp(A, opts, 2)


def tf_tloads(sl, soff):
    out = []
    for tl in range(2):
        for s2 in range(2):
            out.append(f"buffer_load_dwordx4 {tslot(sl, s2, tl)}, v{vT0}, s[{SRD_T}:{SRD_T+3}], {soff} offen offset:{tl * 2048 + s2 * 1024}")
    return out


def finish(A, name, opts, END, nv):
    if opts.get("prof"):
        A("s_waitcnt vmcnt(0)")
        stamp(A, opts, 3)
        prof_store(A, opts, 4, opts.get("kidx", 0))
    A.label(END)
    A("s_endpgm")
    return kernel_desc(name, nv, 0, 80)


def gen_k5(A, name="k5_down_kernel", opts=None):
    opts = dict(opts or {})
    U = opts.get("U", 8)
    opts["tstride"] = STAGE_BYTES
    kernel_begin(A, name)
    END = f"L_{name}_end"
    A("s_cmp_ge_u32 s2, 256")
    A(f"s_cbranch_scc1 {END}")
    stamp(A, opts, 0)
    A(f"s_load_dwordx2 s[4:5], s[0:1], {KA_WS}")
    A(f"s_load_dwordx4 s[40:43], s[0:1], {KA_WD}")
    ids(A, opts)
    tf_voffsets(A)
    w_setup(A, "A", 2048)
    A("s_waitcnt lgkmcnt(0)")
    srd(A, SRD_T, 4, WS_ACT, ACT_BYTES)
    srd(A, SRD_W, 40, 0, 3584 * 2048)
    srd(A, SRD_X, 4, WS_H, 4 * MB)
    srd(A, SRD_O, 42, 0, 2048 * 2048)
    HR = XTRA

    def pre_extra():
        A(f"s_lshl_b32 s33, s{sCB}, 18")
        for tl in range(2):
            for P in range(2):
                A(f"buffer_load_dwordx4 {V(HR + (tl * 2 + P) * 4, 4)}, v{vT0}, s[{SRD_X}:{SRD_X+3}], s33 offen offset:{tl * 2048 + P * 1024}")

    gs_main(A, name, opts, 56, U, "A", 2048, tf_tloads, pre_extra=pre_extra, n_pre_extra=4)

    A("s_waitcnt vmcnt(0) lgkmcnt(0)")
    A(f"v_and_b32 v{vt}, 15, v0")
    A(f"s_lshl_b32 s33, s{sTB}, 2")
    A(f"s_add_u32 s33, s33, s{sW}")
    A(f"s_lshl_b32 s33, s33, 5")
    A(f"v_add_u32 v{vt}, s33, v{vt}")
    A(f"v_lshlrev_b32 v{vt}, 11, v{vt}")
    A(f"v_lshrrev_b32 v{vt+1}, 4, v0")
    A(f"v_lshl_add_u32 v{vt}, v{vt+1}, 3, v{vt}")
    A(f"s_lshl_b32 s33, s{sCB}, 7")
    A(f"v_add_u32 v{vt}, s33, v{vt}")
    A(f"v_add_u32 v{vt+1}, 0x8000, v{vt}")
    T = vt + 2
    for tl in range(2):
        for F in range(4):
            h = HR + (tl * 2 + F // 2) * 4 + (F % 2) * 2
            a = acc(F, tl).base
            for x in range(2):
                A(f"v_lshlrev_b32 v{T}, 16, v{h + x}")
                A(f"v_and_b32 v{T+1}, 0xffff0000, v{h + x}")
                A(f"v_add_f32 v{a + 2*x}, v{a + 2*x}, v{T}")
                A(f"v_add_f32 v{a + 2*x + 1}, v{a + 2*x + 1}, v{T+1}")
            A(f"v_cvt_pk_bf16_f32 v{a}, v{a}, v{a+1}")
            A(f"v_cvt_pk_bf16_f32 v{a+1}, v{a+2}, v{a+3}")
            A(f"buffer_store_dwordx2 {V(a, 2)}, v{vt + tl}, s[{SRD_O}:{SRD_O+3}], 0 offen offset:{F * 32}")
    return finish(A, name, opts, END, TRING + U * 16)


def reduce_over_g(A, reg, tmp):
    A(f"v_mov_b32 v{tmp}, v{reg}")
    A("s_nop 1")
    A(f"v_permlane16_swap_b32 v{reg}, v{tmp}")
    A(f"v_add_f32 v{reg}, v{reg}, v{tmp}")
    A(f"v_mov_b32 v{tmp}, v{reg}")
    A("s_nop 1")
    A(f"v_permlane32_swap_b32 v{reg}, v{tmp}")
    A(f"v_add_f32 v{reg}, v{reg}, v{tmp}")


def row_token_addr(A, dst, shift):
    A(f"v_and_b32 v{dst}, 15, v0")
    A(f"s_lshl_b32 s33, s{sTB}, 2")
    A(f"s_add_u32 s33, s33, s{sW}")
    A(f"s_lshl_b32 s33, s33, 5")
    A(f"v_add_u32 v{dst}, s33, v{dst}")
    A(f"v_lshlrev_b32 v{dst}, {shift}, v{dst}")


def gen_k3(A, name="k3_wo_kernel", opts=None):
    opts = dict(opts or {})
    U = opts.get("U", 4)
    opts["tstride"] = STAGE_BYTES
    kernel_begin(A, name)
    END = f"L_{name}_end"
    A("s_cmp_ge_u32 s2, 256")
    A(f"s_cbranch_scc1 {END}")
    stamp(A, opts, 0)
    A(f"s_load_dwordx2 s[4:5], s[0:1], {KA_WS}")
    A(f"s_load_dwordx2 s[40:41], s[0:1], {KA_WO}")
    A(f"s_load_dwordx2 s[42:43], s[0:1], {KA_X}")
    ids(A, opts)
    tf_voffsets(A)
    w_setup(A, "B", 2048)
    XR, MACC, WBF, XM, vWB, vX = XTRA, XTRA + 16, XTRA + 24, XTRA + 32, XTRA + 34, XTRA + 36
    WBL = U * 8192
    A("s_waitcnt lgkmcnt(0)")
    srd(A, SRD_T, 4, WS_O, 4 * MB)
    srd(A, SRD_W, 40, 0, 1024 * 2048)
    srd(A, SRD_X, 42, 0, 2048 * 2048)
    srd(A, SRD_O, 4, WS_WB, 4096)
    A(f"v_lshlrev_b32 v{vt}, 4, v0")
    A(f"s_lshl_b32 s33, s{sW}, 10")
    A(f"s_add_u32 m0, s33, {WBL}")
    A("s_nop 0")
    A(f"buffer_load_dwordx4 v{vt}, s[{SRD_O}:{SRD_O+3}], s33 offen lds")
    A(f"v_and_b32 v{vt}, 1, v0")
    A(f"v_lshlrev_b32 v{vt}, 6, v{vt}")
    A(f"v_lshrrev_b32 v{vt+1}, 4, v0")
    A(f"v_lshl_add_u32 v{vWB}, v{vt+1}, 4, v{vt}")
    A(f"v_add_u32 v{vWB}, {WBL}, v{vWB}")

    def pre_extra():
        row_token_addr(A, vX, 11)
        A(f"v_lshrrev_b32 v{vt}, 4, v0")
        A(f"v_lshl_add_u32 v{vX}, v{vt}, 3, v{vX}")
        A(f"s_lshl_b32 s33, s{sCB}, 7")
        A(f"v_add_u32 v{vX}, s33, v{vX}")
        A(f"v_add_u32 v{vX+1}, 0x8000, v{vX}")
        for tl in range(2):
            for F in range(4):
                A(f"buffer_load_dwordx2 {V(XR + (tl * 4 + F) * 2, 2)}, v{vX + tl}, s[{SRD_X}:{SRD_X+3}], 0 offen offset:{F * 32}")
        srd(A, SRD_X, 4, WS_XM, 8192)
        row_token_addr(A, vt, 2)
        for tl in range(2):
            A(f"buffer_load_dword v{XM + tl}, v{vt}, s[{SRD_X}:{SRD_X+3}], 0 offen offset:{tl * 64}")

    def pre_reads():
        A(f"ds_read_b128 {V(WBF, 4)}, v{vWB}")

    def step_extra(s2, sl):
        xm = [mfma16(V(MACC + tl * 4, 4), V(WBF + s2 * 4, 4), tslot(sl, s2, tl)) for tl in range(2)]
        xf = [f"ds_read_b128 {V(WBF + (1 - s2) * 4, 4)}, v{vWB} offset:{(2 * sl + s2 + 1) * 128}"]
        return xm, xf

    def iter_end():
        return [f"v_add_u32 v{vWB}, {U * 256}, v{vWB}"]

    def after_first():
        for i in range(8):
            A(f"v_mov_b32 v{MACC + i}, 0")

    gs_main(A, name, opts, 16, U, "B", 2048, tf_tloads, pre_extra=pre_extra, n_pre_extra=10, step_extra=step_extra,
            iter_end=iter_end, pre_reads=pre_reads, after_first_loads=after_first)

    A("s_waitcnt vmcnt(0) lgkmcnt(0)")
    srd(A, SRD_O, 4, WS_H, 4 * MB)
    srd(A, SRD_T, 4, WS_HC, 4 * MB)
    srd(A, SRD_X, 4, WS_VP, 2048 * 64)
    A(f"s_lshl_b32 s34, s{sCB}, 18")
    row_token_addr(A, vX, 6)
    A(f"s_lshl_b32 s35, s{sCB}, 2")
    T = vt
    HP, CP = RB[0], RB[1]
    for tl in range(2):
        m = XM + tl
        A(f"v_add_f32 v{m}, v{m}, v{MACC + tl * 4}")
        A(f"v_add_f32 v{m}, v{m}, v{MACC + tl * 4 + 1}")
        ss = T + 3
        A(f"v_mov_b32 v{ss}, 0")
        for F in range(4):
            a = acc(F, tl).base
            x = XR + (tl * 4 + F) * 2
            dh = HP + tl * 8 + (F // 2) * 4 + (F % 2) * 2
            dc = CP + tl * 8 + (F // 2) * 4 + (F % 2) * 2
            for q in range(2):
                A(f"v_lshlrev_b32 v{T}, 16, v{x + q}")
                A(f"v_and_b32 v{T+1}, 0xffff0000, v{x + q}")
                A(f"v_add_f32 v{a + 2*q}, v{a + 2*q}, v{T}")
                A(f"v_add_f32 v{a + 2*q + 1}, v{a + 2*q + 1}, v{T+1}")
                A(f"v_cvt_pk_bf16_f32 v{dh + q}, v{a + 2*q}, v{a + 2*q + 1}")
                A(f"v_sub_f32 v{a + 2*q}, v{a + 2*q}, v{m}")
                A(f"v_sub_f32 v{a + 2*q + 1}, v{a + 2*q + 1}, v{m}")
                A(f"v_fmac_f32 v{ss}, v{a + 2*q}, v{a + 2*q}")
                A(f"v_fmac_f32 v{ss}, v{a + 2*q + 1}, v{a + 2*q + 1}")
                A(f"v_cvt_pk_bf16_f32 v{dc + q}, v{a + 2*q}, v{a + 2*q + 1}")
        for P in range(2):
            A(f"buffer_store_dwordx4 {V(CP + tl * 8 + P * 4, 4)}, v{vT0}, s[{SRD_T}:{SRD_T+3}], s34 offen offset:{tl * 2048 + P * 1024}")
            A(f"buffer_store_dwordx4 {V(HP + tl * 8 + P * 4, 4)}, v{vT0}, s[{SRD_O}:{SRD_O+3}], s34 offen offset:{tl * 2048 + P * 1024}")
        reduce_over_g(A, ss, T + 4)
        A(f"buffer_store_dword v{ss}, v{vX}, s[{SRD_X}:{SRD_X+3}], s35 offen offset:{tl * 16 * 64}")
        A("s_nop 1")
    return finish(A, name, opts, END, TRING + U * 16)


QSCALE = (32 ** -0.5) * 1.4426950408889634


def gen_k1(A, name="k1_qkv_kernel", opts=None):
    opts = dict(opts or {})
    U = opts.get("U", 4)
    opts["tstride"] = 128
    kernel_begin(A, name)
    END = f"L_{name}_end"
    A("s_cmp_ge_u32 s2, 256")
    A(f"s_cbranch_scc1 {END}")
    stamp(A, opts, 0)
    A(f"s_load_dwordx2 s[4:5], s[0:1], {KA_WS}")
    A(f"s_load_dwordx4 s[40:43], s[0:1], {KA_X}")
    A(f"s_load_dwordx4 s[48:51], s[0:1], {KA_WK}")
    A(f"s_load_dwordx2 s[52:53], s[0:1], {KA_WO}")
    ids(A, opts)
    KVF, KVACC, CS, ONES, ST, vKV = XTRA, XTRA + 8, XTRA + 16, XTRA + 36, XTRA + 40, XTRA + 44
    WBR = XTRA + 46
    KVL = U * 8192
    row_token_addr(A, vT0, 11)
    A(f"v_lshrrev_b32 v{vt}, 4, v0")
    A(f"v_lshl_add_u32 v{vT0}, v{vt}, 4, v{vT0}")
    A(f"v_add_u32 v{vT1}, 0x8000, v{vT0}")
    w_setup(A, "N", 2048)
    A("s_waitcnt lgkmcnt(0)")
    srd(A, SRD_T, 40, 0, 2048 * 2048)
    srd(A, SRD_W, 42, 0, 1024 * 2048)
    SKIPKV = f"L_{name}_skipkv"
    A(f"s_cmp_ge_u32 s{sCB}, 4")
    A(f"s_cbranch_scc1 {SKIPKV}")
    A(f"s_cmp_lt_u32 s{sCB}, 2")
    A("s_cselect_b32 s46, s48, s50")
    A("s_cselect_b32 s47, s49, s51")
    srd(A, SRD_X, 46, 0, 1024 * 64)
    A(f"v_lshrrev_b32 v{vt}, 1, v0")
    A(f"v_and_b32 v{vt+1}, 0x13, v{vt}")
    A(f"v_bfe_u32 v{vt+2}, v{vt}, 2, 1")
    A(f"v_lshl_or_b32 v{vt+1}, v{vt+2}, 3, v{vt+1}")
    A(f"v_bfe_u32 v{vt+2}, v{vt}, 3, 1")
    A(f"v_lshl_or_b32 v{vt+1}, v{vt+2}, 2, v{vt+1}")
    A(f"v_lshlrev_b32 v{vt+1}, 6, v{vt+1}")
    A(f"v_and_b32 v{vt+2}, 1, v0")
    A(f"v_lshl_add_u32 v{vt+1}, v{vt+2}, 4, v{vt+1}")
    A(f"s_and_b32 s33, s{sCB}, 1")
    A(f"s_lshl_b32 s33, s33, 5")
    A(f"v_add_u32 v{vt+1}, s33, v{vt+1}")
    A(f"s_lshl_b32 s34, s{sW}, 13")
    A(f"s_add_u32 s34, s34, {KVL}")
    A(f"s_lshl_b32 s35, s{sW}, 14")
    for m in range(8):
        A(f"s_add_u32 m0, s34, {m * 1024}")
        A(f"s_add_u32 s36, s35, {m * 2048}")
        A(f"buffer_load_dwordx4 v{vt+1}, s[{SRD_X}:{SRD_X+3}], s36 offen lds")
    A.label(SKIPKV)
    A(f"v_lshrrev_b32 v{vt}, 4, v0")
    A(f"v_lshrrev_b32 v{vt+1}, 1, v{vt}")
    A(f"v_lshlrev_b32 v{vt+1}, 4, v{vt+1}")
    A(f"v_and_b32 v{vt}, 1, v{vt}")
    A(f"v_lshl_add_u32 v{vt+1}, v{vt}, 2, v{vt+1}")
    A(f"v_bfe_u32 v{vt}, v0, 2, 2")
    A(f"v_add_u32 v{vt+1}, v{vt+1}, v{vt}")
    A(f"v_lshlrev_b32 v{vt+1}, 5, v{vt+1}")
    A(f"v_and_b32 v{vt}, 3, v0")
    A(f"v_lshl_add_u32 v{vKV}, v{vt}, 3, v{vt+1}")
    A(f"v_add_u32 v{vKV}, {KVL}, v{vKV}")

    WROW = TRING + (U - 1) * 16

    def pre_extra():
        srd(A, SRD_X, 52, 0, 1024 * 2048)
        A(f"s_lshl_b32 s54, s2, 2")
        A(f"s_add_u32 s54, s54, s{sW}")
        A(f"s_lshl_b32 s33, s54, 11")
        A(f"v_lshlrev_b32 v{vt}, 5, v0")
        A(f"buffer_load_dwordx4 {V(WROW, 4)}, v{vt}, s[{SRD_X}:{SRD_X+3}], s33 offen")
        A(f"buffer_load_dwordx4 {V(WROW + 4, 4)}, v{vt}, s[{SRD_X}:{SRD_X+3}], s33 offen offset:16")

    def t_loads(sl, soff):
        out = []
        for tl in range(2):
            for s2 in range(2):
                out.append(f"buffer_load_dwordx4 {tslot(sl, s2, tl)}, v{vT0 + tl}, s[{SRD_T}:{SRD_T+3}], {soff} offen offset:{s2 * 64}")
        return out

    def after_first():
        for i in range(8 + 20):
            A(f"v_mov_b32 v{KVACC + i}, 0")
        for i in range(4):
            A(f"v_mov_b32 v{ONES + i}, 0x3f803f80")
            A(f"v_mov_b32 v{ST + i}, 0")
        A(f"s_waitcnt vmcnt({(U - 1) * 6})")
        A(f"v_mov_b32 v{vt}, 0")
        for i in range(8):
            A(f"v_dot2c_f32_bf16 v{vt}, v{WROW + i}, v{ONES}")
        A("s_nop 2")
        for sh in (8, 4, 2, 1):
            A(f"v_add_f32_dpp v{vt}, v{vt}, v{vt} row_ror:{sh} row_mask:0xf bank_mask:0xf")
            A("s_nop 1")
        reduce_over_g(A, vt, vt + 1)
        A(f"v_mul_f32 v{vt}, {f32hex(1.0 / 1024)}, v{vt}")
        A(f"v_cvt_pk_bf16_f32 v{vt+1}, v{vt}, v{vt}")
        A(f"v_lshlrev_b32 v{vt+2}, 16, v{vt+1}")
        A(f"v_sub_f32 v{vt+2}, v{vt}, v{vt+2}")
        A(f"v_cvt_pk_bf16_f32 v{vt+2}, v{vt+2}, v{vt+2}")
        A("s_lshr_b32 s33, s54, 5"); A("s_lshl_b32 s33, s33, 7")
        A("s_bfe_u32 s34, s54, 0x10004"); A("s_lshl_b32 s34, s34, 5"); A("s_add_u32 s33, s33, s34")
        A("s_bfe_u32 s34, s54, 0x10002"); A("s_lshl_b32 s34, s34, 4"); A("s_add_u32 s33, s33, s34")
        A("s_bfe_u32 s34, s54, 0x10003"); A("s_lshl_b32 s34, s34, 3"); A("s_add_u32 s33, s33, s34")
        A("s_and_b32 s34, s54, 3"); A("s_lshl_b32 s34, s34, 1"); A("s_add_u32 s33, s33, s34")
        srd(A, SRD_X, 4, WS_WB, 4096)
        A(f"v_mov_b32 v{vt+3}, 0")
        A(f"buffer_store_short v{vt+1}, v{vt+3}, s[{SRD_X}:{SRD_X+3}], s33 offen")
        A(f"buffer_store_short v{vt+2}, v{vt+3}, s[{SRD_X}:{SRD_X+3}], s33 offen offset:64")

    def kv_reads(buf, step_ahead_imm):
        return [f"ds_read_b64_tr_b16 {V(KVF + buf * 4 + 2 * i, 2)}, v{vKV} offset:{step_ahead_imm + i * 256}" for i in range(2)]

    def pre_reads():
        for l in kv_reads(0, 0): A(l)

    def step_extra(s2, sl):
        xm = []
        for tl in range(2):
            xm.append(mfma16(V(KVACC + tl * 4, 4), V(KVF + s2 * 4, 4), tslot(sl, s2, tl)))
        for F in range(4):
            xm.append(mfma16(V(CS + F * 4, 4), V(RB[s2] + F * 4, 4), V(ONES, 4)))
        xm.append(mfma16(V(CS + 16, 4), V(KVF + s2 * 4, 4), V(ONES, 4)))
        xf = kv_reads(1 - s2, (2 * sl + s2 + 1) * 1024)
        for tl in range(2):
            t = tslot(sl, s2, tl).base
            for q in range(4):
                xf.append(f"v_dot2c_f32_bf16 v{ST + tl}, v{t + q}, v{ONES}")
                xf.append(f"v_dot2c_f32_bf16 v{ST + 2 + tl}, v{t + q}, v{t + q}")
        return xm, xf

    def iter_end():
        return [f"v_add_u32 v{vKV}, {U * 2048}, v{vKV}"]

    gs_main(A, name, opts, 16, U, "N", 2048, t_loads, pre_extra=pre_extra, n_pre_extra=2, step_extra=step_extra,
            iter_end=iter_end, pre_reads=pre_reads, after_first_loads=after_first, extra_after=2)

    A("s_waitcnt vmcnt(0) lgkmcnt(0)")
    T = vt
    MR = RB[0]
    for tl in range(2):
        reduce_over_g(A, ST + tl, T)
        reduce_over_g(A, ST + 2 + tl, T)
        A(f"v_mul_f32 v{MR + tl}, {f32hex(1.0 / 1024)}, v{ST + tl}")
        A(f"v_mul_f32 v{T}, {f32hex(1.0 / 1024)}, v{ST + 2 + tl}")
        A(f"v_fma_f32 v{T}, -v{MR + tl}, v{MR + tl}, v{T}")
        A(f"v_add_f32 v{T}, {f32hex(EPS)}, v{T}")
        A(f"v_rsq_f32 v{MR + 2 + tl}, v{T}")
    srd(A, SRD_X, 4, WS_XM, 8192)
    row_token_addr(A, T, 2)
    for tl in range(2):
        A(f"buffer_store_dword v{MR + tl}, v{T}, s[{SRD_X}:{SRD_X+3}], 0 offen offset:{tl * 64}")
    srd(A, SRD_O, 4, WS_Q, 4 * MB)
    vQ = MR + 4
    A(f"v_lshrrev_b32 v{T}, 5, v0")
    A(f"v_lshlrev_b32 v{vQ}, 9, v{T}")
    A(f"v_bfe_u32 v{T}, v0, 4, 1")
    A(f"v_lshl_add_u32 v{vQ}, v{T}, 3, v{vQ}")
    A(f"v_and_b32 v{T}, 15, v0")
    A(f"v_lshl_add_u32 v{vQ}, v{T}, 4, v{vQ}")
    A(f"s_lshl_b32 s33, s{sTB}, 2")
    A(f"s_add_u32 s33, s33, s{sW}")
    A(f"s_lshl_b32 s34, s{sCB}, 7")
    A(f"s_add_u32 s34, s34, s33")
    A(f"s_lshl_b32 s34, s34, 11")
    A(f"s_add_u32 s35, s34, {64 * 2048}")
    SC = MR + 6
    for tl in range(2):
        A(f"v_mul_f32 v{SC + tl}, {f32hex(QSCALE)}, v{MR + 2 + tl}")
    for tl in range(2):
        for F in range(4):
            a = acc(F, tl).base
            for r in range(4):
                A(f"v_fma_f32 v{a + r}, -v{MR + tl}, v{CS + F * 4 + r}, v{a + r}")
                A(f"v_mul_f32 v{a + r}, v{SC + tl}, v{a + r}")
            A(f"v_cvt_pk_bf16_f32 v{a}, v{a}, v{a+1}")
            A(f"v_cvt_pk_bf16_f32 v{a+1}, v{a+2}, v{a+3}")
            A(f"buffer_store_dwordx2 {V(a, 2)}, v{vQ}, s[{SRD_O}:{SRD_O+3}], s{34 + F // 2} offen offset:{(F % 2) * 1024 + tl * 256}")
    DONE = f"L_{name}_done"
    ISV = f"L_{name}_isv"
    NRM = f"L_{name}_nrm"
    A(f"s_cmp_ge_u32 s{sCB}, 4")
    A(f"s_cbranch_scc1 {DONE}")
    srd(A, SRD_O, 4, WS_KV, 256 * 1024)
    NS = MR + 8
    for tl in range(2):
        a = KVACC + tl * 4
        A(f"v_mov_b32 v{NS + tl}, 0")
        for r in range(4):
            A(f"v_fma_f32 v{a + r}, -v{MR + tl}, v{CS + 16 + r}, v{a + r}")
            A(f"v_mul_f32 v{a + r}, v{MR + 2 + tl}, v{a + r}")
            A(f"v_fmac_f32 v{NS + tl}, v{a + r}, v{a + r}")
        A(f"v_cvt_pk_bf16_f32 v{a}, v{a}, v{a+1}")
        A(f"v_cvt_pk_bf16_f32 v{a+1}, v{a+2}, v{a+3}")
    A(f"s_lshl_b32 s33, s33, 12")
    A(f"s_cmp_ge_u32 s{sCB}, 2")
    A(f"s_cbranch_scc1 {ISV}")
    A(f"s_lshl_b32 s34, s{sCB}, 10")
    A(f"s_add_u32 s33, s33, s34")
    for tl in range(2):
        A(f"buffer_store_dwordx2 {V(KVACC + tl * 4, 2)}, v{vQ}, s[{SRD_O}:{SRD_O+3}], s33 offen offset:{tl * 256}")
    A(f"s_branch {NRM}")
    A.label(ISV)
    A(f"s_and_b32 s34, s{sCB}, 1")
    A(f"s_lshl_b32 s34, s34, 8")
    A(f"s_add_u32 s33, s33, s34")
    A(f"s_add_u32 s33, s33, 2048")
    A(f"v_bfe_u32 v{T}, v0, 2, 1")
    A(f"v_lshlrev_b32 v{T+1}, 9, v{T}")
    A(f"v_lshrrev_b32 v{T}, 4, v0")
    A(f"v_lshl_add_u32 v{T+1}, v{T}, 6, v{T+1}")
    A(f"v_bfe_u32 v{T}, v0, 3, 1")
    A(f"v_lshl_add_u32 v{T+1}, v{T}, 3, v{T+1}")
    A(f"v_and_b32 v{T}, 3, v0")
    A(f"v_lshl_add_u32 v{T+1}, v{T}, 1, v{T+1}")
    for tl in range(2):
        a = KVACC + tl * 4
        for r in range(4):
            op = "buffer_store_short" if r % 2 == 0 else "buffer_store_short_d16_hi"
            A(f"{op} v{a + r // 2}, v{T+1}, s[{SRD_O}:{SRD_O+3}], s33 offen offset:{tl * 1024 + r * 16}")
    A.label(NRM)
    for tl in range(2):
        reduce_over_g(A, NS + tl, T + 2)
    A(f"v_max_f32 v{NS}, v{NS}, v{NS+1}")
    A("s_nop 1")
    for sh in (8, 4, 2, 1):
        A(f"v_max_f32_dpp v{NS}, v{NS}, v{NS} row_ror:{sh} row_mask:0xf bank_mask:0xf")
        A("s_nop 1")
    srd(A, SRD_X, 4, WS_NRM, 1024)
    A(f"s_lshl_b32 s33, s{sCB}, 6")
    A(f"s_lshl_b32 s34, s{sTB}, 2")
    A(f"s_add_u32 s33, s33, s34")
    A(f"s_add_u32 s33, s33, s{sW}")
    A(f"s_lshl_b32 s33, s33, 2")
    A(f"v_mov_b32 v{T}, 0")
    A(f"buffer_store_dword v{NS}, v{T}, s[{SRD_X}:{SRD_X+3}], s33 offen")
    A.label(DONE)
    return finish(A, name, opts, END, TRING + U * 16)
```

```python
from gen_common import *

T_BOUND = 80.0
V_BOUND2 = 2.0 ** 60


def wave_max(A, reg, tmp):
    for sh in (8, 4, 2, 1):
        A("s_nop 1")
        A(f"v_max_f32_dpp v{reg}, v{reg}, v{reg} row_ror:{sh} row_mask:0xf bank_mask:0xf")
    for sw in ("16", "32"):
        A(f"v_mov_b32 v{tmp}, v{reg}")
        A("s_nop 1")
        A(f"v_permlane{sw}_swap_b32 v{reg}, v{tmp}")
        A(f"v_max_f32 v{reg}, v{reg}, v{tmp}")


def gen_k2(A, name="k2_attn_kernel", opts=None):
    opts = opts or {}
    kernel_begin(A, name)
    END = f"L_{name}_end"
    sW, sTB, sHG, sH = 24, 25, 26, 27
    sCoff, sM0 = 28, 29
    SRD_KV, SRD_Q, SRD_O, SRD_N = 8, 12, 16, 20
    vL, vLn, vD, vt = 1, 2, 3, 4
    Q = [12, 20]
    Sx = [28, 44]
    P = [60, 68]
    O = [76, 92]
    L = [108, 112]
    KB = [116, 124]
    VB = [132, 140]
    SEL = 148
    MX = [152, 153]
    NV = 160
    NRM_LDS = 65536

    A("s_cmp_ge_u32 s2, 256")
    A(f"s_cbranch_scc1 {END}")
    stamp(A, opts, 0)
    A(f"s_load_dwordx2 s[4:5], s[0:1], {KA_WS}")
    A(f"v_lshrrev_b32 v{vt}, 6, v0")
    A("v_and_b32 v0, 63, v0")
    A(f"s_lshr_b32 s{sTB}, s2, 3")
    A(f"v_readfirstlane_b32 s{sW}, v{vt}")
    A(f"s_and_b32 s{sHG}, s2, 7")
    A(f"v_lshlrev_b32 v{vL}, 4, v0")
    A(f"s_lshl_b32 s{sH}, s{sHG}, 2")
    A(f"s_add_u32 s{sH}, s{sH}, s{sW}")
    A(f"s_lshl_b32 s33, s{sW}, 12")
    A(f"v_add_u32 v{vD}, s33, v{vL}")
    A(f"s_mov_b32 s{sM0}, s33")
    A("s_waitcnt lgkmcnt(0)")
    srd(A, SRD_KV, 4, WS_KV, 256 * 1024)
    srd(A, SRD_Q, 4, WS_Q, 4 * MB)
    srd(A, SRD_N, 4, WS_NRM, 1024)
    srd(A, SRD_O, 4, WS_O, 4 * MB)

    def kv_dma(slot, soff):
        out = [[f"s_add_u32 m0, s{sM0}, {slot * 16384}" if isinstance(slot, int) else f"s_add_u32 m0, s{sM0}, {slot}", "s_nop 0",
                f"buffer_load_dwordx4 v{vD}, s[{SRD_KV}:{SRD_KV+3}], {soff} offen lds"]]
        for i in range(1, 4):
            out.append([f"buffer_load_dwordx4 v{vD}, s[{SRD_KV}:{SRD_KV+3}], {soff} offen offset:{i * 1024} lds"])
        return out

    A(f"s_mov_b32 s{sCoff}, 0")
    for g in kv_dma(0, f"s{sCoff}"):
        for l in g: A(l)
    A(f"s_lshl_b32 s33, s{sH}, 6")
    A(f"s_lshl_b32 s34, s{sTB}, 1")
    A(f"s_add_u32 s33, s33, s34")
    A(f"s_lshl_b32 s33, s33, 11")
    for X in range(2):
        for m in range(2):
            A(f"buffer_load_dwordx4 {V(Q[X] + 4 * m, 4)}, v{vL}, s[{SRD_Q}:{SRD_Q+3}], s33 offen offset:{X * 2048 + m * 1024}")
    A(f"buffer_load_dwordx4 {V(vt + 4, 4)}, v{vL}, s[{SRD_N}:{SRD_N+3}], 0 offen")
    for c in (1, 2):
        A(f"s_add_u32 s{sCoff}, s{sCoff}, 16384")
        for g in kv_dma(c, f"s{sCoff}"):
            for l in g: A(l)
    A(f"s_add_u32 s{sCoff}, s{sCoff}, 16384")
    A(f"v_lshrrev_b32 v{vt}, 4, v0")
    A(f"v_lshrrev_b32 v{vt+1}, 2, v0")
    A(f"v_xor_b32 v{vt}, v{vt}, v{vt+1}")
    A(f"v_and_b32 v{vt}, 1, v{vt}")
    A(f"v_mov_b32 v{vt+1}, 0x3f803f80")
    A(f"v_cmp_eq_u32 vcc, 0, v{vt}")
    A("s_nop 1")
    A(f"v_cndmask_b32 v{SEL}, 0, v{vt+1}, vcc")
    for i in range(1, 4):
        A(f"v_mov_b32 v{SEL + i}, v{SEL}")
    for X in range(2):
        for i in range(16): A(f"v_mov_b32 v{O[X] + i}, 0")
        for i in range(4): A(f"v_mov_b32 v{L[X] + i}, 0")
    for i in range(8):
        A(f"v_mov_b32 v{P[1] + i}, 0")
        A(f"v_mov_b32 v{VB[1] + i}, 0")
    A("s_waitcnt vmcnt(8)")
    A(f"v_mov_b32 v{vt}, 0")
    A(f"v_mov_b32 v{vt+1}, 0")
    for i in range(8):
        A(f"v_dot2c_f32_bf16 v{vt}, v{Q[0] + i}, v{Q[0] + i}")
    for i in range(8):
        A(f"v_dot2c_f32_bf16 v{vt+1}, v{Q[1] + i}, v{Q[1] + i}")
    A("s_nop 2")
    for r in (vt, vt + 1):
        A(f"v_mov_b32 v{vt+2}, v{r}")
        A("s_nop 1")
        A(f"v_permlane32_swap_b32 v{r}, v{vt+2}")
        A(f"v_add_f32 v{r}, v{r}, v{vt+2}")
    A(f"v_max_f32 v{vt}, v{vt}, v{vt+1}")
    wave_max(A, vt, vt + 1)
    A(f"v_mov_b32 v{vt+1}, {NRM_LDS}")
    A(f"s_lshl_b32 s33, s{sW}, 2")
    A(f"v_add_u32 v{vt+1}, s33, v{vt+1}")
    A(f"ds_write_b32 v{vt+1}, v{vt}")
    n = vt + 4
    A(f"v_max_f32 v{n}, v{n}, v{n+1}")
    A(f"v_max3_f32 v{n}, v{n}, v{n+2}, v{n+3}")
    for sh in (8, 4, 2, 1):
        A("s_nop 1")
        A(f"v_max_f32_dpp v{n}, v{n}, v{n} row_ror:{sh} row_mask:0xf bank_mask:0xf")
    A("s_nop 0")
    A(f"v_readlane_b32 s34, v{n}, 0")
    A(f"v_readlane_b32 s35, v{n}, 16")
    A(f"v_readlane_b32 s36, v{n}, 32")
    A(f"v_readlane_b32 s37, v{n}, 48")
    A("s_waitcnt lgkmcnt(0)")
    A("s_barrier")
    A(f"v_mov_b32 v{vt+1}, {NRM_LDS}")
    A(f"ds_read_b128 {V(vt + 4, 4)}, v{vt+1}")
    A(f"v_mov_b32 v{vt}, s34")
    A(f"v_add_f32 v{vt}, s35, v{vt}")
    A(f"v_mov_b32 v{vt+2}, s36")
    A(f"v_max_f32 v{vt+2}, s37, v{vt+2}")
    A("s_waitcnt lgkmcnt(0)")
    A(f"v_max_f32 v{n}, v{n}, v{n+1}")
    A(f"v_max3_f32 v{n}, v{n}, v{n+2}, v{n+3}")
    A(f"v_mul_f32 v{vt}, v{vt}, v{n}")
    A(f"v_mov_b32 v{vt+1}, {f32hex(T_BOUND * T_BOUND / 1.05)}")
    A(f"v_cmp_le_f32 vcc, v{vt}, v{vt+1}")
    A(f"v_mov_b32 v{vt+1}, {f32hex(V_BOUND2)}")
    A(f"v_cmp_le_f32 s[36:37], v{vt+2}, v{vt+1}")
    A("s_nop 1")
    A("s_and_b64 vcc, vcc, s[36:37]")
    SLOW = f"L_{name}_slow"
    FIN = f"L_{name}_fin"
    if opts.get("force_slow"):
        A("s_mov_b64 vcc, 0")
    A("s_nop 4")
    A(f"s_cbranch_vccz {SLOW}")

    def k_reads(buf, base, off):
        return [f"ds_read_b128 {V(KB[buf] + 4 * m, 4)}, v{base} offset:{off + m * 1024}" for m in range(2)]

    def v_reads(buf, base, off):
        return [f"ds_read_b128 {V(VB[buf] + 4 * m, 4)}, v{base} offset:{off + 2048 + m * 1024}" for m in range(2)]

    def s_mfma(X, kb):
        return [mfma32(V(Sx[X], 16), V(KB[kb], 4), V(Q[X], 4), "0"),
                mfma32(V(Sx[X], 16), V(KB[kb] + 4, 4), V(Q[X] + 4, 4))]

    def pv_mfma(X, vb):
        return [mfma32(V(O[X], 16), V(VB[vb], 4), V(P[X], 4)),
                mfma16(V(L[X], 4), V(SEL, 4), V(P[X], 4)),
                mfma32(V(O[X], 16), V(VB[vb] + 4, 4), V(P[X] + 4, 4)),
                mfma16(V(L[X], 4), V(SEL, 4), V(P[X] + 4, 4))]

    def softmax_valu(X):
        out = []
        s, p = Sx[X], P[X]
        for j in range(8):
            out.append(f"v_exp_f32 v{s + 2*j}, v{s + 2*j}")
            out.append(f"v_exp_f32 v{s + 2*j + 1}, v{s + 2*j + 1}")
            if j > 0:
                out.append(f"v_cvt_pk_bf16_f32 v{p + j - 1}, v{s + 2*j - 2}, v{s + 2*j - 1}")
        out.append(f"v_cvt_pk_bf16_f32 v{p + 7}, v{s + 14}, v{s + 15}")
        return out

    def phase(valu, mf, lds, extra=None):
        valu = list(valu)
        out = []
        n = len(valu)
        pos = opts.get("mfpos", [0, 4, 9, 13, 17, 21])
        items = {}
        for k, m in enumerate(mf):
            items.setdefault(pos[k], []).append(m)
        for k, l in enumerate(lds):
            items.setdefault(1 + 2 * k, []).append(l)
        for k, e in enumerate(extra or []):
            items.setdefault(10 + 2 * k, []).extend(e if isinstance(e, list) else [e])
        for i, v in enumerate(valu):
            out += items.get(i, [])
            if v == "NOPSLOT":
                if not items.get(i): out.append("s_nop 0")
                continue
            out.append(v)
        return out

    A(f"v_add_u32 v{vLn}, 16384, v{vL}")
    for l in k_reads(0, vL, 0): A(l)
    A("s_waitcnt lgkmcnt(0)")
    for l in s_mfma(0, 0): A(l)
    A("s_nop 7")
    A("s_nop 3")
    stamp(A, opts, 1)
    LOOP = f"L_{name}_loop"
    A("s_mov_b32 s44, 16")
    A(f"s_mov_b32 s45, {3 * 16384}")
    A.loop_begin(LOOP)
    for t in range(4):
        kb, vb = t % 2, t % 2
        extra = []
        if t == 3:
            A("s_waitcnt vmcnt(4)")
            A("s_barrier")
            g = kv_dma("s45", f"s{sCoff}")
            extra = [g[0], g[1], g[2], g[3], [f"s_add_u32 s{sCoff}, s{sCoff}, 16384", "s_add_u32 s45, s45, 16384", "s_and_b32 s45, s45, 0xffff"]]
            lds = k_reads(1 - kb, vLn, 0) + v_reads(vb, vL, t * 4096)
        else:
            lds = k_reads(1 - kb, vL, (t + 1) * 4096) + v_reads(vb, vL, t * 4096)
        mf = s_mfma(1, kb) + pv_mfma(1, 1 - vb)
        for l in phase(softmax_valu(0), mf, lds, extra): A(l)
        A("s_waitcnt lgkmcnt(0)")
        extra = []
        if t == 3:
            extra = [[f"v_mov_b32 v{vL}, v{vLn}"], [f"v_add_u32 v{vLn}, 16384, v{vLn}"], [f"v_and_b32 v{vLn}, 0xffff, v{vLn}"],
                     ["s_sub_u32 s44, s44, 1", "s_cmp_lg_u32 s44, 0"]]
        mf = s_mfma(0, 1 - kb) + pv_mfma(0, vb)
        for l in phase(softmax_valu(1), mf, [], extra): A(l)
    A(f"s_cbranch_scc1 {LOOP}")
    A.loop_end()
    A("s_nop 1")
    for l in pv_mfma(1, 1): A(l)
    A(f"s_branch {FIN}")

    A.label(SLOW)
    for X in range(2):
        A(f"v_mov_b32 v{MX[X]}, 0xff7fffff")
    A("s_mov_b32 s44, 16")
    A(f"s_mov_b32 s45, {3 * 16384}")
    OUTER, INNER = f"L_{name}_so", f"L_{name}_si"
    A.loop_begin(OUTER)
    A(f"v_mov_b32 v{vt+6}, v{vL}")
    A("s_mov_b32 s46, 4")
    A.loop_begin(INNER)
    for l in k_reads(0, vt + 6, 0) + v_reads(0, vt + 6, 0): A(l)
    A("s_waitcnt lgkmcnt(0)")
    for X in range(2):
        s, p = Sx[X], P[X]
        for l in s_mfma(X, 0): A(l)
        A("s_nop 7"); A("s_nop 4")
        A(f"v_max_f32 v{vt}, v{s}, v{s+1}")
        for i in range(2, 16, 2):
            A(f"v_max3_f32 v{vt}, v{vt}, v{s+i}, v{s+i+1}")
        A(f"v_mov_b32 v{vt+1}, v{vt}")
        A("s_nop 1")
        A(f"v_permlane32_swap_b32 v{vt}, v{vt+1}")
        A(f"v_max3_f32 v{vt}, v{vt}, v{vt+1}, v{MX[X]}")
        A(f"v_sub_f32 v{vt+1}, v{MX[X]}, v{vt}")
        A(f"v_exp_f32 v{vt+1}, v{vt+1}")
        A(f"v_mov_b32 v{MX[X]}, v{vt}")
        for i in range(16):
            A(f"v_sub_f32 v{s+i}, v{s+i}, v{vt}")
        for i in range(16):
            A(f"v_exp_f32 v{s+i}, v{s+i}")
        for i in range(16):
            A(f"v_mul_f32 v{O[X]+i}, v{O[X]+i}, v{vt+1}")
        for i in range(4):
            A(f"v_mul_f32 v{L[X]+i}, v{L[X]+i}, v{vt+1}")
        for j in range(8):
            A(f"v_cvt_pk_bf16_f32 v{p+j}, v{s+2*j}, v{s+2*j+1}")
        A("s_nop 1")
        for l in pv_mfma(X, 0): A(l)
        A("s_nop 7"); A("s_nop 4")
    A(f"v_add_u32 v{vt+6}, 4096, v{vt+6}")
    A("s_sub_u32 s46, s46, 1")
    A("s_cmp_lg_u32 s46, 0")
    A(f"s_cbranch_scc1 {INNER}")
    A.loop_end()
    A("s_waitcnt vmcnt(4)")
    A("s_barrier")
    for g in kv_dma("s45", f"s{sCoff}"):
        for l in g: A(l)
    A(f"s_add_u32 s{sCoff}, s{sCoff}, 16384")
    A("s_add_u32 s45, s45, 16384")
    A("s_and_b32 s45, s45, 0xffff")
    A(f"v_add_u32 v{vL}, 16384, v{vL}")
    A(f"v_and_b32 v{vL}, 0xffff, v{vL}")
    A("s_sub_u32 s44, s44, 1")
    A("s_cmp_lg_u32 s44, 0")
    A(f"s_cbranch_scc1 {OUTER}")
    A.loop_end()

    A.label(FIN)
    stamp(A, opts, 2)
    A("s_nop 7"); A("s_nop 4")
    A(f"v_bfe_u32 v{vt}, v0, 4, 1")
    A(f"v_lshlrev_b32 v{vt+1}, 11, v{vt}")
    A(f"v_lshrrev_b32 v{vt}, 5, v0")
    A(f"v_lshl_add_u32 v{vt+1}, v{vt}, 8, v{vt+1}")
    A(f"v_and_b32 v{vt}, 15, v0")
    A(f"v_lshl_add_u32 v{vt+1}, v{vt}, 4, v{vt+1}")
    A(f"s_lshr_b32 s33, s{sH}, 1")
    A(f"s_lshl_b32 s33, s33, 18")
    A(f"s_and_b32 s34, s{sH}, 1")
    A(f"s_lshl_b32 s34, s34, 10")
    A(f"s_add_u32 s33, s33, s34")
    A(f"s_lshl_b32 s34, s{sTB}, 13")
    A(f"s_add_u32 s33, s33, s34")
    A(f"s_add_u32 s34, s33, 4096")
    for X in range(2):
        A(f"v_rcp_f32 v{vt+2+X}, v{L[X]}")
    A("s_nop 0")
    for X in range(2):
        for i in range(16):
            A(f"v_mul_f32 v{O[X]+i}, v{O[X]+i}, v{vt+2+X}")
        for j in range(8):
            A(f"v_cvt_pk_bf16_f32 v{P[X]+j}, v{O[X]+2*j}, v{O[X]+2*j+1}")
        for c in range(2):
            A(f"buffer_store_dwordx4 {V(P[X] + 4*c, 4)}, v{vt+1}, s[{SRD_O}:{SRD_O+3}], s{33+X} offen offset:{c * 512}")
    if opts.get("prof"):
        A("s_waitcnt vmcnt(0)")
        stamp(A, opts, 3)
        prof_store(A, opts, 4, opts.get("kidx", 0))
    A.label(END)
    A("s_endpgm")
    return kernel_desc(name, NV, 0, 80)
```

```python
from gen_common import *
import math

C0 = -2.0 * math.sqrt(2.0 / math.pi) * math.log2(math.e)
C1 = C0 * 0.044715


def gen_k4(A, name="k4_gateup_kernel", opts=None):
    opts = opts or {}
    kernel_begin(A, name)
    END = f"L_{name}_end"
    vT0, vT1 = 1, 2
    vWo = 3
    vWa, vWb = 10, 11
    vt = 12
    ACC = 32
    R = [0, 56]
    TS = 112
    VPA = 176
    SLOT = 28672
    sW, sTB, sJB = 24, 25, 26
    sToff, sWoff, sHalf, sM0b = 27, 28, 29, 31
    SRD_T, SRD_W, SRD_O, SRD_V = 8, 12, 16, 20

    def acc(wf, tl):
        return V(ACC + (wf * 4 + tl) * 4, 4)

    A(f"s_cmp_ge_u32 s2, 256")
    A(f"s_cbranch_scc1 {END}")
    stamp(A, opts, 0)
    A(f"s_load_dwordx2 s[4:5], s[0:1], {KA_WS}")
    A(f"s_load_dwordx4 s[40:43], s[0:1], {KA_WG}")
    A(f"v_lshrrev_b32 v{vt}, 6, v0")
    A(f"v_and_b32 v0, 63, v0")
    A(f"s_and_b32 s3, s2, 7")
    A(f"v_readfirstlane_b32 s{sW}, v{vt}")
    A(f"s_lshr_b32 s30, s2, 3")
    A(f"s_and_b32 s{sTB}, s3, 1")
    A(f"s_lshl_b32 s{sTB}, s{sTB}, 2")
    A(f"s_and_b32 s33, s30, 3")
    A(f"s_add_u32 s{sTB}, s{sTB}, s33")
    A(f"s_lshr_b32 s{sJB}, s3, 1")
    A(f"s_lshl_b32 s{sJB}, s{sJB}, 3")
    A(f"s_lshr_b32 s33, s30, 2")
    A(f"s_add_u32 s{sJB}, s{sJB}, s33")
    A(f"s_lshl_b32 s33, s{sTB}, 2")
    A(f"s_add_u32 s33, s33, s{sW}")
    A(f"s_lshl_b32 s33, s33, 13")
    A(f"v_lshlrev_b32 v{vT0}, 4, v0")
    A(f"v_add_u32 v{vT0}, s33, v{vT0}")
    A(f"v_add_u32 v{vT1}, 0x1000, v{vT0}")
    A(f"s_waitcnt lgkmcnt(0)")
    srd(A, SRD_T, 4, WS_HC, 4 * MB)
    srd(A, SRD_V, 4, WS_VP, 2048 * 64)
    A(f"s_cmp_lt_u32 s{sW}, 2")
    A(f"s_cselect_b32 s6, s40, s42")
    A(f"s_cselect_b32 s7, s41, s43")
    srd(A, SRD_W, 6, 0, 1024 * 7168)
    srd(A, SRD_O, 4, WS_ACT, ACT_BYTES)

    def t_load(u, soff):
        out = []
        for tl in range(4):
            dst = Ac(TS + (u % 4) * 16 + tl * 4, 4)
            vo = vT0 if tl < 2 else vT1
            out.append(f"buffer_load_dwordx4 {dst}, v{vo}, s[{SRD_T}:{SRD_T+3}], {soff} offen offset:{(tl % 2) * 2048 + (u % 2) * 1024}")
        return out

    def w_dma(slot_in_half, soff):
        out = []
        for m in range(7):
            grp = []
            if m % 4 == 0:
                grp.append(f"s_add_u32 m0, s{sM0b}, {slot_in_half * SLOT + (m // 4) * 4096}")
                grp.append("s_nop 0")
            grp.append(f"buffer_load_dwordx4 v{vWo + m}, s[{SRD_W}:{SRD_W+3}], {soff} offen offset:{(m % 4) * 1024} lds")
            out.append(grp)
        return out

    A(f"s_mov_b32 s{sToff}, 0")
    for l in t_load(0, f"s{sToff}"):
        A(l)
    A(f"s_and_b32 s34, s{sJB}, 1")
    A(f"s_lshl_b32 s34, s34, 1")
    A(f"s_mul_i32 s35, s{sJB}, 224")
    A(f"s_and_b32 s36, s{sW}, 1")
    A(f"s_mul_i32 s36, s36, {32 * 7168}")
    A(f"s_add_u32 s35, s35, s36")
    A(f"s_movk_i32 s37, 4682")
    A(f"s_movk_i32 s38, 7168")
    for m in range(7):
        d = vWo + m
        A(f"v_add_u32 v{vt}, {64 * m}, v0")
        A(f"v_mul_u32_u24 v{vt+1}, s37, v{vt}")
        A(f"v_lshrrev_b32 v{vt+1}, 16, v{vt+1}")
        A(f"v_mul_u32_u24 v{vt+2}, 14, v{vt+1}")
        A(f"v_sub_u32 v{vt}, v{vt}, v{vt+2}")
        A(f"v_add_u32 v{vt}, s34, v{vt}")
        A(f"v_subrev_u32 v{vt+2}, 14, v{vt}")
        A(f"v_min_u32 v{vt}, v{vt}, v{vt+2}")
        A(f"v_mul_u32_u24 v{vt+1}, s38, v{vt+1}")
        A(f"v_lshl_add_u32 v{d}, v{vt}, 4, v{vt+1}")
        A(f"s_sub_u32 s39, s35, {(m % 4) * 1024}")
        A(f"v_add_u32 v{d}, s39, v{d}")
    A(f"s_mul_i32 s{sM0b}, s{sW}, 7168")
    A(f"s_mov_b32 s{sHalf}, 0")
    A(f"s_mov_b32 s{sWoff}, 0")

    NIT = 8

    def seq(tr, it):
        if it == -1:
            for _ in range(7): tr.issue(("W", 0))
            tr.q = [("T", 0)] * 4 + tr.q
            for _ in range(4): tr.issue(("VP", 0))
            for u in (1, 2):
                for _ in range(4): tr.issue(("T", u))
            for s in (1, 2, 3):
                for _ in range(7): tr.issue(("W", s))
            return None
        ns = []
        for s in (2 * it, 2 * it + 1):
            ns.append(tr.wait_for(lambda t: t == ("T", 2 * s)))
            for _ in range(4): tr.issue(("T", 2 * s + 3))
            ns.append(tr.wait_for(lambda t: t == ("T", 2 * s + 1) or t == ("W", s + 1)))
            for _ in range(4): tr.issue(("T", 2 * s + 4))
            for _ in range(7): tr.issue(("W", s + 4))
        return ns

    waits = resolve_waits(seq, NIT)
    waits = [63 if w is None else w for w in waits]

    for g in w_dma(0, f"s{sWoff}"):
        for l in g: A(l)
    A(f"s_lshl_b32 s33, s{sTB}, 2")
    A(f"s_add_u32 s33, s33, s{sW}")
    A(f"s_lshl_b32 s33, s33, 12")
    A(f"v_lshlrev_b32 v{vt}, 6, v0")
    for i in range(4):
        A(f"buffer_load_dwordx4 {Ac(VPA + 4 * i, 4)}, v{vt}, s[{SRD_V}:{SRD_V+3}], s33 offen offset:{16 * i}")
    for l in t_load(1, f"s{sToff}"): A(l)
    A(f"s_mov_b32 s{sToff}, {STAGE_BYTES}")
    for l in t_load(2, f"s{sToff}"): A(l)
    for s in (1, 2, 3):
        A(f"s_add_u32 s{sWoff}, s{sWoff}, {64 * 7168}")
        if s == 2:
            A(f"s_add_u32 s{sM0b}, s{sM0b}, {2 * SLOT}")
        for g in w_dma(s % 2, f"s{sWoff}"):
            for l in g: A(l)
    A(f"s_sub_u32 s{sM0b}, s{sM0b}, {2 * SLOT}")
    A(f"s_add_u32 s{sWoff}, s{sWoff}, {64 * 7168}")
    A(f"v_lshrrev_b32 v{vt}, 2, v0")
    A(f"v_mul_u32_u24 v{vWa}, 224, v{vt}")
    A(f"v_and_b32 v{vt}, 3, v0")
    A(f"v_lshl_add_u32 v{vWa}, v{vt}, 3, v{vWa}")
    A(f"v_add_u32 v{vWb}, {2 * SLOT}, v{vWa}")
    for i in range(224):
        A(f"v_mov_b32 v{ACC + i}, 0")

    def tr_reads(rbuf, vbase, slot, s2):
        out = []
        for F in range(7):
            for mat in range(2):
                wf = mat * 7 + F
                for i in range(2):
                    off = slot * SLOT + mat * 14336 + (32 * s2 + 16 * i) * 224 + F * 32
                    out.append(f"ds_read_b64_tr_b16 {Ac(R[rbuf] + wf * 4 + 2 * i, 2)}, v{vbase} offset:{off}")
        return out

    A(f"s_waitcnt vmcnt(33)")
    A(f"s_barrier")
    for l in tr_reads(0, vWa, 0, 0): A(l)

    def step_mfmas(rbuf, tslot):
        out = []
        for F in range(7):
            for mat in range(2):
                wf = mat * 7 + F
                for tl in range(4):
                    out.append(mfma16(acc(wf, tl), Ac(R[rbuf] + wf * 4, 4), Ac(TS + tslot * 16 + tl * 4, 4)))
        return out

    LOOP = f"L_{name}_loop"
    stamp(A, opts, 1)
    A(f"s_mov_b32 s44, {NIT}")
    A.loop_begin(LOOP)
    wi = 0
    for sp in range(2):
        u = 2 * sp
        A(f"s_waitcnt vmcnt({waits[wi]}) lgkmcnt(0)"); wi += 1
        f = {}
        spread(f, tr_reads(1, vWa, sp, 1), 0, 44)
        spread(f, t_load(u + 3, f"s{sToff}"), 2, 30)
        main = step_mfmas(0, u % 4)
        for l in interleave(main, f): A(l)
        A(f"s_waitcnt vmcnt({waits[wi]}) lgkmcnt(0)"); wi += 1
        A(f"s_barrier")
        f = {}
        if sp == 0:
            rd = tr_reads(0, vWa, 1, 0)
        else:
            rd = tr_reads(0, vWb, 0, 0)
        spread(f, rd, 0, 44)
        f.setdefault(0, []).insert(0, f"s_add_u32 s{sToff}, s{sToff}, {STAGE_BYTES}")
        spread(f, t_load(u + 4, f"s{sToff}"), 1, 14)
        spread(f, w_dma(sp, f"s{sWoff}"), 16, 50)
        f.setdefault(52, []).append(f"s_add_u32 s{sWoff}, s{sWoff}, {64 * 7168}")
        if sp == 1:
            f.setdefault(52, []).append(f"s_sub_u32 s{sHalf}, {2 * SLOT}, s{sHalf}")
            f[52].append(f"s_mul_i32 s{sM0b}, s{sW}, 7168")
            f[52].append(f"s_add_u32 s{sM0b}, s{sM0b}, s{sHalf}")
            f.setdefault(53, []).append(f"v_swap_b32 v{vWa}, v{vWb}")
            f.setdefault(54, []).append(f"s_sub_u32 s44, s44, 1")
            f[54].append(f"s_cmp_lg_u32 s44, 0")
        main = step_mfmas(1, (u + 1) % 4)
        for l in interleave(main, f): A(l)
    A(f"s_cbranch_scc1 {LOOP}")
    A.loop_end()

    stamp(A, opts, 2)
    A(f"s_waitcnt vmcnt(0) lgkmcnt(0)")
    for i in range(16):
        A(f"v_accvgpr_read_b32 v{vt + i}, a{VPA + i}")
    for w in (8, 4, 2, 1):
        for i in range(w):
            A(f"v_add_f32 v{vt + i}, v{vt + i}, v{vt + w + i}")
    A(f"v_mov_b32 v{vt+1}, {f32hex(EPS)}")
    A(f"v_fmac_f32 v{vt+1}, {f32hex(1.0 / 1024)}, v{vt}")
    A(f"v_and_b32 v{vt+2}, 15, v0")
    A(f"v_lshlrev_b32 v{vt+2}, 2, v{vt+2}")
    cAB = 20
    cR = 28
    for tl in range(4):
        A(f"v_add_u32 v{vt+3}, {64 * tl}, v{vt+2}")
        A(f"ds_bpermute_b32 v{cR + tl}, v{vt+3}, v{vt+1}")
    A(f"s_waitcnt lgkmcnt(0)")
    for tl in range(4):
        A(f"v_rsq_f32 v{vt + 4 + tl}, v{cR + tl}")
    for tl in range(4):
        r = vt + 4 + tl
        A(f"v_mul_f32 v{cAB + 2 * tl}, {f32hex(C0)}, v{r}")
        A(f"v_mul_f32 v{cAB + 2 * tl + 1}, v{r}, v{r}")
        A(f"v_mul_f32 v{cAB + 2 * tl + 1}, v{cAB + 2 * tl + 1}, v{r}")
        A(f"v_mul_f32 v{cAB + 2 * tl + 1}, {f32hex(C1)}, v{cAB + 2 * tl + 1}")
    A(f"s_and_b32 s34, s{sJB}, 1")
    A(f"s_mul_i32 s35, s{sJB}, 7")
    A(f"s_add_u32 s35, s35, s34")
    A(f"s_lshr_b32 s35, s35, 1")
    for P in range(4):
        if P < 3:
            A(f"s_add_u32 s36, s35, {P}")
        else:
            A(f"s_lshl_b32 s37, s34, 2")
            A(f"s_add_u32 s36, s35, 3")
            A(f"s_sub_u32 s36, s36, s37")
        A(f"s_lshr_b32 s37, s36, 1")
        A(f"s_lshl_b32 s37, s37, 18")
        A(f"s_and_b32 s36, s36, 1")
        A(f"s_lshl_b32 s36, s36, 10")
        A(f"s_add_u32 s{48 + P}, s36, s37")
    A(f"s_lshl_b32 s34, s34, 3")
    A(f"s_add_u32 s51, s51, s34")

    TA, TB = 4, 6

    def glu(F, tl, h, T, dst):
        a = V(acc(F, tl).base + 2 * h, 2)
        u = V(acc(7 + F, tl).base + 2 * h, 2)
        AB = V(cAB + 2 * tl, 2)
        Rr = cR + tl
        Rp = V(Rr & ~1, 2)
        sel = "op_sel:[0,1,1] op_sel_hi:[1,1,1]" if Rr & 1 else "op_sel:[0,0,0] op_sel_hi:[1,0,0]"
        t = V(T, 2)
        return [
            f"v_pk_mul_f32 {t}, {a}, {a}",
            f"v_pk_fma_f32 {t}, {t}, {AB}, {AB} op_sel:[0,1,0] op_sel_hi:[1,1,0]",
            f"v_pk_mul_f32 {t}, {t}, {a}",
            f"v_exp_f32 v{T}, v{T}",
            f"v_exp_f32 v{T+1}, v{T+1}",
            f"v_pk_mul_f32 {a}, {a}, {u}",
            f"v_pk_fma_f32 {t}, {t}, {Rp}, {Rp} {sel}",
            f"v_rcp_f32 v{T}, v{T}",
            f"v_rcp_f32 v{T+1}, v{T+1}",
            "NOP",
            f"v_pk_mul_f32 {a}, {a}, {t}",
            f"v_cvt_pk_bf16_f32 v{dst}, v{a.base}, v{a.base+1}",
        ]

    for tl in range(4):
        vo = vT0 if tl < 2 else vT1
        for P in range(4):
            Fs = (2 * P, 2 * P + 1) if P < 3 else (6,)
            dbase = acc(7 + Fs[0], tl).base
            for n, F in enumerate(Fs):
                s0 = glu(F, tl, 0, TA, dbase + 2 * n)
                s1 = glu(F, tl, 1, TB, dbase + 2 * n + 1)
                for x, y in zip(s0, s1):
                    if x != "NOP": A(x)
                    if y != "NOP": A(y)
            if P < 3:
                A(f"buffer_store_dwordx4 {V(dbase, 4)}, v{vo}, s[{SRD_O}:{SRD_O+3}], s{48 + P} offen offset:{(tl % 2) * 2048}")
            else:
                A(f"buffer_store_dwordx2 {V(dbase, 2)}, v{vo}, s[{SRD_O}:{SRD_O+3}], s{48 + P} offen offset:{(tl % 2) * 2048}")
    if opts.get("prof"):
        A("s_waitcnt vmcnt(0)")
        stamp(A, opts, 3)
        prof_store(A, opts, 4, opts.get("kidx", 0))
    A.label(END)
    A("s_endpgm")
    return kernel_desc(name, 256, 192, 80)
```

```python
import sys, json
sys.path.insert(0,'work')
from build import build
from gen_gs import *
from gen_k2 import gen_k2
from gen_k4 import gen_k4
def make(prof=0, o=None):
    o = o or {}
    P = lambda i, extra=None: dict({"prof":prof,"kidx":i}, **(extra or {}))
    U5 = o.get("U5", 4)
    parts = [(gen_k1,"k1_qkv_kernel",P(0,o.get("k1"))),(gen_k2,"k2_attn_kernel",P(1,o.get("k2"))),(gen_k3,"k3_wo_kernel",P(2,o.get("k3"))),
             (gen_k4,"k4_gateup_kernel",P(3,o.get("k4"))),(gen_k5,"k5_down_kernel",P(4,dict({"U":U5},**(o.get("k5") or {}))))]
    launches = [("k1_qkv_kernel",256,256,65536),("k2_attn_kernel",256,256,65536+256),("k3_wo_kernel",256,256,4*8192+4096+256),
                ("k4_gateup_kernel",256,256,4*28672),("k5_down_kernel",256,256,U5*8192)]
    return build(parts, launches)
if __name__ == "__main__":
    asm, probs = make(0)
    print("hazards:", len(probs)); print("\n".join(probs[:20]))
    open('sequential_preLN__grouped_kv_mqa__geglu_ffn__prompt.s','w').write(asm)
    asm, probs = make(1)
    open('all_prof.s','w').write(asm)
```

```python
import sys
sys.path.insert(0,'work')
from gen_common import *
def build(parts, launches):
    A = Asm()
    descs = []
    probs = []
    for fn, name, opts in parts:
        st = len(A.trace)
        l0 = len(A.lines)
        descs.append(fn(A, name, opts))
        fl = (opts or {}).get("stflag")
        if fl:
            for i in range(l0, len(A.lines)):
                if A.lines[i].strip().startswith("buffer_store") and fl not in A.lines[i]:
                    A.lines[i] = A.lines[i] + " " + fl
        probs += check_hazards(A.trace[st:], name)
    head = open('sequential_preLN__grouped_kv_mqa__geglu_ffn__prompt.s.ref').read().split('\n')
    hdr = [l for l in head if l.startswith(';') and '@launch' not in l and 'Override' not in l and 'grid=ceil' not in l][:14]
    out = "\n".join(hdr) + "\n"
    for k,g,b,l in launches:
        out += f"; @launch kernel={k} grid=({g},1,1) block=({b},1,1) lds={l}\n"
    out += '.amdgcn_target "amdgcn-amd-amdhsa--gfx950"\n.text\n'
    out += A.text()
    out += '.section .rodata,"a"\n.p2align 6\n' + "\n.p2align 6\n".join(descs)
    return out, probs
```

```python
from asmlib import *

KA_X, KA_WQ, KA_WK, KA_WV, KA_WO, KA_BX, KA_WG, KA_WU, KA_WD, KA_OUT, KA_DBG, KA_WS = [8 * i for i in range(12)]

MB = 1 << 20
WS_Q = 0
WS_KV = 4 * MB
WS_NRM = WS_KV + 256 * 1024
WS_XM = WS_NRM + 4096
WS_WB = WS_XM + 8192
WS_VP = WS_WB + 4096
WS_QN = WS_VP + 2048 * 64
WS_MH = WS_QN + 4096
WS_O = 5 * MB
WS_H = 9 * MB
WS_HC = 13 * MB
WS_ACT = 17 * MB
ACT_BYTES = 2048 * 3584 * 2
STAGE_BYTES = 128 * 2048

EPS = 1e-5


def f32hex(x):
    import struct
    return "0x%08x" % struct.unpack("<I", struct.pack("<f", x))[0]


def kernel_begin(A, name):
    A.raw(f".globl {name}")
    A.raw(".p2align 8")
    A.raw(f".type {name},@function")
    A.raw(f"{name}:")


def kernel_desc(name, nv, na, ns):
    acc = (nv + 3) // 4 * 4
    if na:
        total = acc + na
    else:
        total = nv
    return f""".amdhsa_kernel {name}
  .amdhsa_next_free_vgpr {total}
  .amdhsa_next_free_sgpr {ns}
  .amdhsa_accum_offset {acc}
  .amdhsa_group_segment_fixed_size 0
  .amdhsa_kernarg_size 96
  .amdhsa_user_sgpr_count 2
  .amdhsa_user_sgpr_kernarg_segment_ptr 1
  .amdhsa_system_sgpr_workgroup_id_x 1
  .amdhsa_float_denorm_mode_32 3
.end_amdhsa_kernel
"""


def srd(A, s, base_pair, offset, nbytes):
    if offset:
        A(f"s_add_u32 s{s}, s{base_pair}, {offset}")
        A(f"s_addc_u32 s{s+1}, s{base_pair+1}, 0")
        A(f"s_and_b32 s{s+1}, s{s+1}, 0xffff")
    else:
        A(f"s_mov_b32 s{s}, s{base_pair}")
        A(f"s_and_b32 s{s+1}, s{base_pair+1}, 0xffff")
    A(f"s_mov_b32 s{s+2}, {nbytes}")
    A(f"s_mov_b32 s{s+3}, 0x20000")


def mfma16(d, a, b, c=None):
    return f"v_mfma_f32_16x16x32_bf16 {d}, {a}, {b}, {d if c is None else c}"


def mfma32(d, a, b, c=None):
    return f"v_mfma_f32_32x32x16_bf16 {d}, {a}, {b}, {d if c is None else c}"


def resolve_waits(seq_builder, n_iter):
    tr = VmTracker()
    seq_builder(tr, -1)
    best = None
    for it in range(n_iter):
        ns = seq_builder(tr, it)
        if best is None:
            best = list(ns)
        else:
            best = [min(a, b) if (a is not None and b is not None) else (a if b is None else b) for a, b in zip(best, ns)]
    return best


WS_PROF = 40 * MB
def xstamp(A, opts, tag):
    if opts.get("s1") == tag: stamp(A, opts, 1, True)
    if opts.get("s2") == tag: stamp(A, opts, 2, True)


def stamp(A, opts, i, forced=False):
    if not opts.get("prof"): return
    if not forced and ((i == 1 and opts.get("s1")) or (i == 2 and opts.get("s2"))): return
    A(f"s_memtime s[{64+2*i}:{65+2*i}]")
    if i == 0: A("s_memrealtime s[72:73]")
    if i == 3: A("s_memrealtime s[74:75]")

def prof_store(A, opts, ws_pair, kidx):
    if not opts.get("prof"): return
    A("s_waitcnt lgkmcnt(0)")
    A(f"s_add_u32 s76, s{ws_pair}, {WS_PROF + kidx * 16384}")
    A(f"s_addc_u32 s77, s{ws_pair+1}, 0")
    A("v_mov_b32 v0, s64"); A("v_mov_b32 v1, s66"); A("v_mov_b32 v2, s68"); A("v_mov_b32 v3, s70")
    A("v_mov_b32 v4, s72"); A("v_mov_b32 v5, s74")
    A("s_lshl_b32 s78, s2, 5")
    A("v_mov_b32 v6, s78")
    A("s_nop 4")
    A("global_store_dwordx4 v6, v[0:3], s[76:77]")
    A("global_store_dwordx2 v6, v[4:5], s[76:77] offset:16")

def prof_report(arr, label):
    import numpy as np
    a = arr.astype(np.int64)
    d1 = (a[:,1]-a[:,0]) & 0xffffffff; d2 = (a[:,2]-a[:,1]) & 0xffffffff; d3 = (a[:,3]-a[:,2]) & 0xffffffff
    rt0 = a[:,4]; rt1 = a[:,5]
    tot = (rt1.max() - rt0.min())/100.0
    cyc = (a[:,3]-a[:,0]) & 0xffffffff
    clk = np.median(cyc / np.maximum((rt1-rt0),1) * 100)
    print(f"{label}: span {tot:6.2f}us | start spread {(rt0.max()-rt0.min())/100:.2f}us | per-WG {np.median(rt1-rt0)/100:6.2f}us | cyc pro {np.median(d1):.0f} loop {np.median(d2):.0f} epi {np.median(d3):.0f} (max pro {d1.max()} loop {d2.max()} epi {d3.max()}) clk {clk:.0f}MHz")
    return rt0.min(), rt1.max()
```

```python
from gen_common import *

sW, sTB, sCB = 24, 25, 26
sToff, sWoff, sM0b = 27, 28, 29
sRot, sTraw, sWraw, sTcnt, sWcnt = 55, 56, 57, 58, 59
SRD_T, SRD_W, SRD_O, SRD_X = 8, 12, 16, 20
vT0, vT1 = 1, 2
vW0, vW1 = 3, 4
vR = 6
vt = 10
ACC = 16
RB = [48, 64]
XTRA = 80
TRING = 128


def acc(F, tl):
    return V(ACC + (F * 2 + tl) * 4, 4)


def tslot(stage_slot, s2, tl):
    return V(TRING + stage_slot * 16 + s2 * 8 + tl * 4, 4)


def ids(A, opts=None):
    A(f"v_lshrrev_b32 v{vt}, 6, v0")
    A(f"v_and_b32 v0, 63, v0")
    A(f"s_and_b32 s3, s2, 7")
    A(f"v_readfirstlane_b32 s{sW}, v{vt}")
    A(f"s_lshr_b32 s30, s2, 3")
    A(f"s_lshr_b32 s{sTB}, s3, 1")
    A(f"s_lshl_b32 s{sTB}, s{sTB}, 2")
    A(f"s_and_b32 s33, s30, 3")
    A(f"s_add_u32 s{sTB}, s{sTB}, s33")
    A(f"s_and_b32 s{sCB}, s3, 1")
    A(f"s_lshl_b32 s{sCB}, s{sCB}, 3")
    A(f"s_lshr_b32 s33, s30, 2")
    A(f"s_add_u32 s{sCB}, s{sCB}, s33")
    if opts and opts.get("map") == "same":
        A(f"s_mov_b32 s{sTB}, 0"); A(f"s_mov_b32 s{sCB}, 0")
    if opts and opts.get("map") == "sametb":
        A(f"s_mov_b32 s{sTB}, 0")
    if opts and opts.get("map") == "samecb":
        A(f"s_mov_b32 s{sCB}, 0")
    if opts and opts.get("map") == "cbx":
        A(f"s_xor_b32 s{sCB}, s{sCB}, 5")
    if opts and opts.get("map") == "rowmajor":
        A(f"s_lshr_b32 s{sTB}, s2, 4"); A(f"s_and_b32 s{sCB}, s2, 15")
    if opts and opts.get("map") == "m8x4":
        A(f"s_lshr_b32 s{sTB}, s3, 2"); A(f"s_lshl_b32 s{sTB}, s{sTB}, 3"); A(f"s_and_b32 s33, s30, 7"); A(f"s_add_u32 s{sTB}, s{sTB}, s33")
        A(f"s_and_b32 s{sCB}, s3, 3"); A(f"s_lshl_b32 s{sCB}, s{sCB}, 2"); A(f"s_lshr_b32 s33, s30, 3"); A(f"s_add_u32 s{sCB}, s{sCB}, s33")


def set_rot(A, opts, nstages):
    r = opts.get("rot")
    if r is None:
        return
    if r == "cb":
        A(f"s_and_b32 s{sRot}, s{sCB}, 15")
    elif r == "tb":
        A(f"s_and_b32 s{sRot}, s{sTB}, 15")
    elif r == "cbtb":
        A(f"s_add_u32 s{sRot}, s{sCB}, s{sTB}"); A(f"s_and_b32 s{sRot}, s{sRot}, 15")
    elif r == "cb7":
        A(f"s_and_b32 s{sRot}, s{sCB}, 7"); A(f"s_mul_i32 s{sRot}, s{sRot}, {opts.get('rotk', 1)}")
    elif r == "tb3":
        A(f"s_and_b32 s{sRot}, s{sTB}, 3"); A(f"s_mul_i32 s{sRot}, s{sRot}, {opts.get('rotk', 1)}")
    elif r == "idx":
        A(f"s_lshr_b32 s{sRot}, s2, 3"); A(f"s_mul_i32 s{sRot}, s{sRot}, {opts.get('rotk', 1)}"); A(f"s_lshr_b32 s{sRot}, s{sRot}, {opts.get('rotsh', 0)}")
    elif r == "ct":
        a, b = opts.get("rota", 2), opts.get("rotb", 4)
        A(f"s_and_b32 s33, s{sCB}, 7"); A(f"s_mul_i32 s33, s33, {a}")
        A(f"s_and_b32 s34, s{sTB}, 3"); A(f"s_mul_i32 s34, s34, {b}")
        A(f"s_add_u32 s{sRot}, s33, s34")
        for _ in range((7 * a + 3 * b) // nstages):
            A(f"s_cmp_ge_u32 s{sRot}, {nstages}"); A(f"s_cselect_b32 s33, {nstages}, 0"); A(f"s_sub_u32 s{sRot}, s{sRot}, s33")
    elif r == "zero":
        A(f"s_mov_b32 s{sRot}, 0")


def tf_voffsets(A):
    A(f"s_lshl_b32 s33, s{sTB}, 2")
    A(f"s_add_u32 s33, s33, s{sW}")
    A(f"s_lshl_b32 s33, s33, 12")
    A(f"v_lshlrev_b32 v{vT0}, 4, v0")
    A(f"v_add_u32 v{vT0}, s33, v{vT0}")


def w_setup(A, perm, rowstride, rotf=False):
    A(f"v_lshrrev_b32 v{vt}, 3, v0")
    A(f"s_lshl_b32 s33, s{sW}, 4")
    A(f"v_add_u32 v{vt}, s33, v{vt}")
    A(f"s_mov_b32 s34, {rowstride}")
    A(f"v_mul_lo_u32 v{vt}, v{vt}, s34")
    A(f"s_lshl_b32 s33, s{sCB}, 7")
    A(f"v_add_u32 v{vt}, s33, v{vt}")
    A(f"v_and_b32 v{vt+1}, 7, v0")
    if perm in "AB":
        A(f"v_bfe_u32 v{vt+2}, v0, 4, 2")
        A(f"v_lshlrev_b32 v{vt+2}, 1, v{vt+2}")
        A(f"v_xor_b32 v{vt+1}, v{vt+1}, v{vt+2}")
        A(f"v_lshl_add_u32 v{vW0}, v{vt+1}, 4, v{vt}")
        A(f"v_add_u32 v{vW1}, {8 * rowstride - 1024}, v{vW0}")
    else:
        A(f"v_bfe_u32 v{vt+2}, v0, 4, 1")
        A(f"v_lshlrev_b32 v{vt+2}, 1, v{vt+2}")
        A(f"v_xor_b32 v{vt+1}, v{vt+1}, v{vt+2}")
        A(f"v_lshl_add_u32 v{vW0}, v{vt+1}, 4, v{vt}")
        A(f"v_xor_b32 v{vt+1}, 4, v{vt+1}")
        A(f"v_lshl_add_u32 v{vW1}, v{vt+1}, 4, v{vt}")
        A(f"v_add_u32 v{vW1}, {8 * rowstride - 1024}, v{vW1}")
    A(f"s_lshl_b32 s{sM0b}, s{sW}, 11")
    A(f"v_lshrrev_b32 v{vt}, 4, v0")
    A(f"v_bfe_u32 v{vt+1}, v0, 2, 2")
    if perm == "A":
        A(f"v_lshl_add_u32 v{vt+2}, v{vt}, 2, v{vt+1}")
    elif perm == "B":
        A(f"v_lshrrev_b32 v{vt+2}, 1, v{vt}")
        A(f"v_lshlrev_b32 v{vt+2}, 4, v{vt+2}")
        A(f"v_and_b32 v{vt+3}, 1, v{vt}")
        A(f"v_lshl_add_u32 v{vt+2}, v{vt+3}, 2, v{vt+2}")
        A(f"v_add_u32 v{vt+2}, v{vt+2}, v{vt+1}")
    else:
        A(f"v_lshl_add_u32 v{vt+2}, v{vt}, 3, v{vt+1}")
    A(f"v_lshlrev_b32 v{vt+2}, 7, v{vt+2}")
    A(f"v_and_b32 v{vt+3}, 3, v0")
    A(f"v_lshl_add_u32 v{vt+2}, v{vt+3}, 3, v{vt+2}")
    A(f"v_lshrrev_b32 v{vt+1}, 1, v{vt+1}")
    A(f"v_and_b32 v{vt}, 1, v{vt}")
    A(f"v_lshl_or_b32 v{vt}, v{vt}, 1, v{vt+1}")
    if not rotf:
        A(f"v_lshl_or_b32 v{vR}, v{vt}, 5, v{vt+2}")
        for F in range(1, 4):
            A(f"v_xor_b32 v{vR+F}, {F << 5}, v{vR}")
    else:
        A(f"v_lshl_or_b32 v{vt}, v{vt}, 5, v{vt+2}")
        for F in range(4):
            A(f"s_add_u32 s33, s{sW}, {F}")
            A(f"s_and_b32 s33, s33, 3")
            A(f"s_lshl_b32 s33, s33, 5")
            A(f"v_xor_b32 v{vR+F}, s33, v{vt}")


def gs_main(A, name, opts, nstages, U, perm, rowstride, t_loads, pre_extra=None, step_extra=None, n_pre_extra=0,
            after_first_loads=None, iter_end=None, pre_reads=None, extra_after=0, tlds=None):
    di = {"A": 16, "B": 8, "N": 4}[perm]
    tstride = opts["tstride"]

    def w_dma(slot):
        return [[f"s_add_u32 m0, s{sM0b}, {slot * 8192}", "s_nop 0",
                 f"buffer_load_dwordx4 v{vW0}, s[{SRD_W}:{SRD_W+3}], s{sWoff} offen lds"],
                [f"buffer_load_dwordx4 v{vW1}, s[{SRD_W}:{SRD_W+3}], s{sWoff} offen offset:1024 lds"]]

    def tr_reads(rbuf, slot, s2):
        out = []
        for F in range(4):
            for i in range(2):
                off = slot * 8192 + (32 * s2 + di * i) * 128
                out.append(f"ds_read_b64_tr_b16 {V(RB[rbuf] + F * 4 + 2 * i, 2)}, v{vR+F} offset:{off}")
        return out

    NIT = nstages // U
    assert NIT * U == nstages
    ROT = opts.get("rot") is not None
    wstride = 64 * rowstride

    def advance(raw, cnt, off, stride):
        if not ROT:
            return [f"s_add_u32 s{off}, s{off}, {stride}"]
        return [f"s_add_u32 s{raw}, s{raw}, {stride}",
                f"s_cmp_eq_u32 s{raw}, {nstages * stride}",
                f"s_cselect_b32 s{raw}, 0, s{raw}",
                f"s_add_u32 s{cnt}, s{cnt}, 1",
                f"s_cmp_lt_u32 s{cnt}, {nstages}",
                f"s_cselect_b32 s{off}, s{raw}, 0x7ff00000"]

    def seq_lds(tr, it):
        if it == -1:
            for s in range(U):
                for _ in range(6): tr.issue(("W", s))
                if s == 0:
                    for _ in range(n_pre_extra): tr.issue(("X", 0))
            for _ in range(extra_after): tr.issue(("Y", 0))
            return None
        ns = []
        for s in range(U * it, U * it + U):
            ns.append(None)
            ns.append(tr.wait_for(lambda t: t == ("W", s + 1)))
            for _ in range(6): tr.issue(("W", s + U))
        return ns

    def seq(tr, it):
        if tlds:
            return seq_lds(tr, it)
        if it == -1:
            for s in range(U):
                for _ in range(2): tr.issue(("W", s))
                if s == 0:
                    for _ in range(n_pre_extra): tr.issue(("X", 0))
                if s < U - 1:
                    for _ in range(4): tr.issue(("T", s))
            for _ in range(extra_after): tr.issue(("Y", 0))
            return None
        ns = []
        for s in range(U * it, U * it + U):
            ns.append(tr.wait_for(lambda t: t == ("T", s)))
            for _ in range(4): tr.issue(("T", s + U - 1))
            ns.append(tr.wait_for(lambda t: t == ("W", s + 1)))
            for _ in range(2): tr.issue(("W", s + U))
        return ns

    waits = [63 if w is None else min(w, 63) for w in resolve_waits(seq, NIT)]

    if ROT:
        A(f"s_mul_i32 s{sToff}, s{sRot}, {tstride}")
        A(f"s_mul_i32 s{sWoff}, s{sRot}, {wstride}")
        A(f"s_mov_b32 s{sTraw}, s{sToff}")
        A(f"s_mov_b32 s{sWraw}, s{sWoff}")
        A(f"s_mov_b32 s{sTcnt}, 0")
        A(f"s_mov_b32 s{sWcnt}, 0")
    else:
        A(f"s_mov_b32 s{sToff}, 0")
        A(f"s_mov_b32 s{sWoff}, 0")
    for s in range(U):
        for g in w_dma(s):
            for l in g: A(l)
        for l in advance(sWraw, sWcnt, sWoff, wstride): A(l)
        if tlds:
            for g in tlds["dma"](s):
                for l in g: A(l)
            for l in advance(sTraw, sTcnt, sToff, tstride): A(l)
        if s == 0 and pre_extra:
            pre_extra()
        if s < U - 1 and not tlds:
            for l in t_loads(s, f"s{sToff}"): A(l)
            for l in advance(sTraw, sTcnt, sToff, tstride): A(l)
    xstamp(A, opts, "issued")
    if after_first_loads:
        after_first_loads()
    for i in range(32):
        A(f"v_mov_b32 v{ACC + i}, 0")
    n_after = n_pre_extra + (U - 1) * 4 + (U - 1) * 2 + extra_after
    xstamp(A, opts, "prewait")
    A(f"s_waitcnt vmcnt({min(n_after, 63)})")
    xstamp(A, opts, "w0")
    A(f"s_barrier")
    xstamp(A, opts, "bar0")
    for l in tr_reads(0, 0, 0): A(l)
    if tlds:
        for l in tlds["reads"](0, 0, 0): A(l)
    if pre_reads:
        pre_reads()

    stamp(A, opts, 1)
    LOOP = f"L_{name}_loop"
    A(f"s_mov_b32 s44, {NIT}")
    A.loop_begin(LOOP)
    wi = 0
    for sl in range(U):
        for s2 in range(2):
            n = waits[wi]; wi += 1
            if tlds and s2 == 0:
                A("s_waitcnt lgkmcnt(0)")
            else:
                A(f"s_waitcnt vmcnt({n}) lgkmcnt(0)")
            if s2 == 1:
                A("s_barrier")
            main = []
            for F in range(4):
                for tl in range(2):
                    main.append(mfma16(acc(F, tl), V(RB[s2] + F * 4, 4), tlds["frag"](s2, tl) if tlds else tslot(sl, s2, tl)))
            xm, xf = step_extra(s2, sl) if step_extra else ([], [])
            main += xm
            f = {}
            n_m = len(main)
            rd_hi = max(4, n_m - opts.get("rd_margin", 3))
            reads, vm = [], []
            if tlds and s2 == 0:
                reads = tlds["reads"](1, sl, 1) + tr_reads(1, sl, 1)
            elif tlds:
                g = w_dma(sl)
                vm = [g[0], g[1] + advance(sWraw, sWcnt, sWoff, wstride)]
                d = tlds["dma"](sl)
                d[-1] = d[-1] + advance(sTraw, sTcnt, sToff, tstride)
                vm += d
                reads = tlds["reads"](0, (sl + 1) % U, 0) + tr_reads(0, (sl + 1) % U, 0)
            elif s2 == 0:
                ld = [[x] for x in t_loads((sl + U - 1) % U, f"s{sToff}")]
                ld[-1] = ld[-1] + advance(sTraw, sTcnt, sToff, tstride)
                vm = ld
                reads = tr_reads(1, sl, 1)
            else:
                g = w_dma(sl)
                vm = [g[0], g[1] + advance(sWraw, sWcnt, sWoff, wstride)]
                reads = tr_reads(0, (sl + 1) % U, 0)
            reads = xf + reads
            if vm:
                f[-1] = list(vm[0])
                spread(f, vm[1:], 0, max(len(vm) - 1, min(n_m - 2, 2 * (len(vm) - 1))))
            spread(f, reads, 0, rd_hi)
            if sl == U - 1 and s2 == 1:
                f.setdefault(n_m - 1, [])
                if iter_end:
                    f[n_m - 1].extend(iter_end())
                f[n_m - 1].append("s_sub_u32 s44, s44, 1")
                f[n_m - 1].append("s_cmp_lg_u32 s44, 0")
            for l in interleave(main, f): A(l)
    A(f"s_cbranch_scc1 {LOOP}")
    A.loop_end()
    stamp(A, opts, 2)


def tf_tloads(sl, soff):
    out = []
    for tl in range(2):
        for s2 in range(2):
            out.append(f"buffer_load_dwordx4 {tslot(sl, s2, tl)}, v{vT0}, s[{SRD_T}:{SRD_T+3}], {soff} offen offset:{tl * 2048 + s2 * 1024}")
    return out


def finish(A, name, opts, END, nv):
    if opts.get("prof"):
        A("s_waitcnt vmcnt(0)")
        stamp(A, opts, 3)
        prof_store(A, opts, 4, opts.get("kidx", 0))
    A.label(END)
    A("s_endpgm")
    return kernel_desc(name, nv, 0, 80)


def gen_k5(A, name="k5_down_kernel", opts=None):
    opts = dict(opts or {})
    U = opts.get("U", 8)
    opts["tstride"] = STAGE_BYTES
    kernel_begin(A, name)
    END = f"L_{name}_end"
    A("s_cmp_ge_u32 s2, 256")
    A(f"s_cbranch_scc1 {END}")
    stamp(A, opts, 0)
    A(f"s_load_dwordx2 s[4:5], s[0:1], {KA_WS}")
    A(f"s_load_dwordx4 s[40:43], s[0:1], {KA_WD}")
    ids(A, opts)
    set_rot(A, opts, 56)
    tf_voffsets(A)
    w_setup(A, "A", 2048)
    A("s_waitcnt lgkmcnt(0)")
    srd(A, SRD_T, 4, WS_ACT, ACT_BYTES)
    srd(A, SRD_W, 40, 0, 3584 * 2048)
    srd(A, SRD_X, 4, WS_HC, 4 * MB)
    srd(A, SRD_O, 42, 0, 2048 * 2048)
    HR = XTRA
    MH = XTRA + 16

    def pre_extra():
        A(f"s_lshl_b32 s33, s{sCB}, 18")
        for tl in range(2):
            for P in range(2):
                A(f"buffer_load_dwordx4 {V(HR + (tl * 2 + P) * 4, 4)}, v{vT0}, s[{SRD_X}:{SRD_X+3}], s33 offen offset:{tl * 2048 + P * 1024}")
        srd(A, SRD_X, 4, WS_MH, 8192)
        row_token_addr(A, vt, 2)
        for tl in range(2):
            A(f"buffer_load_dword v{MH + tl}, v{vt}, s[{SRD_X}:{SRD_X+3}], 0 offen offset:{tl * 64}")

    gs_main(A, name, opts, 56, U, "A", 2048, tf_tloads, after_first_loads=pre_extra, extra_after=6)

    A("s_waitcnt vmcnt(0) lgkmcnt(0)")
    A(f"s_lshl_b32 s36, s{sW}, 12")
    A(f"s_add_u32 s36, s36, {U * 8192}")
    vA, vO = RB[0], RB[0] + 4
    dlayout_lds_addr(A, vA, 36)
    rowtile_voffsets(A, vO, 7)
    T = vt
    for tl in range(2):
        for F in range(4):
            h = HR + (tl * 2 + F // 2) * 4 + (F % 2) * 2
            a = acc(F, tl).base
            for x in range(2):
                A(f"v_lshlrev_b32 v{T}, 16, v{h + x}")
                A(f"v_and_b32 v{T+1}, 0xffff0000, v{h + x}")
                A(f"v_add_f32 v{T}, v{T}, v{MH + tl}")
                A(f"v_add_f32 v{T+1}, v{T+1}, v{MH + tl}")
                A(f"v_add_f32 v{a + 2*x}, v{a + 2*x}, v{T}")
                A(f"v_add_f32 v{a + 2*x + 1}, v{a + 2*x + 1}, v{T+1}")
            A(f"v_cvt_pk_bf16_f32 v{a}, v{a}, v{a+1}")
            A(f"v_cvt_pk_bf16_f32 v{a+1}, v{a+2}, v{a+3}")
            A(f"ds_write_b64 v{vA + F}, {V(a, 2)} offset:{tl * 2048}")
    A(f"v_lshlrev_b32 v{T}, 4, v0")
    A(f"v_add_u32 v{T}, s36, v{T}")
    A("s_waitcnt lgkmcnt(0)")
    for m in range(4):
        A(f"ds_read_b128 {V(RB[1] + 4 * m, 4)}, v{T} offset:{m * 1024}")
    for m in range(4):
        A(f"s_waitcnt lgkmcnt({3 - m})")
        A(f"buffer_store_dwordx4 {V(RB[1] + 4 * m, 4)}, v{vO + m}, s[{SRD_O}:{SRD_O+3}], 0 offen")
    return finish(A, name, opts, END, TRING + U * 16)


def rowtile_voffsets(A, dst, colbytes_sgpr_shift, rowstride_shift=11):
    A(f"s_lshl_b32 s33, s{sTB}, 2")
    A(f"s_add_u32 s33, s33, s{sW}")
    A(f"s_lshl_b32 s33, s33, 16")
    if colbytes_sgpr_shift is not None:
        A(f"s_lshl_b32 s34, s{sCB}, {colbytes_sgpr_shift}")
        A(f"s_add_u32 s33, s33, s34")
    A(f"v_lshrrev_b32 v{vt}, 3, v0")
    A(f"v_lshlrev_b32 v{vt}, 11, v{vt}")
    A(f"v_add_u32 v{vt}, s33, v{vt}")
    A(f"v_and_b32 v{vt+1}, 7, v0")
    A(f"v_lshrrev_b32 v{vt+2}, 4, v0")
    A(f"v_xor_b32 v{vt+1}, v{vt+1}, v{vt+2}")
    A(f"v_lshl_add_u32 v{dst}, v{vt+1}, 4, v{vt}")
    A(f"v_xor_b32 v{vt+1}, 4, v{vt+1}")
    A(f"v_lshl_add_u32 v{dst+1}, v{vt+1}, 4, v{vt}")
    A(f"v_add_u32 v{dst+2}, {2 * 16384}, v{dst}")
    A(f"v_add_u32 v{dst+3}, {3 * 16384}, v{dst+1}")
    A(f"v_add_u32 v{dst+1}, 16384, v{dst+1}")


def dlayout_lds_addr(A, dst, base_sgpr):
    A(f"v_and_b32 v{vt}, 15, v0")
    A(f"v_lshrrev_b32 v{vt+1}, 1, v{vt}")
    A(f"v_lshrrev_b32 v{vt+2}, 5, v0")
    A(f"v_xor_b32 v{vt+1}, v{vt+1}, v{vt+2}")
    A(f"v_lshlrev_b32 v{vt+1}, 4, v{vt+1}")
    A(f"v_lshl_add_u32 v{vt+1}, v{vt}, 7, v{vt+1}")
    A(f"v_bfe_u32 v{vt+2}, v0, 4, 1")
    A(f"v_lshl_add_u32 v{vt+1}, v{vt+2}, 3, v{vt+1}")
    A(f"v_add_u32 v{dst}, s{base_sgpr}, v{vt+1}")
    for F in range(1, 4):
        A(f"v_xor_b32 v{dst+F}, {F << 5}, v{dst}")


def reduce_over_g(A, reg, tmp):
    A(f"v_mov_b32 v{tmp}, v{reg}")
    A("s_nop 1")
    A(f"v_permlane16_swap_b32 v{reg}, v{tmp}")
    A(f"v_add_f32 v{reg}, v{reg}, v{tmp}")
    A(f"v_mov_b32 v{tmp}, v{reg}")
    A("s_nop 1")
    A(f"v_permlane32_swap_b32 v{reg}, v{tmp}")
    A(f"v_add_f32 v{reg}, v{reg}, v{tmp}")


def row_token_addr(A, dst, shift):
    A(f"v_and_b32 v{dst}, 15, v0")
    A(f"s_lshl_b32 s33, s{sTB}, 2")
    A(f"s_add_u32 s33, s33, s{sW}")
    A(f"s_lshl_b32 s33, s33, 5")
    A(f"v_add_u32 v{dst}, s33, v{dst}")
    A(f"v_lshlrev_b32 v{dst}, {shift}, v{dst}")


def gen_k3(A, name="k3_wo_kernel", opts=None):
    opts = dict(opts or {})
    U = opts.get("U", 4)
    opts["tstride"] = STAGE_BYTES
    kernel_begin(A, name)
    END = f"L_{name}_end"
    A("s_cmp_ge_u32 s2, 256")
    A(f"s_cbranch_scc1 {END}")
    stamp(A, opts, 0)
    A(f"s_load_dwordx2 s[4:5], s[0:1], {KA_WS}")
    A(f"s_load_dwordx2 s[40:41], s[0:1], {KA_WO}")
    A(f"s_load_dwordx2 s[42:43], s[0:1], {KA_X}")
    ids(A, opts)
    set_rot(A, opts, 16)
    tf_voffsets(A)
    w_setup(A, "B", 2048)
    XR, MACC, WBF, XM, vWB, vX = XTRA, XTRA + 16, XTRA + 24, XTRA + 32, XTRA + 34, XTRA + 36
    WBL = U * 8192
    A("s_waitcnt lgkmcnt(0)")
    xstamp(A, opts, "karg")
    srd(A, SRD_T, 4, WS_O, 4 * MB)
    srd(A, SRD_W, 40, 0, 1024 * 2048)
    srd(A, SRD_X, 42, 0, 2048 * 2048)
    srd(A, SRD_O, 4, WS_WB, 4096)
    A(f"v_lshlrev_b32 v{vt}, 4, v0")
    A(f"s_lshl_b32 s33, s{sW}, 10")
    A(f"s_add_u32 m0, s33, {WBL}")
    A("s_nop 0")
    if opts.get("rot") is not None:
        A(f"s_lshl_b32 s34, s{sRot}, 8")
        A(f"v_add_u32 v{vt}, s33, v{vt}")
        A(f"v_add_u32 v{vt}, s34, v{vt}")
        A(f"v_and_b32 v{vt}, 4095, v{vt}")
        A(f"buffer_load_dwordx4 v{vt}, s[{SRD_O}:{SRD_O+3}], 0 offen lds")
    else:
        A(f"buffer_load_dwordx4 v{vt}, s[{SRD_O}:{SRD_O+3}], s33 offen lds")
    A(f"v_and_b32 v{vt}, 1, v0")
    A(f"v_lshlrev_b32 v{vt}, 6, v{vt}")
    A(f"v_lshrrev_b32 v{vt+1}, 4, v0")
    A(f"v_lshl_add_u32 v{vWB}, v{vt+1}, 4, v{vt}")
    A(f"v_add_u32 v{vWB}, {WBL}, v{vWB}")

    XL = WBL + 4096 + 256

    def late_loads():
        rowtile_voffsets(A, vX, 7)
        A(f"s_lshl_b32 s37, s{sW}, 12")
        A(f"s_add_u32 s37, s37, {XL}")
        for m in range(4):
            A(f"s_add_u32 m0, s37, {m * 1024}")
            A("s_nop 0")
            A(f"buffer_load_dwordx4 v{vX + m}, s[{SRD_X}:{SRD_X+3}], 0 offen lds")
        srd(A, SRD_X, 4, WS_XM, 8192)
        row_token_addr(A, vt, 2)
        for tl in range(2):
            A(f"buffer_load_dword v{XM + tl}, v{vt}, s[{SRD_X}:{SRD_X+3}], 0 offen offset:{tl * 64}")

    def pre_reads():
        A(f"ds_read_b128 {V(WBF, 4)}, v{vWB}")

    def step_extra(s2, sl):
        xm = [mfma16(V(MACC + tl * 4, 4), V(WBF + s2 * 4, 4), tslot(sl, s2, tl)) for tl in range(2)]
        xf = [f"ds_read_b128 {V(WBF + (1 - s2) * 4, 4)}, v{vWB} offset:{(2 * sl + s2 + 1) * 128}"]
        return xm, xf

    def iter_end():
        return [f"v_add_u32 v{vWB}, {U * 256}, v{vWB}"]

    def after_first():
        late_loads()
        for i in range(8):
            A(f"v_mov_b32 v{MACC + i}, 0")

    gs_main(A, name, opts, 16, U, "B", 2048, tf_tloads, step_extra=step_extra,
            iter_end=iter_end, pre_reads=pre_reads, after_first_loads=after_first, extra_after=6)

    A("s_waitcnt vmcnt(0) lgkmcnt(0)")
    dlayout_lds_addr(A, vX, 37)
    for tl in range(2):
        for F in range(4):
            A(f"ds_read_b64 {V(XR + (tl * 4 + F) * 2, 2)}, v{vX + F} offset:{tl * 2048}")
    srd(A, SRD_O, 4, WS_MH, 8192)
    srd(A, SRD_T, 4, WS_HC, 4 * MB)
    srd(A, SRD_X, 4, WS_VP, 2048 * 64)
    A(f"s_lshl_b32 s34, s{sCB}, 18")
    vVP, vMH = XTRA + 40, XTRA + 41
    row_token_addr(A, vVP, 6)
    A(f"v_lshrrev_b32 v{vMH}, 4, v{vVP}")
    A(f"s_lshl_b32 s35, s{sCB}, 2")
    T = vt
    A("s_waitcnt lgkmcnt(0)")
    HP, CP = RB[0], RB[1]
    for tl in range(2):
        m = XM + tl
        A(f"v_add_f32 v{m}, v{m}, v{MACC + tl * 4}")
        A(f"v_add_f32 v{m}, v{m}, v{MACC + tl * 4 + 1}")
        ss = T + 3
        A(f"v_mov_b32 v{ss}, 0")
        for F in range(4):
            a = acc(F, tl).base
            x = XR + (tl * 4 + F) * 2
            dc = CP + tl * 8 + (F // 2) * 4 + (F % 2) * 2
            for q in range(2):
                A(f"v_lshlrev_b32 v{T}, 16, v{x + q}")
                A(f"v_and_b32 v{T+1}, 0xffff0000, v{x + q}")
                A(f"v_add_f32 v{a + 2*q}, v{a + 2*q}, v{T}")
                A(f"v_add_f32 v{a + 2*q + 1}, v{a + 2*q + 1}, v{T+1}")
                A(f"v_sub_f32 v{a + 2*q}, v{a + 2*q}, v{m}")
                A(f"v_sub_f32 v{a + 2*q + 1}, v{a + 2*q + 1}, v{m}")
                A(f"v_fmac_f32 v{ss}, v{a + 2*q}, v{a + 2*q}")
                A(f"v_fmac_f32 v{ss}, v{a + 2*q + 1}, v{a + 2*q + 1}")
                A(f"v_cvt_pk_bf16_f32 v{dc + q}, v{a + 2*q}, v{a + 2*q + 1}")
        for P in range(2):
            A(f"buffer_store_dwordx4 {V(CP + tl * 8 + P * 4, 4)}, v{vT0}, s[{SRD_T}:{SRD_T+3}], s34 offen offset:{tl * 2048 + P * 1024}")
        A(f"buffer_store_dword v{m}, v{vMH}, s[{SRD_O}:{SRD_O+3}], 0 offen offset:{tl * 64}")
        reduce_over_g(A, ss, T + 4)
        A(f"buffer_store_dword v{ss}, v{vVP}, s[{SRD_X}:{SRD_X+3}], s35 offen offset:{tl * 16 * 64}")
        A("s_nop 1")
    return finish(A, name, opts, END, TRING + U * 16)


QSCALE = (32 ** -0.5) * 1.4426950408889634


def gen_k1(A, name="k1_qkv_kernel", opts=None):
    opts = dict(opts or {})
    U = opts.get("U", 4)
    opts["tstride"] = 128
    opts.setdefault("rot", "cbtb")
    kernel_begin(A, name)
    END = f"L_{name}_end"
    A("s_cmp_ge_u32 s2, 256")
    A(f"s_cbranch_scc1 {END}")
    stamp(A, opts, 0)
    A(f"s_load_dwordx2 s[4:5], s[0:1], {KA_WS}")
    A(f"s_load_dwordx4 s[40:43], s[0:1], {KA_X}")
    A(f"s_load_dwordx4 s[48:51], s[0:1], {KA_WK}")
    A(f"s_load_dwordx2 s[52:53], s[0:1], {KA_WO}")
    ids(A, opts)
    set_rot(A, opts, 16)
    KVL = U * 8192
    QOFF = [61, 62, 63, 39]
    KVF, KVACC, CS, ONES, ST, vKV = XTRA, XTRA + 8, XTRA + 16, XTRA + 36, XTRA + 40, XTRA + 44
    SUMA, SQA = TRING, TRING + 8
    TB = TRING + 16
    WROW = TRING + 32
    vXm, vXr = TRING + 40, TRING + 44
    NV1 = TRING + 48
    WBR = XTRA + 46
    XL = KVL + 32768
    A(f"s_lshl_b32 s33, s{sTB}, 2")
    A(f"s_add_u32 s33, s33, s{sW}")
    A(f"s_lshl_b32 s33, s33, 16")
    A(f"v_lshrrev_b32 v{vt}, 3, v0")
    A(f"v_lshlrev_b32 v{vt}, 11, v{vt}")
    A(f"v_add_u32 v{vt}, s33, v{vt}")
    A(f"v_and_b32 v{vt+1}, 7, v0")
    A(f"v_lshrrev_b32 v{vt+2}, 4, v0")
    A(f"v_xor_b32 v{vt+1}, v{vt+1}, v{vt+2}")
    A(f"v_lshl_add_u32 v{vXm}, v{vt+1}, 4, v{vt}")
    A(f"v_xor_b32 v{vt+1}, 4, v{vt+1}")
    A(f"v_lshl_add_u32 v{vXm+1}, v{vt+1}, 4, v{vt}")
    A(f"v_add_u32 v{vXm+2}, {2 * (16384 - 1024)}, v{vXm}")
    A(f"v_add_u32 v{vXm+3}, {3 * (16384 - 1024)}, v{vXm+1}")
    A(f"v_add_u32 v{vXm+1}, {16384 - 1024}, v{vXm+1}")
    A(f"s_lshl_b32 s60, s{sW}, 12")
    A(f"s_add_u32 s60, s60, {XL}")
    A(f"v_and_b32 v{vt}, 15, v0")
    A(f"v_lshrrev_b32 v{vt+1}, 1, v{vt}")
    A(f"v_lshrrev_b32 v{vt+2}, 4, v0")
    A(f"v_xor_b32 v{vt+1}, v{vt+1}, v{vt+2}")
    A(f"v_lshlrev_b32 v{vt+1}, 4, v{vt+1}")
    A(f"v_lshl_add_u32 v{vXr}, v{vt}, 7, v{vt+1}")
    A(f"v_add_u32 v{vXr}, s60, v{vXr}")
    A(f"v_xor_b32 v{vXr+1}, 64, v{vXr}")

    def x_dma(slot):
        out = [[f"s_add_u32 m0, s60, {slot * 16384}", "s_nop 0",
                f"buffer_load_dwordx4 v{vXm}, s[{SRD_T}:{SRD_T+3}], s{sToff} offen lds"]]
        for m in range(1, 4):
            out.append([f"buffer_load_dwordx4 v{vXm+m}, s[{SRD_T}:{SRD_T+3}], s{sToff} offen offset:{m * 1024} lds"])
        return out

    def x_reads(buf, slot, s2):
        return [f"ds_read_b128 {V(TB + buf * 8 + tl * 4, 4)}, v{vXr + s2} offset:{slot * 16384 + tl * 2048}" for tl in range(2)]

    def x_frag(s2, tl):
        return V(TB + s2 * 8 + tl * 4, 4)

    tlds = dict(dma=x_dma, reads=x_reads, frag=x_frag)
    w_setup(A, "N", 2048, rotf=True)
    A("s_waitcnt lgkmcnt(0)")
    srd(A, SRD_T, 40, 0, 2048 * 2048)
    srd(A, SRD_W, 42, 0, 1024 * 2048)
    SKIPKV = f"L_{name}_skipkv"
    A(f"s_cmp_ge_u32 s{sCB}, 4")
    A(f"s_cbranch_scc1 {SKIPKV}")
    A(f"s_cmp_lt_u32 s{sCB}, 2")
    A("s_cselect_b32 s46, s48, s50")
    A("s_cselect_b32 s47, s49, s51")
    srd(A, SRD_X, 46, 0, 1024 * 64)
    A(f"v_lshrrev_b32 v{vt}, 1, v0")
    A(f"v_and_b32 v{vt+1}, 0x13, v{vt}")
    A(f"v_bfe_u32 v{vt+2}, v{vt}, 2, 1")
    A(f"v_lshl_or_b32 v{vt+1}, v{vt+2}, 3, v{vt+1}")
    A(f"v_bfe_u32 v{vt+2}, v{vt}, 3, 1")
    A(f"v_lshl_or_b32 v{vt+1}, v{vt+2}, 2, v{vt+1}")
    A(f"v_lshlrev_b32 v{vt+1}, 6, v{vt+1}")
    A(f"v_and_b32 v{vt+2}, 1, v0")
    A(f"v_lshl_add_u32 v{vt+1}, v{vt+2}, 4, v{vt+1}")
    A(f"s_and_b32 s33, s{sCB}, 1")
    A(f"s_lshl_b32 s33, s33, 5")
    A(f"v_add_u32 v{vt+1}, s33, v{vt+1}")
    A(f"s_lshl_b32 s34, s{sW}, 13")
    A(f"s_add_u32 s34, s34, {KVL}")
    A(f"s_lshl_b32 s35, s{sW}, 3")
    A(f"s_lshl_b32 s37, s{sRot}, 1")
    A(f"s_add_u32 s35, s35, s37")
    for m in range(8):
        A(f"s_add_u32 m0, s34, {m * 1024}")
        A(f"s_add_u32 s36, s35, {m}")
        A(f"s_and_b32 s36, s36, 31")
        A(f"s_lshl_b32 s36, s36, 11")
        A(f"buffer_load_dwordx4 v{vt+1}, s[{SRD_X}:{SRD_X+3}], s36 offen lds")
    A.label(SKIPKV)
    A(f"v_lshrrev_b32 v{vt}, 4, v0")
    A(f"v_lshrrev_b32 v{vt+1}, 1, v{vt}")
    A(f"v_lshlrev_b32 v{vt+1}, 4, v{vt+1}")
    A(f"v_and_b32 v{vt}, 1, v{vt}")
    A(f"v_lshl_add_u32 v{vt+1}, v{vt}, 2, v{vt+1}")
    A(f"v_bfe_u32 v{vt}, v0, 2, 2")
    A(f"v_add_u32 v{vt+1}, v{vt+1}, v{vt}")
    A(f"v_lshlrev_b32 v{vt+1}, 5, v{vt+1}")
    A(f"v_and_b32 v{vt}, 3, v0")
    A(f"v_lshl_add_u32 v{vKV}, v{vt}, 3, v{vt+1}")
    A(f"v_add_u32 v{vKV}, {KVL}, v{vKV}")

    def pre_extra():
        srd(A, SRD_X, 52, 0, 1024 * 2048)
        A(f"s_lshl_b32 s54, s2, 2")
        A(f"s_add_u32 s54, s54, s{sW}")
        A(f"s_lshl_b32 s33, s54, 11")
        A(f"v_lshlrev_b32 v{vt}, 5, v0")
        A(f"buffer_load_dwordx4 {V(WROW, 4)}, v{vt}, s[{SRD_X}:{SRD_X+3}], s33 offen")
        A(f"buffer_load_dwordx4 {V(WROW + 4, 4)}, v{vt}, s[{SRD_X}:{SRD_X+3}], s33 offen offset:16")

    def after_first():
        for i in range(8 + 20):
            A(f"v_mov_b32 v{KVACC + i}, 0")
        for i in range(4):
            A(f"v_mov_b32 v{ONES + i}, 0x3f803f80")
        for i in range(16):
            A(f"v_mov_b32 v{SUMA + i}, 0")
        A(f"s_waitcnt vmcnt({(U - 1) * 6})")
        A(f"v_mov_b32 v{vt}, 0")
        for i in range(8):
            A(f"v_dot2c_f32_bf16 v{vt}, v{WROW + i}, v{ONES}")
        A("s_nop 2")
        for sh in (8, 4, 2, 1):
            A(f"v_add_f32_dpp v{vt}, v{vt}, v{vt} row_ror:{sh} row_mask:0xf bank_mask:0xf")
            A("s_nop 1")
        reduce_over_g(A, vt, vt + 1)
        A(f"v_mul_f32 v{vt}, {f32hex(1.0 / 1024)}, v{vt}")
        A(f"v_cvt_pk_bf16_f32 v{vt+1}, v{vt}, v{vt}")
        A(f"v_lshlrev_b32 v{vt+2}, 16, v{vt+1}")
        A(f"v_sub_f32 v{vt+2}, v{vt}, v{vt+2}")
        A(f"v_cvt_pk_bf16_f32 v{vt+2}, v{vt+2}, v{vt+2}")
        A("s_lshr_b32 s33, s54, 5"); A("s_lshl_b32 s33, s33, 7")
        A("s_bfe_u32 s34, s54, 0x10004"); A("s_lshl_b32 s34, s34, 5"); A("s_add_u32 s33, s33, s34")
        A("s_bfe_u32 s34, s54, 0x10002"); A("s_lshl_b32 s34, s34, 4"); A("s_add_u32 s33, s33, s34")
        A("s_bfe_u32 s34, s54, 0x10003"); A("s_lshl_b32 s34, s34, 3"); A("s_add_u32 s33, s33, s34")
        A("s_and_b32 s34, s54, 3"); A("s_lshl_b32 s34, s34, 1"); A("s_add_u32 s33, s33, s34")
        srd(A, SRD_X, 4, WS_WB, 4096)
        A(f"v_mov_b32 v{vt+3}, 0")
        A(f"buffer_store_short v{vt+1}, v{vt+3}, s[{SRD_X}:{SRD_X+3}], s33 offen")
        A(f"buffer_store_short v{vt+2}, v{vt+3}, s[{SRD_X}:{SRD_X+3}], s33 offen offset:64")

    def kv_reads(buf, step_ahead_imm):
        return [f"ds_read_b64_tr_b16 {V(KVF + buf * 4 + 2 * i, 2)}, v{vKV} offset:{step_ahead_imm + i * 256}" for i in range(2)]

    def pre_reads():
        for l in kv_reads(0, 0): A(l)

    def step_extra(s2, sl):
        xm = []
        for tl in range(2):
            xm.append(mfma16(V(KVACC + tl * 4, 4), V(KVF + s2 * 4, 4), x_frag(s2, tl)))
        xm.append(mfma16(V(CS, 4), V(RB[s2], 4), V(ONES, 4)))
        xm.append(mfma16(V(CS + 16, 4), V(KVF + s2 * 4, 4), V(ONES, 4)))
        for tl in range(2):
            xm.append(mfma16(V(SUMA + tl * 4, 4), V(ONES, 4), x_frag(s2, tl)))
            xm.append(mfma16(V(SQA + tl * 4, 4), x_frag(s2, tl), x_frag(s2, tl)))
        xf = kv_reads(1 - s2, (2 * sl + s2 + 1) * 1024)
        if opts.get("x_nokvread"): xf = []
        if opts.get("x_noextra"): xm = []
        if opts.get("x_nostat"): xm = xm[:7]
        if opts.get("x_nocs"): xm = xm[:2] + xm[7:]
        return xm, xf

    def iter_end():
        return [f"v_add_u32 v{vKV}, {U * 2048}, v{vKV}"]

    gs_main(A, name, opts, 16, U, "N", 2048, None, pre_extra=pre_extra, n_pre_extra=2, step_extra=step_extra,
            iter_end=iter_end, pre_reads=pre_reads, after_first_loads=after_first, extra_after=2, tlds=tlds)

    A("s_waitcnt vmcnt(0) lgkmcnt(0)")
    T = vt
    CSL = XL + U * 16384
    A(f"v_lshrrev_b32 v{T}, 4, v0")
    A(f"v_lshlrev_b32 v{T}, 4, v{T}")
    A(f"s_lshl_b32 s33, s{sW}, 6")
    A(f"s_add_u32 s33, s33, {CSL}")
    A(f"v_add_u32 v{T+1}, s33, v{T}")
    A(f"ds_write_b128 v{T+1}, {V(CS, 4)}")
    A("s_waitcnt lgkmcnt(0)")
    A("s_barrier")
    for F in range(4):
        A(f"s_add_u32 s33, s{sW}, {F}")
        A(f"s_and_b32 s33, s33, 3")
        A(f"s_lshl_b32 s33, s33, 6")
        A(f"s_add_u32 s33, s33, {CSL}")
        A(f"v_add_u32 v{T+1}, s33, v{T}")
        A(f"ds_read_b128 {V(CS + 4 * F, 4)}, v{T+1}")
    MR = RB[0]
    A(f"v_and_b32 v{T}, 3, v0")
    A(f"v_bfe_u32 v{T+1}, v0, 2, 2")
    A(f"v_lshrrev_b32 v{T+2}, 4, v0")
    A(f"v_cmp_eq_u32 s[34:35], v{T+1}, v{T+2}")
    A(f"v_cmp_eq_u32 s[36:37], 1, v{T}")
    A(f"v_cmp_eq_u32 s[38:39], 2, v{T}")
    A(f"v_cmp_eq_u32 s[46:47], 3, v{T}")
    for tl in range(2):
        q = SQA + tl * 4
        A(f"v_cndmask_b32 v{ST + 2 + tl}, v{q}, v{q+1}, s[36:37]")
        A(f"v_cndmask_b32 v{ST + 2 + tl}, v{ST + 2 + tl}, v{q+2}, s[38:39]")
        A(f"v_cndmask_b32 v{ST + 2 + tl}, v{ST + 2 + tl}, v{q+3}, s[46:47]")
        A(f"v_cndmask_b32 v{ST + 2 + tl}, 0, v{ST + 2 + tl}, s[34:35]")
        A(f"v_mov_b32 v{ST + tl}, v{SUMA + tl * 4}")
    for tl in range(2):
        reduce_over_g(A, ST + 2 + tl, T)
        A(f"v_mul_f32 v{MR + tl}, {f32hex(1.0 / 1024)}, v{ST + tl}")
        A(f"v_mul_f32 v{T}, {f32hex(1.0 / 1024)}, v{ST + 2 + tl}")
        A(f"v_fma_f32 v{T}, -v{MR + tl}, v{MR + tl}, v{T}")
        A(f"v_add_f32 v{T}, {f32hex(EPS)}, v{T}")
        A(f"v_rsq_f32 v{MR + 2 + tl}, v{T}")
    srd(A, SRD_X, 4, WS_XM, 8192)
    row_token_addr(A, T, 2)
    for tl in range(2):
        A(f"buffer_store_dword v{MR + tl}, v{T}, s[{SRD_X}:{SRD_X+3}], 0 offen offset:{tl * 64}")
    srd(A, SRD_O, 4, WS_Q, 4 * MB)
    vQ = MR + 4
    A(f"v_lshrrev_b32 v{T}, 5, v0")
    A(f"v_lshlrev_b32 v{vQ}, 9, v{T}")
    A(f"v_bfe_u32 v{T}, v0, 4, 1")
    A(f"v_lshl_add_u32 v{vQ}, v{T}, 3, v{vQ}")
    A(f"v_and_b32 v{T}, 15, v0")
    A(f"v_lshl_add_u32 v{vQ}, v{T}, 4, v{vQ}")
    A(f"s_lshl_b32 s33, s{sTB}, 2")
    A(f"s_add_u32 s33, s33, s{sW}")
    A(f"s_lshl_b32 s34, s{sCB}, 7")
    A(f"s_add_u32 s34, s34, s33")
    A(f"s_lshl_b32 s34, s34, 11")
    for F in range(4):
        A(f"s_add_u32 s35, s{sW}, {F}")
        A(f"s_and_b32 s35, s35, 3")
        A(f"s_lshr_b32 s36, s35, 1")
        A(f"s_lshl_b32 s36, s36, 17")
        A(f"s_and_b32 s35, s35, 1")
        A(f"s_lshl_b32 s35, s35, 10")
        A(f"s_add_u32 s35, s35, s36")
        A(f"s_add_u32 s{QOFF[F]}, s34, s35")
    SC = MR + 6
    for tl in range(2):
        A(f"v_mul_f32 v{SC + tl}, {f32hex(QSCALE)}, v{MR + 2 + tl}")
    QN = MR + 10
    A("s_waitcnt lgkmcnt(0)")
    for tl in range(2):
        for F in range(4):
            a = acc(F, tl).base
            n = QN + tl * 4 + F
            for r in range(4):
                A(f"v_fma_f32 v{a + r}, -v{MR + tl}, v{CS + F * 4 + r}, v{a + r}")
                A(f"v_mul_f32 v{a + r}, v{SC + tl}, v{a + r}")
            A(f"v_mul_f32 v{n}, v{a}, v{a}")
            for r in range(1, 4):
                A(f"v_fmac_f32 v{n}, v{a + r}, v{a + r}")
            A(f"v_cvt_pk_bf16_f32 v{a}, v{a}, v{a+1}")
            A(f"v_cvt_pk_bf16_f32 v{a+1}, v{a+2}, v{a+3}")
            A(f"buffer_store_dwordx2 {V(a, 2)}, v{vQ}, s[{SRD_O}:{SRD_O+3}], s{QOFF[F]} offen offset:{tl * 256}")
    A(f"s_and_b32 s35, s{sW}, 1")
    A(f"s_cmp_eq_u32 s35, 1")
    A(f"s_cselect_b64 s[36:37], -1, 0")
    for tl in range(2):
        n = QN + tl * 4
        A(f"v_cndmask_b32 v{T}, v{n+1}, v{n+3}, s[36:37]")
        A(f"v_cndmask_b32 v{T+1}, v{n+3}, v{n+1}, s[36:37]")
        A(f"v_add_f32 v{n}, v{n}, v{T}")
        A(f"v_add_f32 v{n+1}, v{n+2}, v{T+1}")
    for tl in range(2):
        for x in range(2):
            reduce_over_g(A, QN + tl * 4 + x, T)
    A(f"v_max_f32 v{QN}, v{QN}, v{QN+1}")
    A(f"v_max3_f32 v{QN}, v{QN}, v{QN+4}, v{QN+5}")
    for sh in (8, 4, 2, 1):
        A("s_nop 1")
        A(f"v_max_f32_dpp v{QN}, v{QN}, v{QN} row_ror:{sh} row_mask:0xf bank_mask:0xf")
    srd(A, SRD_X, 4, WS_QN, 4096)
    A(f"s_lshl_b32 s35, s{sTB}, 4")
    A(f"s_add_u32 s35, s35, s{sCB}")
    A(f"s_lshl_b32 s35, s35, 2")
    A(f"s_add_u32 s35, s35, s{sW}")
    A(f"s_lshl_b32 s35, s35, 2")
    A(f"v_mov_b32 v{T}, 0")
    A(f"buffer_store_dword v{QN}, v{T}, s[{SRD_X}:{SRD_X+3}], s35 offen")
    DONE = f"L_{name}_done"
    ISV = f"L_{name}_isv"
    NRM = f"L_{name}_nrm"
    A(f"s_cmp_ge_u32 s{sCB}, 4")
    A(f"s_cbranch_scc1 {DONE}")
    srd(A, SRD_O, 4, WS_KV, 256 * 1024)
    NS = MR + 8
    for tl in range(2):
        a = KVACC + tl * 4
        A(f"v_mov_b32 v{NS + tl}, 0")
        for r in range(4):
            A(f"v_fma_f32 v{a + r}, -v{MR + tl}, v{CS + 16 + r}, v{a + r}")
            A(f"v_mul_f32 v{a + r}, v{MR + 2 + tl}, v{a + r}")
            A(f"v_fmac_f32 v{NS + tl}, v{a + r}, v{a + r}")
        A(f"v_cvt_pk_bf16_f32 v{a}, v{a}, v{a+1}")
        A(f"v_cvt_pk_bf16_f32 v{a+1}, v{a+2}, v{a+3}")
    A(f"s_lshl_b32 s33, s33, 12")
    A(f"s_cmp_ge_u32 s{sCB}, 2")
    A(f"s_cbranch_scc1 {ISV}")
    A(f"s_lshl_b32 s34, s{sCB}, 10")
    A(f"s_add_u32 s33, s33, s34")
    for tl in range(2):
        A(f"buffer_store_dwordx2 {V(KVACC + tl * 4, 2)}, v{vQ}, s[{SRD_O}:{SRD_O+3}], s33 offen offset:{tl * 256}")
    A(f"s_branch {NRM}")
    A.label(ISV)
    A(f"s_and_b32 s34, s{sCB}, 1")
    A(f"s_lshl_b32 s34, s34, 8")
    A(f"s_add_u32 s33, s33, s34")
    A(f"s_add_u32 s33, s33, 2048")
    A(f"v_bfe_u32 v{T}, v0, 2, 1")
    A(f"v_lshlrev_b32 v{T+1}, 9, v{T}")
    A(f"v_lshrrev_b32 v{T}, 4, v0")
    A(f"v_lshl_add_u32 v{T+1}, v{T}, 6, v{T+1}")
    A(f"v_bfe_u32 v{T}, v0, 3, 1")
    A(f"v_lshl_add_u32 v{T+1}, v{T}, 3, v{T+1}")
    A(f"v_and_b32 v{T}, 3, v0")
    A(f"v_lshl_add_u32 v{T+1}, v{T}, 1, v{T+1}")
    for tl in range(2):
        a = KVACC + tl * 4
        for r in range(4):
            op = "buffer_store_short" if r % 2 == 0 else "buffer_store_short_d16_hi"
            A(f"{op} v{a + r // 2}, v{T+1}, s[{SRD_O}:{SRD_O+3}], s33 offen offset:{tl * 1024 + r * 16}")
    A.label(NRM)
    for tl in range(2):
        reduce_over_g(A, NS + tl, T + 2)
    A(f"v_max_f32 v{NS}, v{NS}, v{NS+1}")
    A("s_nop 1")
    for sh in (8, 4, 2, 1):
        A(f"v_max_f32_dpp v{NS}, v{NS}, v{NS} row_ror:{sh} row_mask:0xf bank_mask:0xf")
        A("s_nop 1")
    srd(A, SRD_X, 4, WS_NRM, 1024)
    A(f"s_lshl_b32 s33, s{sCB}, 6")
    A(f"s_lshl_b32 s34, s{sTB}, 2")
    A(f"s_add_u32 s33, s33, s34")
    A(f"s_add_u32 s33, s33, s{sW}")
    A(f"s_lshl_b32 s33, s33, 2")
    A(f"v_mov_b32 v{T}, 0")
    A(f"buffer_store_dword v{NS}, v{T}, s[{SRD_X}:{SRD_X+3}], s33 offen")
    A.label(DONE)
    return finish(A, name, opts, END, NV1)
```

```python
from gen_common import *

T_BOUND = 80.0
V_BOUND2 = 2.0 ** 60


def wave_max(A, reg, tmp):
    for sh in (8, 4, 2, 1):
        A("s_nop 1")
        A(f"v_max_f32_dpp v{reg}, v{reg}, v{reg} row_ror:{sh} row_mask:0xf bank_mask:0xf")
    for sw in ("16", "32"):
        A(f"v_mov_b32 v{tmp}, v{reg}")
        A("s_nop 1")
        A(f"v_permlane{sw}_swap_b32 v{reg}, v{tmp}")
        A(f"v_max_f32 v{reg}, v{reg}, v{tmp}")


def n_prefetch(opts):
    return 0 if opts.get("no_pf") else 4


def prefetch_setup(A, opts, name, sW, vt):
    if opts.get("no_pf"):
        return
    A(f"s_lshl_b32 s33, s2, 3")
    A(f"s_add_u32 s33, s33, s{sW}")
    A(f"s_mul_i32 s34, s33, {28 * 128}")
    A(f"v_lshlrev_b32 v{vt}, 7, v0")
    A(f"v_add_u32 v155, s34, v{vt}")
    A(f"s_lshl_b32 s34, s33, 10")
    A(f"v_add_u32 v{vt+2}, s34, v{vt}")
    A("s_mov_b64 exec, 0xff")
    A(f"global_load_dword v154, v{vt+2}, s[80:81]")
    A("s_mov_b64 exec, -1")
    A("s_mov_b32 s92, 1792")


def prefetch_step(opts, name):
    if opts.get("no_pf"):
        return []
    return [["s_mov_b64 exec, 0x3fff", "global_load_dword v154, v155, s[84:85]", "s_mov_b64 exec, -1"],
            ["v_add_u32 v155, s92, v155", "s_sub_u32 s92, 0, s92",
             "s_cmp_gt_i32 s92, 0",
             "s_cselect_b32 s84, s86, s84", "s_cselect_b32 s85, s87, s85",
             "s_cselect_b32 s86, s88, s86", "s_cselect_b32 s87, s89, s87"]]


def gen_k2(A, name="k2_attn_kernel", opts=None):
    opts = opts or {}
    kernel_begin(A, name)
    END = f"L_{name}_end"
    sW, sTB, sHG, sH = 24, 25, 26, 27
    sCoff, sM0, sHalf = 28, 29, 30
    CH = 32768
    RMASK = 4 * CH - 1
    SRD_KV, SRD_Q, SRD_O, SRD_N = 8, 12, 16, 20
    vL, vLn, vD, vt = 1, 2, 3, 4
    Q = [12, 20]
    Sx = [28, 44]
    P = [60, 68]
    O = [76, 92]
    L = [108, 112]
    KB = [116, 124]
    VB = [132, 140]
    SEL = 148
    MX = [152, 153]
    NV = 160
    NRM_LDS = 4 * CH

    A("s_cmp_ge_u32 s2, 256")
    A(f"s_cbranch_scc1 {END}")
    stamp(A, opts, 0)
    A(f"s_load_dwordx2 s[4:5], s[0:1], {KA_WS}")
    if not opts.get("no_pf"):
        A(f"s_load_dwordx2 s[80:81], s[0:1], {KA_WO}")
        A(f"s_load_dwordx4 s[84:87], s[0:1], {KA_WG}")
        A(f"s_load_dwordx2 s[88:89], s[0:1], {KA_WD}")
    A(f"v_lshrrev_b32 v{vt}, 6, v0")
    A("v_and_b32 v0, 63, v0")
    A(f"s_lshr_b32 s{sTB}, s2, 3")
    A(f"v_readfirstlane_b32 s{sW}, v{vt}")
    A(f"s_and_b32 s{sHG}, s2, 7")
    A(f"v_lshlrev_b32 v{vL}, 4, v0")
    A(f"s_and_b32 s33, s{sW}, 3")
    A(f"s_lshr_b32 s{sHalf}, s{sW}, 2")
    A(f"s_lshl_b32 s{sH}, s{sHG}, 2")
    A(f"s_add_u32 s{sH}, s{sH}, s33")
    A(f"s_lshl_b32 s33, s33, 12")
    A(f"s_lshl_b32 s34, s{sHalf}, 17")
    A(f"s_add_u32 s34, s34, s33")
    A(f"v_add_u32 v{vD}, s34, v{vL}")
    A(f"s_lshl_b32 s{sM0}, s{sW}, 12")
    A("s_waitcnt lgkmcnt(0)")
    A(f"s_lshr_b32 s33, s{sTB}, 1")
    A(f"s_lshl_b32 s33, s33, 4")
    A(f"s_lshl_b32 s34, s{sHG}, 1")
    A(f"s_add_u32 s33, s33, s34")
    A(f"s_lshl_b32 s33, s33, 2")
    A(f"s_and_b32 s34, s{sTB}, 1")
    A(f"s_lshl_b32 s34, s34, 1")
    A(f"s_add_u32 s33, s33, s34")
    A(f"s_lshl_b32 s33, s33, 2")
    A(f"s_add_u32 s36, s4, {WS_QN}")
    A(f"s_addc_u32 s37, s5, 0")
    A(f"s_add_u32 s36, s36, s33")
    A(f"s_addc_u32 s37, s37, 0")
    A(f"s_load_dwordx2 s[94:95], s[36:37], 0")
    A(f"s_load_dwordx2 s[96:97], s[36:37], 16")
    srd(A, SRD_KV, 4, WS_KV, 256 * 1024)
    srd(A, SRD_Q, 4, WS_Q, 4 * MB)
    srd(A, SRD_N, 4, WS_NRM, 1024)
    srd(A, SRD_O, 4, WS_O, 4 * MB)

    def kv_dma(slot):
        out = [[f"s_add_u32 m0, s{sM0}, {slot * CH if isinstance(slot, int) else slot}", "s_nop 0",
                f"buffer_load_dwordx4 v{vD}, s[{SRD_KV}:{SRD_KV+3}], s{sCoff} offen lds"]]
        for i in range(1, 4):
            out.append([f"buffer_load_dwordx4 v{vD}, s[{SRD_KV}:{SRD_KV+3}], s{sCoff} offen offset:{i * 1024} lds"])
        out[-1].append(f"s_add_u32 s{sCoff}, s{sCoff}, 16384")
        return out

    A(f"s_mov_b32 s{sCoff}, 0")
    for g in kv_dma(0):
        for l in g: A(l)
    A(f"s_lshl_b32 s33, s{sH}, 6")
    A(f"s_lshl_b32 s34, s{sTB}, 1")
    A(f"s_add_u32 s33, s33, s34")
    A(f"s_lshl_b32 s33, s33, 11")
    for X in range(2):
        for m in range(2):
            A(f"buffer_load_dwordx4 {V(Q[X] + 4 * m, 4)}, v{vL}, s[{SRD_Q}:{SRD_Q+3}], s33 offen offset:{X * 2048 + m * 1024}")
    A(f"buffer_load_dwordx4 {V(vt + 4, 4)}, v{vL}, s[{SRD_N}:{SRD_N+3}], 0 offen")
    A(f"s_lshl_b32 s33, s{sHalf}, 14")
    A(f"v_add_u32 v{vL}, s33, v{vL}")
    A(f"v_lshrrev_b32 v{vt}, 4, v0")
    A(f"v_lshrrev_b32 v{vt+1}, 2, v0")
    A(f"v_xor_b32 v{vt}, v{vt}, v{vt+1}")
    A(f"v_and_b32 v{vt}, 1, v{vt}")
    A(f"v_mov_b32 v{vt+1}, 0x3f803f80")
    A(f"v_cmp_eq_u32 vcc, 0, v{vt}")
    A("s_nop 1")
    A(f"v_cndmask_b32 v{SEL}, 0, v{vt+1}, vcc")
    for i in range(1, 4):
        A(f"v_mov_b32 v{SEL + i}, v{SEL}")
    for X in range(2):
        for i in range(16): A(f"v_mov_b32 v{O[X] + i}, 0")
        for i in range(4): A(f"v_mov_b32 v{L[X] + i}, 0")
    for i in range(8):
        A(f"v_mov_b32 v{P[1] + i}, 0")
        A(f"v_mov_b32 v{VB[1] + i}, 0")
    n = vt + 4
    A("s_waitcnt vmcnt(0)")
    A(f"v_max_f32 v{n}, v{n}, v{n+1}")
    A(f"v_max3_f32 v{n}, v{n}, v{n+2}, v{n+3}")
    for sh in (8, 4, 2, 1):
        A("s_nop 1")
        A(f"v_max_f32_dpp v{n}, v{n}, v{n} row_ror:{sh} row_mask:0xf bank_mask:0xf")
    A("s_barrier")
    A(f"v_readlane_b32 s34, v{n}, 0")
    A(f"v_readlane_b32 s35, v{n}, 16")
    A(f"v_readlane_b32 s36, v{n}, 32")
    A(f"v_readlane_b32 s37, v{n}, 48")
    A(f"v_add_u32 v{vLn}, {CH}, v{vL}")
    for m in range(2):
        A(f"ds_read_b128 {V(KB[0] + 4 * m, 4)}, v{vL} offset:{m * 1024}")
    for c in (1, 2):
        for g in kv_dma(c):
            for l in g: A(l)
    A("s_waitcnt lgkmcnt(0)")
    A("s_max_u32 s94, s94, s95")
    A("s_max_u32 s96, s96, s97")
    A("s_max_u32 s94, s94, s96")
    A(f"v_mov_b32 v{vt}, s34")
    A(f"v_add_f32 v{vt}, s35, v{vt}")
    A(f"v_mov_b32 v{vt+2}, s36")
    A(f"v_max_f32 v{vt+2}, s37, v{vt+2}")
    A(f"v_mul_f32 v{vt}, s94, v{vt}")
    A(f"v_mov_b32 v{vt+1}, {f32hex(T_BOUND * T_BOUND / 1.05)}")
    A(f"v_cmp_le_f32 vcc, v{vt}, v{vt+1}")
    A(f"v_mov_b32 v{vt+1}, {f32hex(V_BOUND2)}")
    A(f"v_cmp_le_f32 s[36:37], v{vt+2}, v{vt+1}")
    A("s_nop 1")
    A("s_and_b64 vcc, vcc, s[36:37]")
    SLOW = f"L_{name}_slow"
    FIN = f"L_{name}_fin"
    if opts.get("force_slow"):
        A("s_mov_b64 vcc, 0")
    A("s_nop 4")
    A(f"s_cbranch_vccz {SLOW}")

    def k_reads(buf, base, off):
        return [f"ds_read_b128 {V(KB[buf] + 4 * m, 4)}, v{base} offset:{off + m * 1024}" for m in range(2)]

    def v_reads(buf, base, off):
        return [f"ds_read_b128 {V(VB[buf] + 4 * m, 4)}, v{base} offset:{off + 2048 + m * 1024}" for m in range(2)]

    def s_mfma(X, kb):
        return [mfma32(V(Sx[X], 16), V(KB[kb], 4), V(Q[X], 4), "0"),
                mfma32(V(Sx[X], 16), V(KB[kb] + 4, 4), V(Q[X] + 4, 4))]

    def pv_mfma(X, vb):
        return [mfma32(V(O[X], 16), V(VB[vb], 4), V(P[X], 4)),
                mfma16(V(L[X], 4), V(SEL, 4), V(P[X], 4)),
                mfma32(V(O[X], 16), V(VB[vb] + 4, 4), V(P[X] + 4, 4)),
                mfma16(V(L[X], 4), V(SEL, 4), V(P[X] + 4, 4))]

    def softmax_valu(X):
        out = []
        s, p = Sx[X], P[X]
        lag = opts.get("lag", 1)
        if opts.get("no_valu"): return ["s_nop 0"] * 24
        if opts.get("exp_const"):
            for j in range(8):
                out.append(f"v_exp_f32 v{s + 2*j}, v{SEL}")
                out.append(f"v_exp_f32 v{s + 2*j + 1}, v{SEL}")
                if j >= lag:
                    out.append(f"v_cvt_pk_bf16_f32 v{p + j - lag}, v{SEL}, v{SEL}")
            for jj in range(8 - lag, 8):
                out.append(f"v_cvt_pk_bf16_f32 v{p + jj}, v{SEL}, v{SEL}")
            return out
        for j in range(8):
            out.append(f"v_exp_f32 v{s + 2*j}, v{s + 2*j}")
            out.append(f"v_exp_f32 v{s + 2*j + 1}, v{s + 2*j + 1}")
            if j >= lag:
                jj = j - lag
                out.append(f"v_cvt_pk_bf16_f32 v{p + jj}, v{s + 2*jj}, v{s + 2*jj + 1}")
        for jj in range(8 - lag, 8):
            out.append(f"v_cvt_pk_bf16_f32 v{p + jj}, v{s + 2*jj}, v{s + 2*jj + 1}")
        return out

    def phase(valu, mf, lds, extra=None):
        valu = list(valu)
        out = []
        n = len(valu)
        pos = opts.get("mfpos", [0, 4, 9, 13, 17, 21])
        items = {}
        for k, m in enumerate(mf):
            items.setdefault(pos[k], []).append(m)
        for k, l in enumerate(lds):
            items.setdefault(1 + 2 * k, []).append(l)
        for k, e in enumerate(extra or []):
            items.setdefault(10 + 2 * k, []).extend(e if isinstance(e, list) else [e])
        for i, v in enumerate(valu):
            out += items.get(i, [])
            if v == "NOPSLOT":
                if not items.get(i): out.append("s_nop 0")
                continue
            out.append(v)
        return out

    for l in s_mfma(0, 0): A(l)
    prefetch_setup(A, opts, name, sW, vt)
    A("s_nop 7")
    A("s_nop 3")
    stamp(A, opts, 1)
    LOOP = f"L_{name}_loop"
    A("s_mov_b32 s44, 8")
    A(f"s_mov_b32 s45, {3 * CH}")
    if "align" in opts:
        A.raw(".p2align 6")
        for _ in range(opts["align"]): A("s_nop 0")
    A.loop_begin(LOOP)
    for t in range(4):
        kb, vb = t % 2, t % 2
        extra = []
        if t == 3:
            A("s_waitcnt vmcnt(4)")
            A("s_barrier")
            g = kv_dma("s45")
            g[-1] = g[-1] + [f"s_add_u32 s45, s45, {CH}", f"s_and_b32 s45, s45, {RMASK}"]
            extra = g + prefetch_step(opts, name)
            lds = k_reads(1 - kb, vLn, 0) + v_reads(vb, vL, t * 4096)
        else:
            lds = k_reads(1 - kb, vL, (t + 1) * 4096) + v_reads(vb, vL, t * 4096)
        mf = s_mfma(1, kb) + pv_mfma(1, 1 - vb)
        if opts.get("no_lds"): lds = []
        if opts.get("no_L"): mf = [m for m in mf if "16x16" not in m]
        if opts.get("no_mfma"): mf = []
        for l in phase(softmax_valu(0), mf, lds, extra): A(l)
        A("s_waitcnt lgkmcnt(0)")
        extra = []
        if t == 3:
            extra = [[f"v_mov_b32 v{vL}, v{vLn}"], [f"v_add_u32 v{vLn}, {CH}, v{vLn}"], [f"v_and_b32 v{vLn}, {RMASK}, v{vLn}"],
                     ["s_sub_u32 s44, s44, 1", "s_cmp_lg_u32 s44, 0"]]
        mf = s_mfma(0, 1 - kb) + pv_mfma(0, vb)
        if opts.get("no_L"): mf = [m for m in mf if "16x16" not in m]
        if opts.get("no_mfma"): mf = []
        for l in phase(softmax_valu(1), mf, [], extra): A(l)
    A(f"s_cbranch_scc1 {LOOP}")
    A.loop_end()
    A("s_nop 1")
    for l in pv_mfma(1, 1): A(l)
    A(f"s_branch {FIN}")

    A.label(SLOW)
    for X in range(2):
        A(f"v_mov_b32 v{MX[X]}, 0xff7fffff")
    A("s_mov_b32 s44, 8")
    A(f"s_mov_b32 s45, {3 * CH}")
    OUTER, INNER = f"L_{name}_so", f"L_{name}_si"
    A.loop_begin(OUTER)
    A(f"v_mov_b32 v{vt+6}, v{vL}")
    A("s_mov_b32 s46, 4")
    A.loop_begin(INNER)
    for l in k_reads(0, vt + 6, 0) + v_reads(0, vt + 6, 0): A(l)
    A("s_waitcnt lgkmcnt(0)")
    for X in range(2):
        s, p = Sx[X], P[X]
        for l in s_mfma(X, 0): A(l)
        A("s_nop 7"); A("s_nop 4")
        A(f"v_max_f32 v{vt}, v{s}, v{s+1}")
        for i in range(2, 16, 2):
            A(f"v_max3_f32 v{vt}, v{vt}, v{s+i}, v{s+i+1}")
        A(f"v_mov_b32 v{vt+1}, v{vt}")
        A("s_nop 1")
        A(f"v_permlane32_swap_b32 v{vt}, v{vt+1}")
        A(f"v_max3_f32 v{vt}, v{vt}, v{vt+1}, v{MX[X]}")
        A(f"v_sub_f32 v{vt+1}, v{MX[X]}, v{vt}")
        A(f"v_exp_f32 v{vt+1}, v{vt+1}")
        A(f"v_mov_b32 v{MX[X]}, v{vt}")
        for i in range(16):
            A(f"v_sub_f32 v{s+i}, v{s+i}, v{vt}")
        for i in range(16):
            A(f"v_exp_f32 v{s+i}, v{s+i}")
        for i in range(16):
            A(f"v_mul_f32 v{O[X]+i}, v{O[X]+i}, v{vt+1}")
        for i in range(4):
            A(f"v_mul_f32 v{L[X]+i}, v{L[X]+i}, v{vt+1}")
        for j in range(8):
            A(f"v_cvt_pk_bf16_f32 v{p+j}, v{s+2*j}, v{s+2*j+1}")
        A("s_nop 1")
        for l in pv_mfma(X, 0): A(l)
        A("s_nop 7"); A("s_nop 4")
    A(f"v_add_u32 v{vt+6}, 4096, v{vt+6}")
    A("s_sub_u32 s46, s46, 1")
    A("s_cmp_lg_u32 s46, 0")
    A(f"s_cbranch_scc1 {INNER}")
    A.loop_end()
    A("s_waitcnt vmcnt(4)")
    A("s_barrier")
    for g in kv_dma("s45"):
        for l in g: A(l)
    A(f"s_add_u32 s45, s45, {CH}")
    A(f"s_and_b32 s45, s45, {RMASK}")
    A(f"v_add_u32 v{vL}, {CH}, v{vL}")
    A(f"v_and_b32 v{vL}, {RMASK}, v{vL}")
    A("s_sub_u32 s44, s44, 1")
    A("s_cmp_lg_u32 s44, 0")
    A(f"s_cbranch_scc1 {OUTER}")
    A.loop_end()
    A(f"v_lshlrev_b32 v{vt}, 3, v0")
    A(f"s_lshl_b32 s33, s{sW}, 9")
    A(f"s_add_u32 s33, s33, {NRM_LDS + 64}")
    A(f"v_add_u32 v{vt+1}, s33, v{vt}")
    A(f"ds_write_b64 v{vt+1}, {V(MX[0], 2)}")
    A(f"s_xor_b32 s34, s{sW}, 4")
    A(f"s_lshl_b32 s34, s34, 9")
    A(f"s_add_u32 s34, s34, {NRM_LDS + 64}")
    A(f"v_add_u32 v{vt+1}, s34, v{vt}")
    A("s_waitcnt lgkmcnt(0)")
    A("s_barrier")
    A(f"ds_read_b64 {V(vt + 2, 2)}, v{vt+1}")
    A("s_waitcnt lgkmcnt(0)")
    for X in range(2):
        A(f"v_max_f32 v{vt+2+X}, v{vt+2+X}, v{MX[X]}")
        A(f"v_sub_f32 v{vt+2+X}, v{MX[X]}, v{vt+2+X}")
        A(f"v_exp_f32 v{vt+2+X}, v{vt+2+X}")
        A("s_nop 0")
        for i in range(16):
            A(f"v_mul_f32 v{O[X]+i}, v{O[X]+i}, v{vt+2+X}")
        A(f"v_mul_f32 v{L[X]}, v{L[X]}, v{vt+2+X}")

    A.label(FIN)
    stamp(A, opts, 2)
    A("s_waitcnt vmcnt(0)")
    A("s_barrier")
    A("s_nop 4")
    A(f"v_lshlrev_b32 v{vt}, 4, v0")
    A(f"s_lshl_b32 s33, s{sW}, 13")
    A(f"v_add_u32 v{vt+1}, s33, v{vt}")
    A(f"s_xor_b32 s34, s{sW}, 4")
    A(f"s_lshl_b32 s34, s34, 13")
    A(f"v_add_u32 v{vt+2}, s34, v{vt}")
    KEEPB = f"L_{name}_keepb"
    JOIN = f"L_{name}_join"
    A(f"s_cmp_lg_u32 s{sHalf}, 0")
    A(f"s_cbranch_scc1 {KEEPB}")
    for i in range(4):
        A(f"ds_write_b128 v{vt+1}, {V(O[1] + 4*i, 4)} offset:{i * 1024}")
    A(f"ds_write_b128 v{vt+1}, {V(L[1], 4)} offset:4096")
    A(f"s_branch {JOIN}")
    A.label(KEEPB)
    for i in range(4):
        A(f"ds_write_b128 v{vt+1}, {V(O[0] + 4*i, 4)} offset:{i * 1024}")
    A(f"ds_write_b128 v{vt+1}, {V(L[0], 4)} offset:4096")
    A("s_waitcnt lgkmcnt(0)")
    for i in range(16):
        A(f"v_mov_b32 v{O[0]+i}, v{O[1]+i}")
    A(f"v_mov_b32 v{L[0]}, v{L[1]}")
    A.label(JOIN)
    A("s_waitcnt lgkmcnt(0)")
    A("s_barrier")
    for i in range(4):
        A(f"ds_read_b128 {V(O[1] + 4*i, 4)}, v{vt+2} offset:{i * 1024}")
    A(f"ds_read_b128 {V(L[1], 4)}, v{vt+2} offset:4096")
    A(f"v_bfe_u32 v{vt}, v0, 4, 1")
    A(f"v_lshlrev_b32 v{vt+1}, 11, v{vt}")
    A(f"v_lshrrev_b32 v{vt}, 5, v0")
    A(f"v_lshl_add_u32 v{vt+1}, v{vt}, 8, v{vt+1}")
    A(f"v_and_b32 v{vt}, 15, v0")
    A(f"v_lshl_add_u32 v{vt+1}, v{vt}, 4, v{vt+1}")
    A(f"s_lshr_b32 s33, s{sH}, 1")
    A(f"s_lshl_b32 s33, s33, 18")
    A(f"s_and_b32 s34, s{sH}, 1")
    A(f"s_lshl_b32 s34, s34, 10")
    A(f"s_add_u32 s33, s33, s34")
    A(f"s_lshl_b32 s34, s{sTB}, 13")
    A(f"s_add_u32 s33, s33, s34")
    A(f"s_lshl_b32 s34, s{sHalf}, 12")
    A(f"s_add_u32 s33, s33, s34")
    A("s_waitcnt lgkmcnt(0)")
    A(f"v_add_f32 v{L[0]}, v{L[0]}, v{L[1]}")
    A(f"v_rcp_f32 v{vt+2}, v{L[0]}")
    for i in range(16):
        A(f"v_add_f32 v{O[0]+i}, v{O[0]+i}, v{O[1]+i}")
    for i in range(16):
        A(f"v_mul_f32 v{O[0]+i}, v{O[0]+i}, v{vt+2}")
    for j in range(8):
        A(f"v_cvt_pk_bf16_f32 v{P[0]+j}, v{O[0]+2*j}, v{O[0]+2*j+1}")
    for c in range(2):
        A(f"buffer_store_dwordx4 {V(P[0] + 4*c, 4)}, v{vt+1}, s[{SRD_O}:{SRD_O+3}], s33 offen offset:{c * 512}")
    if opts.get("prof"):
        A("s_waitcnt vmcnt(0)")
        stamp(A, opts, 3)
        prof_store(A, opts, 4, opts.get("kidx", 0))
    A.label(END)
    A("s_endpgm")
    return kernel_desc(name, NV, 0, 100)
```

```python
from gen_common import *
import math

C0 = -2.0 * math.sqrt(2.0 / math.pi) * math.log2(math.e)
C1 = C0 * 0.044715


def gen_k4(A, name="k4_gateup_kernel", opts=None):
    opts = opts or {}
    kernel_begin(A, name)
    END = f"L_{name}_end"
    vT0, vT1 = 1, 2
    vWo = 3
    vWa = 10
    vt = 12
    ACC = 32
    R = [0, 56]
    TS = 112
    VPA = 176
    SLOT = 28672
    sW, sTB, sJB = 24, 25, 26
    sToff, sWoff, sM0b = 27, 28, 31
    SRD_T, SRD_W, SRD_O, SRD_V = 8, 12, 16, 20

    def acc(wf, tl):
        return V(ACC + (wf * 4 + tl) * 4, 4)

    A(f"s_cmp_ge_u32 s2, 256")
    A(f"s_cbranch_scc1 {END}")
    stamp(A, opts, 0)
    A(f"s_load_dwordx2 s[4:5], s[0:1], {KA_WS}")
    A(f"s_load_dwordx4 s[40:43], s[0:1], {KA_WG}")
    A(f"v_lshrrev_b32 v{vt}, 6, v0")
    A(f"v_and_b32 v0, 63, v0")
    A(f"s_and_b32 s3, s2, 7")
    A(f"v_readfirstlane_b32 s{sW}, v{vt}")
    A(f"s_lshr_b32 s30, s2, 3")
    A(f"s_and_b32 s{sTB}, s3, 1")
    A(f"s_lshl_b32 s{sTB}, s{sTB}, 2")
    A(f"s_and_b32 s33, s30, 3")
    A(f"s_add_u32 s{sTB}, s{sTB}, s33")
    A(f"s_lshr_b32 s{sJB}, s3, 1")
    A(f"s_lshl_b32 s{sJB}, s{sJB}, 3")
    A(f"s_lshr_b32 s33, s30, 2")
    A(f"s_add_u32 s{sJB}, s{sJB}, s33")
    A(f"s_lshl_b32 s33, s{sTB}, 2")
    A(f"s_add_u32 s33, s33, s{sW}")
    A(f"s_lshl_b32 s33, s33, 13")
    A(f"v_lshlrev_b32 v{vT0}, 4, v0")
    A(f"v_add_u32 v{vT0}, s33, v{vT0}")
    A(f"v_add_u32 v{vT1}, 0x1000, v{vT0}")
    A(f"s_waitcnt lgkmcnt(0)")
    srd(A, SRD_T, 4, WS_HC, 4 * MB)
    srd(A, SRD_V, 4, WS_VP, 2048 * 64)
    A(f"s_cmp_lt_u32 s{sW}, 2")
    A(f"s_cselect_b32 s6, s40, s42")
    A(f"s_cselect_b32 s7, s41, s43")
    srd(A, SRD_W, 6, 0, 1024 * 7168)
    srd(A, SRD_O, 4, WS_ACT, ACT_BYTES)

    def t_load(u, soff):
        out = []
        for tl in range(4):
            dst = Ac(TS + (u % 4) * 16 + tl * 4, 4)
            vo = vT0 if tl < 2 else vT1
            out.append(f"buffer_load_dwordx4 {dst}, v{vo}, s[{SRD_T}:{SRD_T+3}], {soff} offen offset:{(tl % 2) * 2048 + (u % 2) * 1024}")
        return out

    def w_dma(slot, soff):
        out = []
        for m in range(7):
            grp = []
            if m % 4 == 0:
                grp.append(f"s_add_u32 m0, s{sM0b}, {slot * SLOT + (m // 4) * 4096}")
                grp.append("s_nop 0")
            grp.append(f"buffer_load_dwordx4 v{vWo + m}, s[{SRD_W}:{SRD_W+3}], {soff} offen offset:{(m % 4) * 1024} lds")
            out.append(grp)
        return out

    A(f"s_mov_b32 s{sToff}, 0")
    for l in t_load(0, f"s{sToff}"):
        A(l)
    A(f"s_and_b32 s34, s{sJB}, 1")
    A(f"s_lshl_b32 s34, s34, 1")
    A(f"s_mul_i32 s35, s{sJB}, 224")
    A(f"s_and_b32 s36, s{sW}, 1")
    A(f"s_mul_i32 s36, s36, {32 * 7168}")
    A(f"s_add_u32 s35, s35, s36")
    A(f"s_movk_i32 s37, 4682")
    A(f"s_movk_i32 s38, 7168")
    A(f"s_mul_i32 s{sM0b}, s{sW}, 7168")
    A(f"s_mov_b32 s{sWoff}, 0")
    w0 = w_dma(0, f"s{sWoff}")
    for m in range(7):
        d = vWo + m
        A(f"v_add_u32 v{vt}, {64 * m}, v0")
        A(f"v_mul_u32_u24 v{vt+1}, s37, v{vt}")
        A(f"v_lshrrev_b32 v{vt+1}, 16, v{vt+1}")
        A(f"v_mul_u32_u24 v{vt+2}, 14, v{vt+1}")
        A(f"v_sub_u32 v{vt}, v{vt}, v{vt+2}")
        A(f"v_add_u32 v{vt}, s34, v{vt}")
        A(f"v_subrev_u32 v{vt+2}, 14, v{vt}")
        A(f"v_min_u32 v{vt}, v{vt}, v{vt+2}")
        A(f"v_mul_u32_u24 v{vt+1}, s38, v{vt+1}")
        A(f"v_lshl_add_u32 v{d}, v{vt}, 4, v{vt+1}")
        A(f"s_sub_u32 s39, s35, {(m % 4) * 1024}")
        A(f"v_add_u32 v{d}, s39, v{d}")
        for l in w0[m]: A(l)

    NIT = 8

    def seq(tr, it):
        if it == -1:
            for t, n in ((("T", 0), 4), (("W", 0), 7), (("W", 1), 7), (("T", 1), 4), (("VP", 0), 4)):
                for _ in range(n): tr.issue(t)
            return None
        ns = []
        for s in (2 * it, 2 * it + 1):
            ns.append(tr.wait_for(lambda t: t == ("T", 2 * s)))
            for _ in range(4): tr.issue(("T", 2 * s + 2))
            ns.append(tr.wait_for(lambda t: t == ("T", 2 * s + 1) or t == ("W", s + 1)))
            for _ in range(7): tr.issue(("W", s + 2))
            for _ in range(4): tr.issue(("T", 2 * s + 3))
        return ns

    waits = resolve_waits(seq, NIT)
    waits = [63 if w is None else w for w in waits]

    A(f"s_add_u32 s{sWoff}, s{sWoff}, {64 * 7168}")
    for g in w_dma(1, f"s{sWoff}"):
        for l in g: A(l)
    A(f"s_add_u32 s{sWoff}, s{sWoff}, {64 * 7168}")
    for l in t_load(1, f"s{sToff}"): A(l)
    A(f"s_mov_b32 s{sToff}, {STAGE_BYTES}")
    A(f"s_lshl_b32 s33, s{sTB}, 2")
    A(f"s_add_u32 s33, s33, s{sW}")
    A(f"s_lshl_b32 s33, s33, 12")
    A(f"v_lshlrev_b32 v{vt}, 4, v0")
    for i in range(4):
        A(f"buffer_load_dwordx4 {Ac(VPA + 4 * i, 4)}, v{vt}, s[{SRD_V}:{SRD_V+3}], s33 offen offset:{1024 * i}")
    A(f"v_lshrrev_b32 v{vt}, 2, v0")
    A(f"v_mul_u32_u24 v{vWa}, 224, v{vt}")
    A(f"v_and_b32 v{vt}, 3, v0")
    A(f"v_lshl_add_u32 v{vWa}, v{vt}, 3, v{vWa}")
    for i in range(224):
        A(f"v_mov_b32 v{ACC + i}, 0")

    def tr_reads(rbuf, vbase, slot, s2):
        out = []
        for F in range(7):
            for mat in range(2):
                wf = mat * 7 + F
                for i in range(2):
                    off = slot * SLOT + mat * 14336 + (32 * s2 + 16 * i) * 224 + F * 32
                    out.append(f"ds_read_b64_tr_b16 {Ac(R[rbuf] + wf * 4 + 2 * i, 2)}, v{vbase} offset:{off}")
        return out

    A(f"s_waitcnt vmcnt(15)")
    A(f"s_barrier")
    for l in tr_reads(0, vWa, 0, 0): A(l)

    def step_mfmas(rbuf, tslot):
        out = []
        for F in range(7):
            for mat in range(2):
                wf = mat * 7 + F
                for tl in range(4):
                    out.append(mfma16(acc(wf, tl), Ac(R[rbuf] + wf * 4, 4), Ac(TS + tslot * 16 + tl * 4, 4)))
        return out

    LOOP = f"L_{name}_loop"
    stamp(A, opts, 1)
    A(f"s_mov_b32 s44, {NIT}")
    A.loop_begin(LOOP)
    wi = 0
    for sp in range(2):
        u = 2 * sp
        A(f"s_waitcnt vmcnt({waits[wi]}) lgkmcnt(0)"); wi += 1
        f = {}
        spread(f, tr_reads(1, vWa, sp, 1), 0, 44)
        spread(f, t_load(u + 2, f"s{sToff}"), 2, 24)
        main = step_mfmas(0, u % 4)
        for l in interleave(main, f): A(l)
        A(f"s_waitcnt vmcnt({waits[wi]}) lgkmcnt(0)"); wi += 1
        A(f"s_barrier")
        f = {}
        spread(f, tr_reads(0, vWa, 1 - sp, 0), 0, 44)
        spread(f, w_dma(sp, f"s{sWoff}"), 0, 28)
        spread(f, t_load(u + 3, f"s{sToff}"), 30, 46)
        f.setdefault(48, []).append(f"s_add_u32 s{sWoff}, s{sWoff}, {64 * 7168}")
        f[48].append(f"s_add_u32 s{sToff}, s{sToff}, {STAGE_BYTES}")
        if sp == 1:
            f.setdefault(54, []).append(f"s_sub_u32 s44, s44, 1")
            f[54].append(f"s_cmp_lg_u32 s44, 0")
        main = step_mfmas(1, (u + 1) % 4)
        for l in interleave(main, f): A(l)
    A(f"s_cbranch_scc1 {LOOP}")
    A.loop_end()

    stamp(A, opts, 2)
    A(f"s_mov_b32 s45, {f32hex(1.0 / 1024)}")
    A(f"s_waitcnt vmcnt(0) lgkmcnt(0)")
    cAB = 20
    cR = 28
    for i in range(16):
        A(f"v_accvgpr_read_b32 v{vt + i}, a{VPA + i}")
    for tl in range(4):
        b = vt + 4 * tl
        A(f"v_add_f32 v{b}, v{b}, v{b+1}")
        A(f"v_add_f32 v{b+2}, v{b+2}, v{b+3}")
    for tl in range(4):
        b = vt + 4 * tl
        A(f"v_add_f32 v{b}, v{b}, v{b+2}")
    for pm in ("[1,0,3,2]", "[2,3,0,1]"):
        A("s_nop 1")
        for tl in range(4):
            b = vt + 4 * tl
            A(f"v_add_f32_dpp v{b}, v{b}, v{b} quad_perm:{pm} row_mask:0xf bank_mask:0xf")
    A(f"v_and_b32 v{vt+1}, 15, v0")
    A(f"v_lshlrev_b32 v{vt+1}, 4, v{vt+1}")
    A(f"v_mov_b32 v{vt+2}, {f32hex(EPS)}")
    for tl in range(4):
        A(f"ds_bpermute_b32 v{cR + tl}, v{vt+1}, v{vt + 4 * tl}")
    A(f"s_waitcnt lgkmcnt(0)")
    for tl in range(4):
        A(f"v_fma_f32 v{cR + tl}, v{cR + tl}, s45, v{vt+2}")
    for tl in range(4):
        A(f"v_rsq_f32 v{vt + 4 + tl}, v{cR + tl}")
    for tl in range(4):
        r = vt + 4 + tl
        A(f"v_mul_f32 v{cAB + 2 * tl}, {f32hex(C0)}, v{r}")
        A(f"v_mul_f32 v{cAB + 2 * tl + 1}, v{r}, v{r}")
        A(f"v_mul_f32 v{cAB + 2 * tl + 1}, v{cAB + 2 * tl + 1}, v{r}")
        A(f"v_mul_f32 v{cAB + 2 * tl + 1}, {f32hex(C1)}, v{cAB + 2 * tl + 1}")
    A(f"s_and_b32 s34, s{sJB}, 1")
    A(f"s_mul_i32 s35, s{sJB}, 7")
    A(f"s_add_u32 s35, s35, s34")
    A(f"s_lshr_b32 s35, s35, 1")
    for P in range(4):
        if P < 3:
            A(f"s_add_u32 s36, s35, {P}")
        else:
            A(f"s_lshl_b32 s37, s34, 2")
            A(f"s_add_u32 s36, s35, 3")
            A(f"s_sub_u32 s36, s36, s37")
        A(f"s_lshr_b32 s37, s36, 1")
        A(f"s_lshl_b32 s37, s37, 18")
        A(f"s_and_b32 s36, s36, 1")
        A(f"s_lshl_b32 s36, s36, 10")
        A(f"s_add_u32 s{48 + P}, s36, s37")
    A(f"s_lshl_b32 s34, s34, 3")
    A(f"s_add_u32 s51, s51, s34")

    TA, TB = 4, 6

    def glu(F, tl, h, T, dst):
        a = V(acc(F, tl).base + 2 * h, 2)
        u = V(acc(7 + F, tl).base + 2 * h, 2)
        AB = V(cAB + 2 * tl, 2)
        Rr = cR + tl
        Rp = V(Rr & ~1, 2)
        sel = "op_sel:[0,1,1] op_sel_hi:[1,1,1]" if Rr & 1 else "op_sel:[0,0,0] op_sel_hi:[1,0,0]"
        t = V(T, 2)
        return [
            f"v_pk_mul_f32 {t}, {a}, {a}",
            f"v_pk_fma_f32 {t}, {t}, {AB}, {AB} op_sel:[0,1,0] op_sel_hi:[1,1,0]",
            f"v_pk_mul_f32 {t}, {t}, {a}",
            f"v_exp_f32 v{T}, v{T}",
            f"v_exp_f32 v{T+1}, v{T+1}",
            f"v_pk_mul_f32 {a}, {a}, {u}",
            f"v_pk_fma_f32 {t}, {t}, {Rp}, {Rp} {sel}",
            f"v_rcp_f32 v{T}, v{T}",
            f"v_rcp_f32 v{T+1}, v{T+1}",
            "NOP",
            f"v_pk_mul_f32 {a}, {a}, {t}",
            f"v_cvt_pk_bf16_f32 v{dst}, v{a.base}, v{a.base+1}",
        ]

    for tl in range(4):
        vo = vT0 if tl < 2 else vT1
        for P in range(4):
            Fs = (2 * P, 2 * P + 1) if P < 3 else (6,)
            dbase = acc(7 + Fs[0], tl).base
            for n, F in enumerate(Fs):
                s0 = glu(F, tl, 0, TA, dbase + 2 * n)
                s1 = glu(F, tl, 1, TB, dbase + 2 * n + 1)
                for x, y in zip(s0, s1):
                    if x != "NOP": A(x)
                    if y != "NOP": A(y)
            if P < 3:
                A(f"buffer_store_dwordx4 {V(dbase, 4)}, v{vo}, s[{SRD_O}:{SRD_O+3}], s{48 + P} offen offset:{(tl % 2) * 2048}")
            else:
                A(f"buffer_store_dwordx2 {V(dbase, 2)}, v{vo}, s[{SRD_O}:{SRD_O+3}], s{48 + P} offen offset:{(tl % 2) * 2048}")
    if opts.get("prof"):
        A("s_waitcnt vmcnt(0)")
        stamp(A, opts, 3)
        prof_store(A, opts, 4, opts.get("kidx", 0))
    A.label(END)
    A("s_endpgm")
    return kernel_desc(name, 256, 192, 80)
```

```python
import sys, json
sys.path.insert(0,'work')
from build import build
from gen_gs import *
from gen_k2 import gen_k2
from gen_k4 import gen_k4
def make(prof=0, o=None):
    o = dict(o or {})
    for k, d in (("k1", {"stflag":"sc1"}), ("k2", {"stflag":"sc1"}), ("k5", {"stflag":"sc1"})):
        o[k] = dict(d, **(o.get(k) or {}))
    P = lambda i, extra=None: dict({"prof":prof,"kidx":i}, **(extra or {}))
    U5 = o.get("U5", 4)
    parts = [(gen_k1,"k1_qkv_kernel",P(0,o.get("k1"))),(gen_k2,"k2_attn_kernel",P(1,o.get("k2"))),(gen_k3,"k3_wo_kernel",P(2,o.get("k3"))),
             (gen_k4,"k4_gateup_kernel",P(3,o.get("k4"))),(gen_k5,"k5_down_kernel",P(4,dict({"U":U5},**(o.get("k5") or {}))))]
    U1 = (o.get("k1") or {}).get("U", 4); U3 = (o.get("k3") or {}).get("U", 4); U5 = (o.get("k5") or {}).get("U", U5)
    launches = [("k1_qkv_kernel",256,256,U1*8192+32768+U1*16384+256),("k2_attn_kernel",256,512,4*32768+4352),("k3_wo_kernel",256,256,U3*8192+4096+256+16384),
                ("k4_gateup_kernel",256,256,2*28672),("k5_down_kernel",256,256,U5*8192+16384)]
    return build(parts, launches)
if __name__ == "__main__":
    asm, probs = make(0)
    print("hazards:", len(probs)); print("\n".join(probs[:20]))
    open('sequential_preLN__grouped_kv_mqa__geglu_ffn__prompt.s','w').write(asm)
    asm, probs = make(1)
    open('all_prof.s','w').write(asm)
```

```python
from asmlib import *

KA_X, KA_WQ, KA_WK, KA_WV, KA_WO, KA_BX, KA_WG, KA_WU, KA_WD, KA_OUT, KA_DBG, KA_WS = [8 * i for i in range(12)]

MB = 1 << 20
WS_Q = 0
WS_KV = 4 * MB
WS_NRM = WS_KV + 256 * 1024
WS_XM = WS_NRM + 4096
WS_WB = WS_XM + 8192
WS_VP = WS_WB + 4096
WS_QN = WS_VP + 2048 * 64
WS_MH = WS_QN + 4096
WS_O = 5 * MB
WS_H = 9 * MB
WS_HC = 13 * MB
WS_ACT = 17 * MB
WS_WD = 32 * MB
ACT_BYTES = 2048 * 3584 * 2
STAGE_BYTES = 128 * 2048

EPS = 1e-5


def f32hex(x):
    import struct
    return "0x%08x" % struct.unpack("<I", struct.pack("<f", x))[0]


def kernel_begin(A, name):
    A.raw(f".globl {name}")
    A.raw(".p2align 8")
    A.raw(f".type {name},@function")
    A.raw(f"{name}:")


def kernel_desc(name, nv, na, ns):
    acc = (nv + 3) // 4 * 4
    if na:
        total = acc + na
    else:
        total = nv
    return f""".amdhsa_kernel {name}
  .amdhsa_next_free_vgpr {total}
  .amdhsa_next_free_sgpr {ns}
  .amdhsa_accum_offset {acc}
  .amdhsa_group_segment_fixed_size 0
  .amdhsa_kernarg_size 96
  .amdhsa_user_sgpr_count 2
  .amdhsa_user_sgpr_kernarg_segment_ptr 1
  .amdhsa_system_sgpr_workgroup_id_x 1
  .amdhsa_float_denorm_mode_32 3
.end_amdhsa_kernel
"""


def srd(A, s, base_pair, offset, nbytes):
    if offset:
        A(f"s_add_u32 s{s}, s{base_pair}, {offset}")
        A(f"s_addc_u32 s{s+1}, s{base_pair+1}, 0")
        A(f"s_and_b32 s{s+1}, s{s+1}, 0xffff")
    else:
        A(f"s_mov_b32 s{s}, s{base_pair}")
        A(f"s_and_b32 s{s+1}, s{base_pair+1}, 0xffff")
    A(f"s_mov_b32 s{s+2}, {nbytes}")
    A(f"s_mov_b32 s{s+3}, 0x20000")


def mfma16(d, a, b, c=None):
    return f"v_mfma_f32_16x16x32_bf16 {d}, {a}, {b}, {d if c is None else c}"


def mfma32(d, a, b, c=None):
    return f"v_mfma_f32_32x32x16_bf16 {d}, {a}, {b}, {d if c is None else c}"


def resolve_waits(seq_builder, n_iter):
    tr = VmTracker()
    seq_builder(tr, -1)
    best = None
    for it in range(n_iter):
        ns = seq_builder(tr, it)
        if best is None:
            best = list(ns)
        else:
            best = [min(a, b) if (a is not None and b is not None) else (a if b is None else b) for a, b in zip(best, ns)]
    return best


WS_PROF = 40 * MB
STAMP_TAGS = {}


def xstamp(A, opts, tag):
    st = opts.get("st")
    if st and tag in st:
        stamp(A, opts, 1 + st.index(tag), True)


def stamp(A, opts, i, forced=False):
    if not opts.get("prof"): return
    if not forced:
        if i in (1, 2) and opts.get("st"): return
        i = {0: 0, 1: 1, 2: 4, 3: 5}[i]
    A(f"s_memtime s[{64+2*i}:{65+2*i}]")
    if i == 0: A("s_memrealtime s[76:77]")
    if i == 5: A("s_memrealtime s[78:79]")


def prof_store(A, opts, ws_pair, kidx):
    if not opts.get("prof"): return
    A("s_waitcnt lgkmcnt(0)")
    for k, sreg in enumerate((64, 66, 68, 70, 72, 74, 76, 78)):
        A(f"v_mov_b32 v{k}, s{sreg}")
    A("s_lshl_b32 s64, s2, 5")
    A(f"s_add_u32 s64, s64, {WS_PROF + kidx * 16384}")
    A("v_mov_b32 v8, s64")
    A("s_nop 4")
    A(f"global_store_dwordx4 v8, v[0:3], s[{ws_pair}:{ws_pair+1}]")
    A(f"global_store_dwordx4 v8, v[4:7], s[{ws_pair}:{ws_pair+1}] offset:16")


def prof_report(arr, label, st=None):
    import numpy as np
    a = arr.astype(np.int64)
    rt0 = a[:,6]; rt1 = a[:,7]
    tot = (rt1.max() - rt0.min())/100.0
    cyc = (a[:,5]-a[:,0]) & 0xffffffff
    clk = np.median(cyc / np.maximum((rt1-rt0),1) * 100)
    d = lambda i, j: (a[:,j]-a[:,i]) & 0xffffffff
    if st:
        idx = [0] + [1+k for k in range(len(st))] + [5]
        parts = " ".join(f"{(['start']+list(st))[k]}->{(list(st)+['end'])[k]}: {np.median(d(idx[k], idx[k+1])):.0f}" for k in range(len(idx)-1))
    else:
        d1, d2, d3 = d(0,1), d(1,4), d(4,5)
        parts = f"cyc pro {np.median(d1):.0f} loop {np.median(d2):.0f} epi {np.median(d3):.0f} (max pro {d1.max()} loop {d2.max()} epi {d3.max()})"
    print(f"{label}: span {tot:6.2f}us | start spread {(rt0.max()-rt0.min())/100:.2f}us | per-WG {np.median(rt1-rt0)/100:6.2f}us | {parts} clk {clk:.0f}MHz")
    return rt0.min(), rt1.max()
```

```python
from gen_common import *

sW, sTB, sCB = 24, 25, 26
sToff, sWoff, sM0b = 27, 28, 29
sRot, sTraw, sWraw, sTcnt, sWcnt = 55, 56, 57, 58, 59
SRD_T, SRD_W, SRD_O, SRD_X = 8, 12, 16, 20
vT0, vT1 = 1, 2
vW0, vW1 = 3, 4
vR = 6
vt = 10
ACC = 16
RB = [48, 80]
XTRA = 112
TRING = 160


def acc(F, tl):
    return V(ACC + (F * 2 + tl) * 4, 4)


def tslot(stage_slot, s2, tl):
    return Ac(stage_slot * 16 + s2 * 8 + tl * 4, 4)


def ids(A, opts=None):
    A(f"v_lshrrev_b32 v{vt}, 6, v0")
    A(f"v_and_b32 v0, 63, v0")
    A(f"s_and_b32 s3, s2, 7")
    A(f"v_readfirstlane_b32 s{sW}, v{vt}")
    A(f"s_lshr_b32 s30, s2, 3")
    A(f"s_lshr_b32 s{sTB}, s3, 1")
    A(f"s_lshl_b32 s{sTB}, s{sTB}, 2")
    A(f"s_and_b32 s33, s30, 3")
    A(f"s_add_u32 s{sTB}, s{sTB}, s33")
    A(f"s_and_b32 s{sCB}, s3, 1")
    A(f"s_lshl_b32 s{sCB}, s{sCB}, 3")
    A(f"s_lshr_b32 s33, s30, 2")
    A(f"s_add_u32 s{sCB}, s{sCB}, s33")
    if opts and opts.get("map") == "same":
        A(f"s_mov_b32 s{sTB}, 0"); A(f"s_mov_b32 s{sCB}, 0")
    if opts and opts.get("map") == "sametb":
        A(f"s_mov_b32 s{sTB}, 0")
    if opts and opts.get("map") == "samecb":
        A(f"s_mov_b32 s{sCB}, 0")
    if opts and opts.get("map") == "tokxcd":
        A(f"s_lshl_b32 s{sTB}, s3, 1"); A(f"s_and_b32 s33, s30, 1"); A(f"s_add_u32 s{sTB}, s{sTB}, s33")
        A(f"s_lshr_b32 s{sCB}, s30, 1")
    if opts and opts.get("map") == "cbx":
        A(f"s_xor_b32 s{sCB}, s{sCB}, 5")
    if opts and opts.get("map") == "rowmajor":
        A(f"s_lshr_b32 s{sTB}, s2, 4"); A(f"s_and_b32 s{sCB}, s2, 15")
    if opts and opts.get("map") == "m8x4":
        A(f"s_lshr_b32 s{sTB}, s3, 2"); A(f"s_lshl_b32 s{sTB}, s{sTB}, 3"); A(f"s_and_b32 s33, s30, 7"); A(f"s_add_u32 s{sTB}, s{sTB}, s33")
        A(f"s_and_b32 s{sCB}, s3, 3"); A(f"s_lshl_b32 s{sCB}, s{sCB}, 2"); A(f"s_lshr_b32 s33, s30, 3"); A(f"s_add_u32 s{sCB}, s{sCB}, s33")


def set_rot(A, opts, nstages):
    r = opts.get("rot")
    if r is None:
        return
    if r == "cb":
        A(f"s_and_b32 s{sRot}, s{sCB}, 15")
    elif r == "tb":
        A(f"s_and_b32 s{sRot}, s{sTB}, 15")
    elif r == "cbtb":
        A(f"s_add_u32 s{sRot}, s{sCB}, s{sTB}"); A(f"s_and_b32 s{sRot}, s{sRot}, 15")
    elif r == "cb7":
        A(f"s_and_b32 s{sRot}, s{sCB}, 7"); A(f"s_mul_i32 s{sRot}, s{sRot}, {opts.get('rotk', 1)}")
    elif r == "tb3":
        A(f"s_and_b32 s{sRot}, s{sTB}, 3"); A(f"s_mul_i32 s{sRot}, s{sRot}, {opts.get('rotk', 1)}")
    elif r == "idx":
        A(f"s_lshr_b32 s{sRot}, s2, 3"); A(f"s_mul_i32 s{sRot}, s{sRot}, {opts.get('rotk', 1)}"); A(f"s_lshr_b32 s{sRot}, s{sRot}, {opts.get('rotsh', 0)}")
    elif r == "ct":
        a, b = opts.get("rota", 2), opts.get("rotb", 4)
        A(f"s_and_b32 s33, s{sCB}, 7"); A(f"s_mul_i32 s33, s33, {a}")
        A(f"s_and_b32 s34, s{sTB}, 3"); A(f"s_mul_i32 s34, s34, {b}")
        A(f"s_add_u32 s{sRot}, s33, s34")
        for _ in range((7 * a + 3 * b) // nstages):
            A(f"s_cmp_ge_u32 s{sRot}, {nstages}"); A(f"s_cselect_b32 s33, {nstages}, 0"); A(f"s_sub_u32 s{sRot}, s{sRot}, s33")
    elif r == "zero":
        A(f"s_mov_b32 s{sRot}, 0")


def l2_sweep(A, opts, srd_t, tok_kind, srd_w, dummy):
    if not opts.get("sweep"):
        return 0
    A(f"s_lshr_b32 s33, s2, 3")
    A(f"s_lshl_b32 s33, s33, 2")
    A(f"s_add_u32 s33, s33, s{sW}")
    A(f"s_lshl_b32 s33, s33, 6")
    A(f"v_add_u32 v{vt}, s33, v0")
    A(f"s_and_b32 s34, s2, 7")
    A(f"v_lshrrev_b32 v{vt+1}, 3, v{vt}")
    A(f"v_lshlrev_b32 v{vt+1}, 11, v{vt+1}")
    A(f"v_and_b32 v{vt+2}, 7, v{vt}")
    A(f"v_lshl_add_u32 v{vt+1}, v{vt+2}, 7, v{vt+1}")
    A(f"s_and_b32 s35, s34, 1")
    A(f"s_lshl_b32 s35, s35, 10")
    A(f"buffer_load_dword v{dummy}, v{vt+1}, s[{srd_w}:{srd_w+3}], s35 offen")
    A(f"s_lshr_b32 s34, s34, 1")
    if tok_kind == "rows":
        A(f"v_lshlrev_b32 v{vt+1}, 7, v{vt}")
        A(f"s_lshl_b32 s35, s34, 20")
    else:
        A(f"v_lshrrev_b32 v{vt+1}, 9, v{vt}")
        A(f"v_lshlrev_b32 v{vt+1}, 18, v{vt+1}")
        A(f"v_and_b32 v{vt+2}, 511, v{vt}")
        A(f"v_lshl_add_u32 v{vt+1}, v{vt+2}, 7, v{vt+1}")
        A(f"s_lshl_b32 s35, s34, 16")
    A(f"buffer_load_dword v{dummy}, v{vt+1}, s[{srd_t}:{srd_t+3}], s35 offen")
    return 2


def tf_voffsets(A):
    A(f"s_lshl_b32 s33, s{sTB}, 2")
    A(f"s_add_u32 s33, s33, s{sW}")
    A(f"s_lshl_b32 s33, s33, 12")
    A(f"v_lshlrev_b32 v{vT0}, 4, v0")
    A(f"v_add_u32 v{vT0}, s33, v{vT0}")


def w_setup(A, perm, rowstride, rotf=False, packed=False):
    A(f"v_lshrrev_b32 v{vt}, 3, v0")
    A(f"s_lshl_b32 s33, s{sW}, 4")
    A(f"v_add_u32 v{vt}, s33, v{vt}")
    A(f"s_mov_b32 s34, {rowstride}")
    A(f"v_mul_lo_u32 v{vt}, v{vt}, s34")
    A(f"s_lshl_b32 s33, s{sCB}, 7")
    A(f"v_add_u32 v{vt}, s33, v{vt}")
    A(f"v_and_b32 v{vt+1}, 7, v0")
    if perm in "AB":
        A(f"v_bfe_u32 v{vt+2}, v0, 4, 2")
        A(f"v_lshlrev_b32 v{vt+2}, 1, v{vt+2}")
        A(f"v_xor_b32 v{vt+1}, v{vt+1}, v{vt+2}")
        A(f"v_lshl_add_u32 v{vW0}, v{vt+1}, 4, v{vt}")
        A(f"v_add_u32 v{vW1}, {8 * rowstride - 1024}, v{vW0}")
    else:
        A(f"v_bfe_u32 v{vt+2}, v0, 4, 1")
        A(f"v_lshlrev_b32 v{vt+2}, 1, v{vt+2}")
        A(f"v_xor_b32 v{vt+1}, v{vt+1}, v{vt+2}")
        A(f"v_lshl_add_u32 v{vW0}, v{vt+1}, 4, v{vt}")
        A(f"v_xor_b32 v{vt+1}, 4, v{vt+1}")
        A(f"v_lshl_add_u32 v{vW1}, v{vt+1}, 4, v{vt}")
        A(f"v_add_u32 v{vW1}, {8 * rowstride - 1024}, v{vW1}")
    A(f"s_lshl_b32 s{sM0b}, s{sW}, 11")
    if packed:
        A(f"s_mul_i32 s33, s{sCB}, {56 * 8192}")
        A(f"s_add_u32 s33, s33, s{sM0b}")
        A(f"v_lshlrev_b32 v{vW0}, 4, v0")
        A(f"v_add_u32 v{vW0}, s33, v{vW0}")
        A(f"v_mov_b32 v{vW1}, v{vW0}")
    A(f"v_lshrrev_b32 v{vt}, 4, v0")
    A(f"v_bfe_u32 v{vt+1}, v0, 2, 2")
    if perm == "A":
        A(f"v_lshl_add_u32 v{vt+2}, v{vt}, 2, v{vt+1}")
    elif perm == "B":
        A(f"v_lshrrev_b32 v{vt+2}, 1, v{vt}")
        A(f"v_lshlrev_b32 v{vt+2}, 4, v{vt+2}")
        A(f"v_and_b32 v{vt+3}, 1, v{vt}")
        A(f"v_lshl_add_u32 v{vt+2}, v{vt+3}, 2, v{vt+2}")
        A(f"v_add_u32 v{vt+2}, v{vt+2}, v{vt+1}")
    else:
        A(f"v_lshl_add_u32 v{vt+2}, v{vt}, 3, v{vt+1}")
    A(f"v_lshlrev_b32 v{vt+2}, 7, v{vt+2}")
    A(f"v_and_b32 v{vt+3}, 3, v0")
    A(f"v_lshl_add_u32 v{vt+2}, v{vt+3}, 3, v{vt+2}")
    A(f"v_lshrrev_b32 v{vt+1}, 1, v{vt+1}")
    A(f"v_and_b32 v{vt}, 1, v{vt}")
    A(f"v_lshl_or_b32 v{vt}, v{vt}, 1, v{vt+1}")
    if not rotf:
        A(f"v_lshl_or_b32 v{vR}, v{vt}, 5, v{vt+2}")
        for F in range(1, 4):
            A(f"v_xor_b32 v{vR+F}, {F << 5}, v{vR}")
    else:
        A(f"v_lshl_or_b32 v{vt}, v{vt}, 5, v{vt+2}")
        for F in range(4):
            A(f"s_add_u32 s33, s{sW}, {F}")
            A(f"s_and_b32 s33, s33, 3")
            A(f"s_lshl_b32 s33, s33, 5")
            A(f"v_xor_b32 v{vR+F}, s33, v{vt}")


def wfrag(par, s2, F):
    return V(RB[par] + s2 * 16 + F * 4, 4)


def gs_main(A, name, opts, nstages, U, perm, rowstride, t_loads, step_extra=None, stage_reads=None,
            after_first_loads=None, iter_end=None, pre_reads=None, extra_after=0, tlds=None):
    di = {"A": 16, "B": 8, "N": 4}[perm]
    tstride = opts["tstride"]
    assert U % 2 == 0

    def w_dma(slot):
        return [[f"s_add_u32 m0, s{sM0b}, {slot * 8192}", "s_nop 0",
                 f"buffer_load_dwordx4 v{vW0}, s[{SRD_W}:{SRD_W+3}], s{sWoff} offen lds"],
                [f"buffer_load_dwordx4 v{vW1}, s[{SRD_W}:{SRD_W+3}], s{sWoff} offen offset:1024 lds"]]

    def tr_reads(par, slot):
        out = []
        for s2 in range(2):
            for F in range(4):
                for i in range(2):
                    off = slot * 8192 + (32 * s2 + di * i) * 128
                    out.append(f"ds_read_b64_tr_b16 {V(wfrag(par, s2, F).base + 2 * i, 2)}, v{vR+F} offset:{off}")
        return out

    NIT = nstages // U
    assert NIT * U == nstages
    ROT = opts.get("rot") is not None
    wstride = 64 * rowstride

    def advance(raw, cnt, off, stride):
        if not ROT:
            return [f"s_add_u32 s{off}, s{off}, {stride}"]
        return [f"s_add_u32 s{raw}, s{raw}, {stride}",
                f"s_cmp_eq_u32 s{raw}, {nstages * stride}",
                f"s_cselect_b32 s{raw}, 0, s{raw}",
                f"s_add_u32 s{cnt}, s{cnt}, 1",
                f"s_cmp_lt_u32 s{cnt}, {nstages}",
                f"s_cselect_b32 s{off}, s{raw}, 0x7ff00000"]

    def seq(tr, it):
        if it == -1:
            for s in range(U):
                for _ in range(2): tr.issue(("W", s))
                if tlds:
                    for _ in range(4): tr.issue(("W", s))
                elif s >= 1:
                    for _ in range(4): tr.issue(("T", s - 1))
            for _ in range(extra_after): tr.issue(("Y", 0))
            return None
        ns = []
        for s in range(U * it, U * it + U):
            ns.append(tr.wait_for(lambda t: t == ("T", s) or t == ("W", s + 1)))
            for _ in range(2): tr.issue(("W", s + U))
            for _ in range(4): tr.issue(("W", s + U) if tlds else ("T", s + U - 1))
        return ns

    waits = [63 if w is None else min(w, 63) for w in resolve_waits(seq, NIT)]

    if ROT:
        A(f"s_mul_i32 s{sToff}, s{sRot}, {tstride}")
        A(f"s_mul_i32 s{sWoff}, s{sRot}, {wstride}")
        A(f"s_mov_b32 s{sTraw}, s{sToff}")
        A(f"s_mov_b32 s{sWraw}, s{sWoff}")
        A(f"s_mov_b32 s{sTcnt}, 0")
        A(f"s_mov_b32 s{sWcnt}, 0")
    else:
        A(f"s_mov_b32 s{sToff}, 0")
        A(f"s_mov_b32 s{sWoff}, 0")
    for s in range(U):
        for g in w_dma(s):
            for l in g: A(l)
        for l in advance(sWraw, sWcnt, sWoff, wstride): A(l)
        if tlds:
            for g in tlds["dma"](s):
                for l in g: A(l)
            for l in advance(sTraw, sTcnt, sToff, tstride): A(l)
        elif s >= 1:
            for l in t_loads(s - 1, f"s{sToff}"): A(l)
            for l in advance(sTraw, sTcnt, sToff, tstride): A(l)
    xstamp(A, opts, "issued")
    if after_first_loads:
        after_first_loads()
    for i in range(0, 32, 2):
        A(f"v_mov_b64 v[{ACC + i}:{ACC + i + 1}], 0")
    n_after = (U - 1) * 6 + extra_after
    xstamp(A, opts, "prewait")
    A(f"s_waitcnt vmcnt({min(n_after, 63)})")
    A(f"s_barrier")
    for l in tr_reads(0, 0): A(l)
    if tlds:
        for l in tlds["reads"](0, 0): A(l)
    if pre_reads:
        pre_reads()

    stamp(A, opts, 1)
    xstamp(A, opts, "loopstart")
    LOOP = f"L_{name}_loop"
    A(f"s_mov_b32 s44, {NIT}")
    A.loop_begin(LOOP)
    for sl in range(U):
        par = sl % 2
        A(f"s_waitcnt vmcnt({waits[sl]}) lgkmcnt(0)")
        A("s_barrier")
        main = []
        for s2 in range(2):
            for F in range(4):
                for tl in range(2):
                    main.append(mfma16(acc(F, tl), wfrag(par, s2, F), tlds["frag"](par, s2, tl) if tlds else tslot(sl, s2, tl)))
            if step_extra:
                main += step_extra(par, s2, sl)
        n_m = len(main)
        nsl = (sl + 1) % U
        reads = tr_reads(1 - par, nsl)
        if tlds:
            reads = tlds["reads"](1 - par, nsl) + reads
        if stage_reads:
            reads = stage_reads(1 - par, sl) + reads
        g = w_dma(sl)
        vm = [g[0], g[1] + advance(sWraw, sWcnt, sWoff, wstride)]
        if tlds:
            d = tlds["dma"](sl)
            d[-1] = d[-1] + advance(sTraw, sTcnt, sToff, tstride)
            vm += d
        else:
            ld = [[x] for x in t_loads((sl + U - 1) % U, f"s{sToff}")]
            ld[-1] = ld[-1] + advance(sTraw, sTcnt, sToff, tstride)
            vm += ld
        f = {}
        f[-1] = list(vm[0])
        spread(f, vm[1:], 0, min(n_m - 2, 2 * (len(vm) - 1)))
        spread(f, reads, 0, n_m - opts.get("rd_margin", 4))
        if sl == U - 1:
            f.setdefault(n_m - 1, [])
            if iter_end:
                f[n_m - 1].extend(iter_end())
            f[n_m - 1].append("s_sub_u32 s44, s44, 1")
            f[n_m - 1].append("s_cmp_lg_u32 s44, 0")
        for l in interleave(main, f): A(l)
    A(f"s_cbranch_scc1 {LOOP}")
    A.loop_end()
    stamp(A, opts, 2)
    xstamp(A, opts, "loopend")


def tf_tloads(sl, soff):
    out = []
    for tl in range(2):
        for s2 in range(2):
            out.append(f"buffer_load_dwordx4 {tslot(sl, s2, tl)}, v{vT0}, s[{SRD_T}:{SRD_T+3}], {soff} offen offset:{tl * 2048 + s2 * 1024}")
    return out


def finish(A, name, opts, END, nv, na=0):
    xstamp(A, opts, "stored")
    if opts.get("prof"):
        A("s_waitcnt vmcnt(0)")
        stamp(A, opts, 3)
        prof_store(A, opts, 4, opts.get("kidx", 0))
    A.label(END)
    A("s_endpgm")
    return kernel_desc(name, nv, na, 80)


def gen_k5(A, name="k5_down_kernel", opts=None):
    opts = dict(opts or {})
    U = opts.get("U", 8)
    opts["tstride"] = STAGE_BYTES
    opts.setdefault("rot", "zero")
    kernel_begin(A, name)
    END = f"L_{name}_end"
    A("s_cmp_ge_u32 s2, 256")
    A(f"s_cbranch_scc1 {END}")
    stamp(A, opts, 0)
    A(f"s_load_dwordx2 s[4:5], s[0:1], {KA_WS}")
    A(f"s_load_dwordx4 s[40:43], s[0:1], {KA_WD}")
    ids(A, opts)
    set_rot(A, opts, 56)
    tf_voffsets(A)
    w_setup(A, "A", 2048, packed=True)
    A("s_waitcnt lgkmcnt(0)")
    xstamp(A, opts, "karg")
    srd(A, SRD_T, 4, WS_ACT, ACT_BYTES)
    srd(A, SRD_W, 4, WS_WD, 3584 * 2048)
    srd(A, SRD_X, 4, WS_HC, 4 * MB)
    srd(A, SRD_O, 42, 0, 2048 * 2048)
    HR = XTRA
    MH = XTRA + 16

    def pre_extra():
        A(f"s_lshl_b32 s33, s{sCB}, 18")
        for tl in range(2):
            for P in range(2):
                A(f"buffer_load_dwordx4 {V(HR + (tl * 2 + P) * 4, 4)}, v{vT0}, s[{SRD_X}:{SRD_X+3}], s33 offen offset:{tl * 2048 + P * 1024}")
        srd(A, SRD_X, 4, WS_MH, 8192)
        row_token_addr(A, vt, 2)
        for tl in range(2):
            A(f"buffer_load_dword v{MH + tl}, v{vt}, s[{SRD_X}:{SRD_X+3}], 0 offen offset:{tl * 64}")

    gs_main(A, name, opts, 56, U, "A", 128, tf_tloads, after_first_loads=pre_extra, extra_after=6)

    A("s_waitcnt vmcnt(0) lgkmcnt(0)")
    A(f"s_lshl_b32 s36, s{sW}, 12")
    A(f"s_add_u32 s36, s36, {U * 8192}")
    vA, vO = RB[0], RB[0] + 4
    dlayout_lds_addr(A, vA, 36)
    rowtile_voffsets(A, vO, 7)
    T = vt
    for tl in range(2):
        for F in range(4):
            h = HR + (tl * 2 + F // 2) * 4 + (F % 2) * 2
            a = acc(F, tl).base
            for x in range(2):
                A(f"v_lshlrev_b32 v{T}, 16, v{h + x}")
                A(f"v_and_b32 v{T+1}, 0xffff0000, v{h + x}")
                A(f"v_add_f32 v{T}, v{T}, v{MH + tl}")
                A(f"v_add_f32 v{T+1}, v{T+1}, v{MH + tl}")
                A(f"v_add_f32 v{a + 2*x}, v{a + 2*x}, v{T}")
                A(f"v_add_f32 v{a + 2*x + 1}, v{a + 2*x + 1}, v{T+1}")
            A(f"v_cvt_pk_bf16_f32 v{a}, v{a}, v{a+1}")
            A(f"v_cvt_pk_bf16_f32 v{a+1}, v{a+2}, v{a+3}")
            A(f"ds_write_b64 v{vA + F}, {V(a, 2)} offset:{tl * 2048}")
    A(f"v_lshlrev_b32 v{T}, 4, v0")
    A(f"v_add_u32 v{T}, s36, v{T}")
    A("s_waitcnt lgkmcnt(0)")
    for m in range(4):
        A(f"ds_read_b128 {V(RB[1] + 4 * m, 4)}, v{T} offset:{m * 1024}")
    for m in range(4):
        A(f"s_waitcnt lgkmcnt({3 - m})")
        A(f"buffer_store_dwordx4 {V(RB[1] + 4 * m, 4)}, v{vO + m}, s[{SRD_O}:{SRD_O+3}], 0 offen")
    return finish(A, name, opts, END, TRING, U * 16)


def rowtile_voffsets(A, dst, colbytes_sgpr_shift, rowstride_shift=11):
    A(f"s_lshl_b32 s33, s{sTB}, 2")
    A(f"s_add_u32 s33, s33, s{sW}")
    A(f"s_lshl_b32 s33, s33, 16")
    if colbytes_sgpr_shift is not None:
        A(f"s_lshl_b32 s34, s{sCB}, {colbytes_sgpr_shift}")
        A(f"s_add_u32 s33, s33, s34")
    A(f"v_lshrrev_b32 v{vt}, 3, v0")
    A(f"v_lshlrev_b32 v{vt}, 11, v{vt}")
    A(f"v_add_u32 v{vt}, s33, v{vt}")
    A(f"v_and_b32 v{vt+1}, 7, v0")
    A(f"v_lshrrev_b32 v{vt+2}, 4, v0")
    A(f"v_xor_b32 v{vt+1}, v{vt+1}, v{vt+2}")
    A(f"v_lshl_add_u32 v{dst}, v{vt+1}, 4, v{vt}")
    A(f"v_xor_b32 v{vt+1}, 4, v{vt+1}")
    A(f"v_lshl_add_u32 v{dst+1}, v{vt+1}, 4, v{vt}")
    A(f"v_add_u32 v{dst+2}, {2 * 16384}, v{dst}")
    A(f"v_add_u32 v{dst+3}, {3 * 16384}, v{dst+1}")
    A(f"v_add_u32 v{dst+1}, 16384, v{dst+1}")


def dlayout_lds_addr(A, dst, base_sgpr):
    A(f"v_and_b32 v{vt}, 15, v0")
    A(f"v_lshrrev_b32 v{vt+1}, 1, v{vt}")
    A(f"v_lshrrev_b32 v{vt+2}, 5, v0")
    A(f"v_xor_b32 v{vt+1}, v{vt+1}, v{vt+2}")
    A(f"v_lshlrev_b32 v{vt+1}, 4, v{vt+1}")
    A(f"v_lshl_add_u32 v{vt+1}, v{vt}, 7, v{vt+1}")
    A(f"v_bfe_u32 v{vt+2}, v0, 4, 1")
    A(f"v_lshl_add_u32 v{vt+1}, v{vt+2}, 3, v{vt+1}")
    A(f"v_add_u32 v{dst}, s{base_sgpr}, v{vt+1}")
    for F in range(1, 4):
        A(f"v_xor_b32 v{dst+F}, {F << 5}, v{dst}")


def reduce_over_g(A, reg, tmp):
    A(f"v_mov_b32 v{tmp}, v{reg}")
    A("s_nop 1")
    A(f"v_permlane16_swap_b32 v{reg}, v{tmp}")
    A(f"v_add_f32 v{reg}, v{reg}, v{tmp}")
    A(f"v_mov_b32 v{tmp}, v{reg}")
    A("s_nop 1")
    A(f"v_permlane32_swap_b32 v{reg}, v{tmp}")
    A(f"v_add_f32 v{reg}, v{reg}, v{tmp}")


def row_token_addr(A, dst, shift):
    A(f"v_and_b32 v{dst}, 15, v0")
    A(f"s_lshl_b32 s33, s{sTB}, 2")
    A(f"s_add_u32 s33, s33, s{sW}")
    A(f"s_lshl_b32 s33, s33, 5")
    A(f"v_add_u32 v{dst}, s33, v{dst}")
    A(f"v_lshlrev_b32 v{dst}, {shift}, v{dst}")


def gen_k3(A, name="k3_wo_kernel", opts=None):
    opts = dict(opts or {})
    U = opts.get("U", 4)
    opts["tstride"] = STAGE_BYTES
    opts.setdefault("map", "tokxcd")
    kernel_begin(A, name)
    END = f"L_{name}_end"
    A("s_cmp_ge_u32 s2, 256")
    A(f"s_cbranch_scc1 {END}")
    stamp(A, opts, 0)
    A(f"s_load_dwordx2 s[4:5], s[0:1], {KA_WS}")
    A(f"s_load_dwordx2 s[40:41], s[0:1], {KA_WO}")
    A(f"s_load_dwordx2 s[42:43], s[0:1], {KA_X}")
    ids(A, opts)
    set_rot(A, opts, 16)
    tf_voffsets(A)
    w_setup(A, "B", 2048)
    MACC, WBF, XM, vWB, vX = XTRA, XTRA + 8, XTRA + 24, XTRA + 26, XTRA + 28
    XR = TRING
    WBL = U * 8192
    A("s_waitcnt lgkmcnt(0)")
    xstamp(A, opts, "karg")
    srd(A, SRD_T, 4, WS_O, 4 * MB)
    srd(A, SRD_W, 40, 0, 1024 * 2048)
    srd(A, SRD_X, 42, 0, 2048 * 2048)
    l2_sweep(A, opts, SRD_T, "tf", SRD_W, XTRA + 36)
    srd(A, SRD_O, 4, WS_WB, 4096)
    A(f"v_lshlrev_b32 v{vt}, 4, v0")
    A(f"s_lshl_b32 s33, s{sW}, 10")
    A(f"s_add_u32 m0, s33, {WBL}")
    A("s_nop 0")
    if opts.get("rot") is not None:
        A(f"s_lshl_b32 s34, s{sRot}, 8")
        A(f"v_add_u32 v{vt}, s33, v{vt}")
        A(f"v_add_u32 v{vt}, s34, v{vt}")
        A(f"v_and_b32 v{vt}, 4095, v{vt}")
        A(f"buffer_load_dwordx4 v{vt}, s[{SRD_O}:{SRD_O+3}], 0 offen lds")
    else:
        A(f"buffer_load_dwordx4 v{vt}, s[{SRD_O}:{SRD_O+3}], s33 offen lds")
    A(f"v_and_b32 v{vt}, 1, v0")
    A(f"v_lshlrev_b32 v{vt}, 6, v{vt}")
    A(f"v_lshrrev_b32 v{vt+1}, 4, v0")
    A(f"v_lshl_add_u32 v{vWB}, v{vt+1}, 4, v{vt}")
    A(f"v_add_u32 v{vWB}, {WBL}, v{vWB}")

    XL = WBL + 4096 + 256

    def late_loads():
        rowtile_voffsets(A, vX, 7)
        A(f"s_lshl_b32 s37, s{sW}, 12")
        A(f"s_add_u32 s37, s37, {XL}")
        for m in range(4):
            A(f"s_add_u32 m0, s37, {m * 1024}")
            A("s_nop 0")
            A(f"buffer_load_dwordx4 v{vX + m}, s[{SRD_X}:{SRD_X+3}], 0 offen lds")
        srd(A, SRD_X, 4, WS_XM, 8192)
        row_token_addr(A, vt, 2)
        for tl in range(2):
            A(f"buffer_load_dword v{XM + tl}, v{vt}, s[{SRD_X}:{SRD_X+3}], 0 offen offset:{tl * 64}")

    def wb_reads(par, imm):
        return [f"ds_read_b128 {V(WBF + par * 8 + s2 * 4, 4)}, v{vWB} offset:{imm + s2 * 128}" for s2 in range(2)]

    def pre_reads():
        for l in wb_reads(0, 0): A(l)

    def step_extra(par, s2, sl):
        return [mfma16(V(MACC + tl * 4, 4), V(WBF + par * 8 + s2 * 4, 4), tslot(sl, s2, tl)) for tl in range(2)]

    def stage_reads(par, sl):
        return wb_reads(par, (sl + 1) * 256)

    def iter_end():
        return [f"v_add_u32 v{vWB}, {U * 256}, v{vWB}"]

    def after_first():
        late_loads()
        for i in range(8):
            A(f"v_mov_b32 v{MACC + i}, 0")

    gs_main(A, name, opts, 16, U, "B", 2048, tf_tloads, step_extra=step_extra, stage_reads=stage_reads,
            iter_end=iter_end, pre_reads=pre_reads, after_first_loads=after_first, extra_after=6)

    A("s_waitcnt vmcnt(0) lgkmcnt(0)")
    dlayout_lds_addr(A, vX, 37)
    for tl in range(2):
        for F in range(4):
            A(f"ds_read_b64 {V(XR + (tl * 4 + F) * 2, 2)}, v{vX + F} offset:{tl * 2048}")
    srd(A, SRD_O, 4, WS_MH, 8192)
    srd(A, SRD_T, 4, WS_HC, 4 * MB)
    srd(A, SRD_X, 4, WS_VP, 2048 * 64)
    A(f"s_lshl_b32 s34, s{sCB}, 18")
    vVP, vMH = XTRA + 32, XTRA + 33
    row_token_addr(A, vVP, 6)
    A(f"v_lshrrev_b32 v{vMH}, 4, v{vVP}")
    A(f"s_lshl_b32 s35, s{sCB}, 2")
    T = vt
    A("s_waitcnt lgkmcnt(0)")
    CP = RB[1]
    for tl in range(2):
        m = XM + tl
        A(f"v_add_f32 v{m}, v{m}, v{MACC + tl * 4}")
        A(f"v_add_f32 v{m}, v{m}, v{MACC + tl * 4 + 1}")
        ss = T + 3
        A(f"v_mov_b32 v{ss}, 0")
        for F in range(4):
            a = acc(F, tl).base
            x = XR + (tl * 4 + F) * 2
            dc = CP + tl * 8 + (F // 2) * 4 + (F % 2) * 2
            for q in range(2):
                A(f"v_lshlrev_b32 v{T}, 16, v{x + q}")
                A(f"v_and_b32 v{T+1}, 0xffff0000, v{x + q}")
                A(f"v_add_f32 v{a + 2*q}, v{a + 2*q}, v{T}")
                A(f"v_add_f32 v{a + 2*q + 1}, v{a + 2*q + 1}, v{T+1}")
                A(f"v_sub_f32 v{a + 2*q}, v{a + 2*q}, v{m}")
                A(f"v_sub_f32 v{a + 2*q + 1}, v{a + 2*q + 1}, v{m}")
                A(f"v_fmac_f32 v{ss}, v{a + 2*q}, v{a + 2*q}")
                A(f"v_fmac_f32 v{ss}, v{a + 2*q + 1}, v{a + 2*q + 1}")
                A(f"v_cvt_pk_bf16_f32 v{dc + q}, v{a + 2*q}, v{a + 2*q + 1}")
        for P in range(2):
            A(f"buffer_store_dwordx4 {V(CP + tl * 8 + P * 4, 4)}, v{vT0}, s[{SRD_T}:{SRD_T+3}], s34 offen offset:{tl * 2048 + P * 1024}")
        A(f"buffer_store_dword v{m}, v{vMH}, s[{SRD_O}:{SRD_O+3}], 0 offen offset:{tl * 64}")
        reduce_over_g(A, ss, T + 4)
        A(f"buffer_store_dword v{ss}, v{vVP}, s[{SRD_X}:{SRD_X+3}], s35 offen offset:{tl * 16 * 64}")
        A("s_nop 1")
    return finish(A, name, opts, END, TRING + 16, U * 16)


QSCALE = (32 ** -0.5) * 1.4426950408889634


def gen_k1(A, name="k1_qkv_kernel", opts=None):
    opts = dict(opts or {})
    U = opts.get("U", 4)
    opts["tstride"] = 128
    opts.setdefault("rot", "zero")
    kernel_begin(A, name)
    END = f"L_{name}_end"
    A("s_cmp_ge_u32 s2, 256")
    A(f"s_cbranch_scc1 {END}")
    stamp(A, opts, 0)
    A(f"s_load_dwordx2 s[4:5], s[0:1], {KA_WS}")
    A(f"s_load_dwordx4 s[40:43], s[0:1], {KA_X}")
    A(f"s_load_dwordx4 s[48:51], s[0:1], {KA_WK}")
    A(f"s_load_dwordx2 s[52:53], s[0:1], {KA_WO}")
    ids(A, opts)
    set_rot(A, opts, 16)
    KVL = U * 8192
    QOFF = [61, 62, 63, 39]
    KVACC, CS, ONES, ST, vKV = XTRA, XTRA + 8, XTRA + 28, XTRA + 32, XTRA + 36
    KVF = TRING
    SUMA, SQA = TRING + 16, TRING + 24
    TB = TRING + 32
    WROW = TRING + 64
    vXm, vXr = TRING + 72, TRING + 76
    NV1 = TRING + 80
    XL = KVL + 32768
    A(f"s_lshl_b32 s33, s{sTB}, 2")
    A(f"s_add_u32 s33, s33, s{sW}")
    A(f"s_lshl_b32 s33, s33, 16")
    A(f"v_lshrrev_b32 v{vt}, 3, v0")
    A(f"v_lshlrev_b32 v{vt}, 11, v{vt}")
    A(f"v_add_u32 v{vt}, s33, v{vt}")
    A(f"v_and_b32 v{vt+1}, 7, v0")
    A(f"v_lshrrev_b32 v{vt+2}, 4, v0")
    A(f"v_xor_b32 v{vt+1}, v{vt+1}, v{vt+2}")
    A(f"v_lshl_add_u32 v{vXm}, v{vt+1}, 4, v{vt}")
    A(f"v_xor_b32 v{vt+1}, 4, v{vt+1}")
    A(f"v_lshl_add_u32 v{vXm+1}, v{vt+1}, 4, v{vt}")
    A(f"v_add_u32 v{vXm+2}, {2 * (16384 - 1024)}, v{vXm}")
    A(f"v_add_u32 v{vXm+3}, {3 * (16384 - 1024)}, v{vXm+1}")
    A(f"v_add_u32 v{vXm+1}, {16384 - 1024}, v{vXm+1}")
    A(f"s_lshl_b32 s60, s{sW}, 12")
    A(f"s_add_u32 s60, s60, {XL}")
    A(f"v_and_b32 v{vt}, 15, v0")
    A(f"v_lshrrev_b32 v{vt+1}, 1, v{vt}")
    A(f"v_lshrrev_b32 v{vt+2}, 4, v0")
    A(f"v_xor_b32 v{vt+1}, v{vt+1}, v{vt+2}")
    A(f"v_lshlrev_b32 v{vt+1}, 4, v{vt+1}")
    A(f"v_lshl_add_u32 v{vXr}, v{vt}, 7, v{vt+1}")
    A(f"v_add_u32 v{vXr}, s60, v{vXr}")
    A(f"v_xor_b32 v{vXr+1}, 64, v{vXr}")

    def x_dma(slot):
        out = [[f"s_add_u32 m0, s60, {slot * 16384}", "s_nop 0",
                f"buffer_load_dwordx4 v{vXm}, s[{SRD_T}:{SRD_T+3}], s{sToff} offen lds"]]
        for m in range(1, 4):
            out.append([f"buffer_load_dwordx4 v{vXm+m}, s[{SRD_T}:{SRD_T+3}], s{sToff} offen offset:{m * 1024} lds"])
        return out

    def x_frag(par, s2, tl):
        return V(TB + par * 16 + s2 * 8 + tl * 4, 4)

    def x_reads(par, slot):
        return [f"ds_read_b128 {x_frag(par, s2, tl)}, v{vXr + s2} offset:{slot * 16384 + tl * 2048}" for s2 in range(2) for tl in range(2)]

    tlds = dict(dma=x_dma, reads=x_reads, frag=x_frag)
    w_setup(A, "N", 2048, rotf=True)
    A("s_waitcnt lgkmcnt(0)")
    xstamp(A, opts, "karg")
    srd(A, SRD_T, 40, 0, 2048 * 2048)
    srd(A, SRD_W, 42, 0, 1024 * 2048)
    l2_sweep(A, opts, SRD_T, "rows", SRD_W, XTRA + 38)
    SKIPKV = f"L_{name}_skipkv"
    A(f"s_cmp_ge_u32 s{sCB}, 4")
    A(f"s_cbranch_scc1 {SKIPKV}")
    A(f"s_cmp_lt_u32 s{sCB}, 2")
    A("s_cselect_b32 s46, s48, s50")
    A("s_cselect_b32 s47, s49, s51")
    srd(A, SRD_X, 46, 0, 1024 * 64)
    A(f"v_lshrrev_b32 v{vt}, 1, v0")
    A(f"v_and_b32 v{vt+1}, 0x13, v{vt}")
    A(f"v_bfe_u32 v{vt+2}, v{vt}, 2, 1")
    A(f"v_lshl_or_b32 v{vt+1}, v{vt+2}, 3, v{vt+1}")
    A(f"v_bfe_u32 v{vt+2}, v{vt}, 3, 1")
    A(f"v_lshl_or_b32 v{vt+1}, v{vt+2}, 2, v{vt+1}")
    A(f"v_lshlrev_b32 v{vt+1}, 6, v{vt+1}")
    A(f"v_and_b32 v{vt+2}, 1, v0")
    A(f"v_lshl_add_u32 v{vt+1}, v{vt+2}, 4, v{vt+1}")
    A(f"s_and_b32 s33, s{sCB}, 1")
    A(f"s_lshl_b32 s33, s33, 5")
    A(f"v_add_u32 v{vt+1}, s33, v{vt+1}")
    A(f"s_lshl_b32 s34, s{sW}, 13")
    A(f"s_add_u32 s34, s34, {KVL}")
    A(f"s_lshl_b32 s35, s{sW}, 3")
    A(f"s_lshl_b32 s37, s{sRot}, 1")
    A(f"s_add_u32 s35, s35, s37")
    for m in range(8):
        A(f"s_add_u32 m0, s34, {m * 1024}")
        A(f"s_add_u32 s36, s35, {m}")
        A(f"s_and_b32 s36, s36, 31")
        A(f"s_lshl_b32 s36, s36, 11")
        A(f"buffer_load_dwordx4 v{vt+1}, s[{SRD_X}:{SRD_X+3}], s36 offen lds")
    A.label(SKIPKV)
    A(f"v_lshrrev_b32 v{vt}, 4, v0")
    A(f"v_lshrrev_b32 v{vt+1}, 1, v{vt}")
    A(f"v_lshlrev_b32 v{vt+1}, 4, v{vt+1}")
    A(f"v_and_b32 v{vt}, 1, v{vt}")
    A(f"v_lshl_add_u32 v{vt+1}, v{vt}, 2, v{vt+1}")
    A(f"v_bfe_u32 v{vt}, v0, 2, 2")
    A(f"v_add_u32 v{vt+1}, v{vt+1}, v{vt}")
    A(f"v_lshlrev_b32 v{vt+1}, 5, v{vt+1}")
    A(f"v_and_b32 v{vt}, 3, v0")
    A(f"v_lshl_add_u32 v{vKV}, v{vt}, 3, v{vt+1}")
    A(f"v_add_u32 v{vKV}, {KVL}, v{vKV}")

    def after_first():
        srd(A, SRD_X, 52, 0, 1024 * 2048)
        A(f"s_lshl_b32 s54, s2, 2")
        A(f"s_add_u32 s54, s54, s{sW}")
        A(f"s_lshl_b32 s33, s54, 11")
        A(f"v_lshlrev_b32 v{vt}, 5, v0")
        A(f"buffer_load_dwordx4 {V(WROW, 4)}, v{vt}, s[{SRD_X}:{SRD_X+3}], s33 offen")
        A(f"buffer_load_dwordx4 {V(WROW + 4, 4)}, v{vt}, s[{SRD_X}:{SRD_X+3}], s33 offen offset:16")
        for i in range(8 + 20):
            A(f"v_mov_b32 v{KVACC + i}, 0")
        for i in range(4):
            A(f"v_mov_b32 v{ONES + i}, 0x3f803f80")
        for i in range(16):
            A(f"v_mov_b32 v{SUMA + i}, 0")

    def wbar_job():
        A(f"v_mov_b32 v{vt}, 0")
        for i in range(8):
            A(f"v_dot2c_f32_bf16 v{vt}, v{WROW + i}, v{ONES}")
        A("s_nop 2")
        for sh in (8, 4, 2, 1):
            A(f"v_add_f32_dpp v{vt}, v{vt}, v{vt} row_ror:{sh} row_mask:0xf bank_mask:0xf")
            A("s_nop 1")
        reduce_over_g(A, vt, vt + 1)
        A(f"v_mul_f32 v{vt}, {f32hex(1.0 / 1024)}, v{vt}")
        A(f"v_cvt_pk_bf16_f32 v{vt+1}, v{vt}, v{vt}")
        A(f"v_lshlrev_b32 v{vt+2}, 16, v{vt+1}")
        A(f"v_sub_f32 v{vt+2}, v{vt}, v{vt+2}")
        A(f"v_cvt_pk_bf16_f32 v{vt+2}, v{vt+2}, v{vt+2}")
        A("s_lshr_b32 s33, s54, 5"); A("s_lshl_b32 s33, s33, 7")
        A("s_bfe_u32 s34, s54, 0x10004"); A("s_lshl_b32 s34, s34, 5"); A("s_add_u32 s33, s33, s34")
        A("s_bfe_u32 s34, s54, 0x10002"); A("s_lshl_b32 s34, s34, 4"); A("s_add_u32 s33, s33, s34")
        A("s_bfe_u32 s34, s54, 0x10003"); A("s_lshl_b32 s34, s34, 3"); A("s_add_u32 s33, s33, s34")
        A("s_and_b32 s34, s54, 3"); A("s_lshl_b32 s34, s34, 1"); A("s_add_u32 s33, s33, s34")
        srd(A, SRD_X, 4, WS_WB, 4096)
        A(f"v_mov_b32 v{vt+3}, 0")
        A(f"buffer_store_short v{vt+1}, v{vt+3}, s[{SRD_X}:{SRD_X+3}], s33 offen")
        A(f"buffer_store_short v{vt+2}, v{vt+3}, s[{SRD_X}:{SRD_X+3}], s33 offen offset:64")

    def kv_reads(par, imm):
        return [f"ds_read_b64_tr_b16 {V(KVF + par * 8 + s2 * 4 + 2 * i, 2)}, v{vKV} offset:{imm + s2 * 1024 + i * 256}"
                for s2 in range(2) for i in range(2)]

    def pre_reads():
        for l in kv_reads(0, 0): A(l)

    def stage_reads(par, sl):
        return kv_reads(par, (sl + 1) * 2048)

    def step_extra(par, s2, sl):
        xm = []
        kvf = V(KVF + par * 8 + s2 * 4, 4)
        for tl in range(2):
            xm.append(mfma16(V(KVACC + tl * 4, 4), kvf, x_frag(par, s2, tl)))
        xm.append(mfma16(V(CS, 4), wfrag(par, s2, 0), V(ONES, 4)))
        xm.append(mfma16(V(CS + 16, 4), kvf, V(ONES, 4)))
        for tl in range(2):
            xm.append(mfma16(V(SUMA + tl * 4, 4), V(ONES, 4), x_frag(par, s2, tl)))
            xm.append(mfma16(V(SQA + tl * 4, 4), x_frag(par, s2, tl), x_frag(par, s2, tl)))
        return xm

    def iter_end():
        return [f"v_add_u32 v{vKV}, {U * 2048}, v{vKV}"]

    gs_main(A, name, opts, 16, U, "N", 2048, None, step_extra=step_extra, stage_reads=stage_reads,
            iter_end=iter_end, pre_reads=pre_reads, after_first_loads=after_first, extra_after=2, tlds=tlds)

    A("s_waitcnt vmcnt(0) lgkmcnt(0)")
    T = vt
    CSL = XL + U * 16384
    A(f"v_lshrrev_b32 v{T}, 4, v0")
    A(f"v_lshlrev_b32 v{T}, 4, v{T}")
    A(f"s_lshl_b32 s33, s{sW}, 6")
    A(f"s_add_u32 s33, s33, {CSL}")
    A(f"v_add_u32 v{T+1}, s33, v{T}")
    A(f"ds_write_b128 v{T+1}, {V(CS, 4)}")
    A("s_waitcnt lgkmcnt(0)")
    A("s_barrier")
    for F in range(4):
        A(f"s_add_u32 s33, s{sW}, {F}")
        A(f"s_and_b32 s33, s33, 3")
        A(f"s_lshl_b32 s33, s33, 6")
        A(f"s_add_u32 s33, s33, {CSL}")
        A(f"v_add_u32 v{T+1}, s33, v{T}")
        A(f"ds_read_b128 {V(CS + 4 * F, 4)}, v{T+1}")
    MR = RB[0]
    A(f"v_and_b32 v{T}, 3, v0")
    A(f"v_bfe_u32 v{T+1}, v0, 2, 2")
    A(f"v_lshrrev_b32 v{T+2}, 4, v0")
    A(f"v_cmp_eq_u32 s[34:35], v{T+1}, v{T+2}")
    A(f"v_cmp_eq_u32 s[36:37], 1, v{T}")
    A(f"v_cmp_eq_u32 s[38:39], 2, v{T}")
    A(f"v_cmp_eq_u32 s[46:47], 3, v{T}")
    for tl in range(2):
        q = SQA + tl * 4
        A(f"v_cndmask_b32 v{ST + 2 + tl}, v{q}, v{q+1}, s[36:37]")
        A(f"v_cndmask_b32 v{ST + 2 + tl}, v{ST + 2 + tl}, v{q+2}, s[38:39]")
        A(f"v_cndmask_b32 v{ST + 2 + tl}, v{ST + 2 + tl}, v{q+3}, s[46:47]")
        A(f"v_cndmask_b32 v{ST + 2 + tl}, 0, v{ST + 2 + tl}, s[34:35]")
        A(f"v_mov_b32 v{ST + tl}, v{SUMA + tl * 4}")
    for tl in range(2):
        reduce_over_g(A, ST + 2 + tl, T)
        A(f"v_mul_f32 v{MR + tl}, {f32hex(1.0 / 1024)}, v{ST + tl}")
        A(f"v_mul_f32 v{T}, {f32hex(1.0 / 1024)}, v{ST + 2 + tl}")
        A(f"v_fma_f32 v{T}, -v{MR + tl}, v{MR + tl}, v{T}")
        A(f"v_add_f32 v{T}, {f32hex(EPS)}, v{T}")
        A(f"v_rsq_f32 v{MR + 2 + tl}, v{T}")
    srd(A, SRD_X, 4, WS_XM, 8192)
    row_token_addr(A, T, 2)
    for tl in range(2):
        A(f"buffer_store_dword v{MR + tl}, v{T}, s[{SRD_X}:{SRD_X+3}], 0 offen offset:{tl * 64}")
    srd(A, SRD_O, 4, WS_Q, 4 * MB)
    vQ = MR + 4
    A(f"v_lshrrev_b32 v{T}, 5, v0")
    A(f"v_lshlrev_b32 v{vQ}, 9, v{T}")
    A(f"v_bfe_u32 v{T}, v0, 4, 1")
    A(f"v_lshl_add_u32 v{vQ}, v{T}, 3, v{vQ}")
    A(f"v_and_b32 v{T}, 15, v0")
    A(f"v_lshl_add_u32 v{vQ}, v{T}, 4, v{vQ}")
    A(f"s_lshl_b32 s33, s{sTB}, 2")
    A(f"s_add_u32 s33, s33, s{sW}")
    A(f"s_lshl_b32 s34, s{sCB}, 7")
    A(f"s_add_u32 s34, s34, s33")
    A(f"s_lshl_b32 s34, s34, 11")
    for F in range(4):
        A(f"s_add_u32 s35, s{sW}, {F}")
        A(f"s_and_b32 s35, s35, 3")
        A(f"s_lshr_b32 s36, s35, 1")
        A(f"s_lshl_b32 s36, s36, 17")
        A(f"s_and_b32 s35, s35, 1")
        A(f"s_lshl_b32 s35, s35, 10")
        A(f"s_add_u32 s35, s35, s36")
        A(f"s_add_u32 s{QOFF[F]}, s34, s35")
    SC = MR + 6
    for tl in range(2):
        A(f"v_mul_f32 v{SC + tl}, {f32hex(QSCALE)}, v{MR + 2 + tl}")
    QN = MR + 10
    A("s_waitcnt lgkmcnt(0)")
    for tl in range(2):
        for F in range(4):
            a = acc(F, tl).base
            n = QN + tl * 4 + F
            for r in range(4):
                A(f"v_fma_f32 v{a + r}, -v{MR + tl}, v{CS + F * 4 + r}, v{a + r}")
                A(f"v_mul_f32 v{a + r}, v{SC + tl}, v{a + r}")
            A(f"v_mul_f32 v{n}, v{a}, v{a}")
            for r in range(1, 4):
                A(f"v_fmac_f32 v{n}, v{a + r}, v{a + r}")
            A(f"v_cvt_pk_bf16_f32 v{a}, v{a}, v{a+1}")
            A(f"v_cvt_pk_bf16_f32 v{a+1}, v{a+2}, v{a+3}")
            A(f"buffer_store_dwordx2 {V(a, 2)}, v{vQ}, s[{SRD_O}:{SRD_O+3}], s{QOFF[F]} offen offset:{tl * 256}")
    A(f"s_and_b32 s35, s{sW}, 1")
    A(f"s_cmp_eq_u32 s35, 1")
    A(f"s_cselect_b64 s[36:37], -1, 0")
    for tl in range(2):
        n = QN + tl * 4
        A(f"v_cndmask_b32 v{T}, v{n+1}, v{n+3}, s[36:37]")
        A(f"v_cndmask_b32 v{T+1}, v{n+3}, v{n+1}, s[36:37]")
        A(f"v_add_f32 v{n}, v{n}, v{T}")
        A(f"v_add_f32 v{n+1}, v{n+2}, v{T+1}")
    for tl in range(2):
        for x in range(2):
            reduce_over_g(A, QN + tl * 4 + x, T)
    A(f"v_max_f32 v{QN}, v{QN}, v{QN+1}")
    A(f"v_max3_f32 v{QN}, v{QN}, v{QN+4}, v{QN+5}")
    for sh in (8, 4, 2, 1):
        A("s_nop 1")
        A(f"v_max_f32_dpp v{QN}, v{QN}, v{QN} row_ror:{sh} row_mask:0xf bank_mask:0xf")
    srd(A, SRD_X, 4, WS_QN, 4096)
    A(f"s_lshl_b32 s35, s{sTB}, 4")
    A(f"s_add_u32 s35, s35, s{sCB}")
    A(f"s_lshl_b32 s35, s35, 2")
    A(f"s_add_u32 s35, s35, s{sW}")
    A(f"s_lshl_b32 s35, s35, 2")
    A(f"v_mov_b32 v{T}, 0")
    A(f"buffer_store_dword v{QN}, v{T}, s[{SRD_X}:{SRD_X+3}], s35 offen")
    DONE = f"L_{name}_done"
    ISV = f"L_{name}_isv"
    NRM = f"L_{name}_nrm"
    A(f"s_cmp_ge_u32 s{sCB}, 4")
    A(f"s_cbranch_scc1 {DONE}")
    srd(A, SRD_O, 4, WS_KV, 256 * 1024)
    NS = MR + 8
    for tl in range(2):
        a = KVACC + tl * 4
        A(f"v_mov_b32 v{NS + tl}, 0")
        for r in range(4):
            A(f"v_fma_f32 v{a + r}, -v{MR + tl}, v{CS + 16 + r}, v{a + r}")
            A(f"v_mul_f32 v{a + r}, v{MR + 2 + tl}, v{a + r}")
            A(f"v_fmac_f32 v{NS + tl}, v{a + r}, v{a + r}")
        A(f"v_cvt_pk_bf16_f32 v{a}, v{a}, v{a+1}")
        A(f"v_cvt_pk_bf16_f32 v{a+1}, v{a+2}, v{a+3}")
    A(f"s_lshl_b32 s33, s33, 12")
    A(f"s_cmp_ge_u32 s{sCB}, 2")
    A(f"s_cbranch_scc1 {ISV}")
    A(f"s_lshl_b32 s34, s{sCB}, 10")
    A(f"s_add_u32 s33, s33, s34")
    for tl in range(2):
        A(f"buffer_store_dwordx2 {V(KVACC + tl * 4, 2)}, v{vQ}, s[{SRD_O}:{SRD_O+3}], s33 offen offset:{tl * 256}")
    A(f"s_branch {NRM}")
    A.label(ISV)
    A(f"s_and_b32 s34, s{sCB}, 1")
    A(f"s_lshl_b32 s34, s34, 8")
    A(f"s_add_u32 s33, s33, s34")
    A(f"s_add_u32 s33, s33, 2048")
    A(f"v_bfe_u32 v{T}, v0, 2, 1")
    A(f"v_lshlrev_b32 v{T+1}, 9, v{T}")
    A(f"v_lshrrev_b32 v{T}, 4, v0")
    A(f"v_lshl_add_u32 v{T+1}, v{T}, 6, v{T+1}")
    A(f"v_bfe_u32 v{T}, v0, 3, 1")
    A(f"v_lshl_add_u32 v{T+1}, v{T}, 3, v{T+1}")
    A(f"v_and_b32 v{T}, 3, v0")
    A(f"v_lshl_add_u32 v{T+1}, v{T}, 1, v{T+1}")
    for tl in range(2):
        a = KVACC + tl * 4
        for r in range(4):
            op = "buffer_store_short" if r % 2 == 0 else "buffer_store_short_d16_hi"
            A(f"{op} v{a + r // 2}, v{T+1}, s[{SRD_O}:{SRD_O+3}], s33 offen offset:{tl * 1024 + r * 16}")
    A.label(NRM)
    for tl in range(2):
        reduce_over_g(A, NS + tl, T + 2)
    A(f"v_max_f32 v{NS}, v{NS}, v{NS+1}")
    A("s_nop 1")
    for sh in (8, 4, 2, 1):
        A(f"v_max_f32_dpp v{NS}, v{NS}, v{NS} row_ror:{sh} row_mask:0xf bank_mask:0xf")
        A("s_nop 1")
    srd(A, SRD_X, 4, WS_NRM, 1024)
    A(f"s_lshl_b32 s33, s{sCB}, 6")
    A(f"s_lshl_b32 s34, s{sTB}, 2")
    A(f"s_add_u32 s33, s33, s34")
    A(f"s_add_u32 s33, s33, s{sW}")
    A(f"s_lshl_b32 s33, s33, 2")
    A(f"v_mov_b32 v{T}, 0")
    A(f"buffer_store_dword v{NS}, v{T}, s[{SRD_X}:{SRD_X+3}], s33 offen")
    A.label(DONE)
    wbar_job()
    return finish(A, name, opts, END, NV1)
```

```python
from gen_common import *

sW, sTB, sCB = 24, 25, 26
sToff, sWoff, sM0b = 27, 28, 29
sRot, sTraw, sWraw, sTcnt, sWcnt = 55, 56, 57, 58, 59
SRD_T, SRD_W, SRD_O, SRD_X = 8, 12, 16, 20
vT0, vT1 = 1, 2
vW0, vW1 = 3, 4
vR = 6
vt = 10
ACC = 16
RB = [48, 64]
XTRA = 80
TRING = 128


def acc(F, tl):
    return V(ACC + (F * 2 + tl) * 4, 4)


def tslot(stage_slot, s2, tl):
    return V(TRING + stage_slot * 16 + s2 * 8 + tl * 4, 4)


def ids(A, opts=None):
    A(f"v_lshrrev_b32 v{vt}, 6, v0")
    A(f"v_and_b32 v0, 63, v0")
    A(f"s_and_b32 s3, s2, 7")
    A(f"v_readfirstlane_b32 s{sW}, v{vt}")
    A(f"s_lshr_b32 s30, s2, 3")
    A(f"s_lshr_b32 s{sTB}, s3, 1")
    A(f"s_lshl_b32 s{sTB}, s{sTB}, 2")
    A(f"s_and_b32 s33, s30, 3")
    A(f"s_add_u32 s{sTB}, s{sTB}, s33")
    A(f"s_and_b32 s{sCB}, s3, 1")
    A(f"s_lshl_b32 s{sCB}, s{sCB}, 3")
    A(f"s_lshr_b32 s33, s30, 2")
    A(f"s_add_u32 s{sCB}, s{sCB}, s33")
    if opts and opts.get("map") == "same":
        A(f"s_mov_b32 s{sTB}, 0"); A(f"s_mov_b32 s{sCB}, 0")
    if opts and opts.get("map") == "sametb":
        A(f"s_mov_b32 s{sTB}, 0")
    if opts and opts.get("map") == "samecb":
        A(f"s_mov_b32 s{sCB}, 0")
    if opts and opts.get("map") == "tokxcd":
        A(f"s_lshl_b32 s{sTB}, s3, 1"); A(f"s_and_b32 s33, s30, 1"); A(f"s_add_u32 s{sTB}, s{sTB}, s33")
        A(f"s_lshr_b32 s{sCB}, s30, 1")
    if opts and opts.get("map") == "cbx":
        A(f"s_xor_b32 s{sCB}, s{sCB}, 5")
    if opts and opts.get("map") == "rowmajor":
        A(f"s_lshr_b32 s{sTB}, s2, 4"); A(f"s_and_b32 s{sCB}, s2, 15")
    if opts and opts.get("map") == "m8x4":
        A(f"s_lshr_b32 s{sTB}, s3, 2"); A(f"s_lshl_b32 s{sTB}, s{sTB}, 3"); A(f"s_and_b32 s33, s30, 7"); A(f"s_add_u32 s{sTB}, s{sTB}, s33")
        A(f"s_and_b32 s{sCB}, s3, 3"); A(f"s_lshl_b32 s{sCB}, s{sCB}, 2"); A(f"s_lshr_b32 s33, s30, 3"); A(f"s_add_u32 s{sCB}, s{sCB}, s33")


def set_rot(A, opts, nstages):
    r = opts.get("rot")
    if r is None:
        return
    if r == "cb":
        A(f"s_and_b32 s{sRot}, s{sCB}, 15")
    elif r == "tb":
        A(f"s_and_b32 s{sRot}, s{sTB}, 15")
    elif r == "cbtb":
        A(f"s_add_u32 s{sRot}, s{sCB}, s{sTB}"); A(f"s_and_b32 s{sRot}, s{sRot}, 15")
    elif r == "cb7":
        A(f"s_and_b32 s{sRot}, s{sCB}, 7"); A(f"s_mul_i32 s{sRot}, s{sRot}, {opts.get('rotk', 1)}")
    elif r == "tb3":
        A(f"s_and_b32 s{sRot}, s{sTB}, 3"); A(f"s_mul_i32 s{sRot}, s{sRot}, {opts.get('rotk', 1)}")
    elif r == "idx":
        A(f"s_lshr_b32 s{sRot}, s2, 3"); A(f"s_mul_i32 s{sRot}, s{sRot}, {opts.get('rotk', 1)}"); A(f"s_lshr_b32 s{sRot}, s{sRot}, {opts.get('rotsh', 0)}")
    elif r == "ct":
        a, b = opts.get("rota", 2), opts.get("rotb", 4)
        A(f"s_and_b32 s33, s{sCB}, 7"); A(f"s_mul_i32 s33, s33, {a}")
        A(f"s_and_b32 s34, s{sTB}, 3"); A(f"s_mul_i32 s34, s34, {b}")
        A(f"s_add_u32 s{sRot}, s33, s34")
        for _ in range((7 * a + 3 * b) // nstages):
            A(f"s_cmp_ge_u32 s{sRot}, {nstages}"); A(f"s_cselect_b32 s33, {nstages}, 0"); A(f"s_sub_u32 s{sRot}, s{sRot}, s33")
    elif r == "zero":
        A(f"s_mov_b32 s{sRot}, 0")


def l2_sweep(A, opts, srd_t, tok_kind, srd_w, dummy):
    if not opts.get("sweep"):
        return 0
    A(f"s_lshr_b32 s33, s2, 3")
    A(f"s_lshl_b32 s33, s33, 2")
    A(f"s_add_u32 s33, s33, s{sW}")
    A(f"s_lshl_b32 s33, s33, 6")
    A(f"v_add_u32 v{vt}, s33, v0")
    A(f"s_and_b32 s34, s2, 7")
    A(f"v_lshrrev_b32 v{vt+1}, 3, v{vt}")
    A(f"v_lshlrev_b32 v{vt+1}, 11, v{vt+1}")
    A(f"v_and_b32 v{vt+2}, 7, v{vt}")
    A(f"v_lshl_add_u32 v{vt+1}, v{vt+2}, 7, v{vt+1}")
    A(f"s_and_b32 s35, s34, 1")
    A(f"s_lshl_b32 s35, s35, 10")
    A(f"buffer_load_dword v{dummy}, v{vt+1}, s[{srd_w}:{srd_w+3}], s35 offen")
    A(f"s_lshr_b32 s34, s34, 1")
    if tok_kind == "rows":
        A(f"v_lshlrev_b32 v{vt+1}, 7, v{vt}")
        A(f"s_lshl_b32 s35, s34, 20")
    else:
        A(f"v_lshrrev_b32 v{vt+1}, 9, v{vt}")
        A(f"v_lshlrev_b32 v{vt+1}, 18, v{vt+1}")
        A(f"v_and_b32 v{vt+2}, 511, v{vt}")
        A(f"v_lshl_add_u32 v{vt+1}, v{vt+2}, 7, v{vt+1}")
        A(f"s_lshl_b32 s35, s34, 16")
    A(f"buffer_load_dword v{dummy}, v{vt+1}, s[{srd_t}:{srd_t+3}], s35 offen")
    return 2


def tf_voffsets(A):
    A(f"s_lshl_b32 s33, s{sTB}, 2")
    A(f"s_add_u32 s33, s33, s{sW}")
    A(f"s_lshl_b32 s33, s33, 12")
    A(f"v_lshlrev_b32 v{vT0}, 4, v0")
    A(f"v_add_u32 v{vT0}, s33, v{vT0}")


def w_setup(A, perm, rowstride, rotf=False, packed=False):
    A(f"v_lshrrev_b32 v{vt}, 3, v0")
    A(f"s_lshl_b32 s33, s{sW}, 4")
    A(f"v_add_u32 v{vt}, s33, v{vt}")
    A(f"s_mov_b32 s34, {rowstride}")
    A(f"v_mul_lo_u32 v{vt}, v{vt}, s34")
    A(f"s_lshl_b32 s33, s{sCB}, 7")
    A(f"v_add_u32 v{vt}, s33, v{vt}")
    A(f"v_and_b32 v{vt+1}, 7, v0")
    if perm in "AB":
        A(f"v_bfe_u32 v{vt+2}, v0, 4, 2")
        A(f"v_lshlrev_b32 v{vt+2}, 1, v{vt+2}")
        A(f"v_xor_b32 v{vt+1}, v{vt+1}, v{vt+2}")
        A(f"v_lshl_add_u32 v{vW0}, v{vt+1}, 4, v{vt}")
        A(f"v_add_u32 v{vW1}, {8 * rowstride - 1024}, v{vW0}")
    else:
        A(f"v_bfe_u32 v{vt+2}, v0, 4, 1")
        A(f"v_lshlrev_b32 v{vt+2}, 1, v{vt+2}")
        A(f"v_xor_b32 v{vt+1}, v{vt+1}, v{vt+2}")
        A(f"v_lshl_add_u32 v{vW0}, v{vt+1}, 4, v{vt}")
        A(f"v_xor_b32 v{vt+1}, 4, v{vt+1}")
        A(f"v_lshl_add_u32 v{vW1}, v{vt+1}, 4, v{vt}")
        A(f"v_add_u32 v{vW1}, {8 * rowstride - 1024}, v{vW1}")
    A(f"s_lshl_b32 s{sM0b}, s{sW}, 11")
    if packed:
        A(f"s_mul_i32 s33, s{sCB}, {56 * 8192}")
        A(f"s_add_u32 s33, s33, s{sM0b}")
        A(f"v_lshlrev_b32 v{vW0}, 4, v0")
        A(f"v_add_u32 v{vW0}, s33, v{vW0}")
        A(f"v_mov_b32 v{vW1}, v{vW0}")
    A(f"v_lshrrev_b32 v{vt}, 4, v0")
    A(f"v_bfe_u32 v{vt+1}, v0, 2, 2")
    if perm == "A":
        A(f"v_lshl_add_u32 v{vt+2}, v{vt}, 2, v{vt+1}")
    elif perm == "B":
        A(f"v_lshrrev_b32 v{vt+2}, 1, v{vt}")
        A(f"v_lshlrev_b32 v{vt+2}, 4, v{vt+2}")
        A(f"v_and_b32 v{vt+3}, 1, v{vt}")
        A(f"v_lshl_add_u32 v{vt+2}, v{vt+3}, 2, v{vt+2}")
        A(f"v_add_u32 v{vt+2}, v{vt+2}, v{vt+1}")
    else:
        A(f"v_lshl_add_u32 v{vt+2}, v{vt}, 3, v{vt+1}")
    A(f"v_lshlrev_b32 v{vt+2}, 7, v{vt+2}")
    A(f"v_and_b32 v{vt+3}, 3, v0")
    A(f"v_lshl_add_u32 v{vt+2}, v{vt+3}, 3, v{vt+2}")
    A(f"v_lshrrev_b32 v{vt+1}, 1, v{vt+1}")
    A(f"v_and_b32 v{vt}, 1, v{vt}")
    A(f"v_lshl_or_b32 v{vt}, v{vt}, 1, v{vt+1}")
    if not rotf:
        A(f"v_lshl_or_b32 v{vR}, v{vt}, 5, v{vt+2}")
        for F in range(1, 4):
            A(f"v_xor_b32 v{vR+F}, {F << 5}, v{vR}")
    else:
        A(f"v_lshl_or_b32 v{vt}, v{vt}, 5, v{vt+2}")
        for F in range(4):
            A(f"s_add_u32 s33, s{sW}, {F}")
            A(f"s_and_b32 s33, s33, 3")
            A(f"s_lshl_b32 s33, s33, 5")
            A(f"v_xor_b32 v{vR+F}, s33, v{vt}")


def gs_main(A, name, opts, nstages, U, perm, rowstride, t_loads, pre_extra=None, step_extra=None, n_pre_extra=0,
            after_first_loads=None, iter_end=None, pre_reads=None, extra_after=0, tlds=None):
    di = {"A": 16, "B": 8, "N": 4}[perm]
    tstride = opts["tstride"]

    def w_dma(slot):
        return [[f"s_add_u32 m0, s{sM0b}, {slot * 8192}", "s_nop 0",
                 f"buffer_load_dwordx4 v{vW0}, s[{SRD_W}:{SRD_W+3}], s{sWoff} offen lds"],
                [f"buffer_load_dwordx4 v{vW1}, s[{SRD_W}:{SRD_W+3}], s{sWoff} offen offset:1024 lds"]]

    def tr_reads(rbuf, slot, s2):
        out = []
        for F in range(4):
            for i in range(2):
                off = slot * 8192 + (32 * s2 + di * i) * 128
                out.append(f"ds_read_b64_tr_b16 {V(RB[rbuf] + F * 4 + 2 * i, 2)}, v{vR+F} offset:{off}")
        return out

    NIT = nstages // U
    assert NIT * U == nstages
    ROT = opts.get("rot") is not None
    wstride = 64 * rowstride

    def advance(raw, cnt, off, stride):
        if not ROT:
            return [f"s_add_u32 s{off}, s{off}, {stride}"]
        return [f"s_add_u32 s{raw}, s{raw}, {stride}",
                f"s_cmp_eq_u32 s{raw}, {nstages * stride}",
                f"s_cselect_b32 s{raw}, 0, s{raw}",
                f"s_add_u32 s{cnt}, s{cnt}, 1",
                f"s_cmp_lt_u32 s{cnt}, {nstages}",
                f"s_cselect_b32 s{off}, s{raw}, 0x7ff00000"]

    def seq_lds(tr, it):
        if it == -1:
            for s in range(U):
                for _ in range(6): tr.issue(("W", s))
                if s == 0:
                    for _ in range(n_pre_extra): tr.issue(("X", 0))
            for _ in range(extra_after): tr.issue(("Y", 0))
            return None
        ns = []
        for s in range(U * it, U * it + U):
            ns.append(None)
            ns.append(tr.wait_for(lambda t: t == ("W", s + 1)))
            for _ in range(6): tr.issue(("W", s + U))
        return ns

    def seq(tr, it):
        if tlds:
            return seq_lds(tr, it)
        if it == -1:
            for s in range(U):
                for _ in range(2): tr.issue(("W", s))
                if s == 0:
                    for _ in range(n_pre_extra): tr.issue(("X", 0))
                if s < U - 1:
                    for _ in range(4): tr.issue(("T", s))
            for _ in range(extra_after): tr.issue(("Y", 0))
            return None
        ns = []
        for s in range(U * it, U * it + U):
            ns.append(tr.wait_for(lambda t: t == ("T", s)))
            for _ in range(4): tr.issue(("T", s + U - 1))
            ns.append(tr.wait_for(lambda t: t == ("W", s + 1)))
            for _ in range(2): tr.issue(("W", s + U))
        return ns

    waits = [63 if w is None else min(w, 63) for w in resolve_waits(seq, NIT)]

    if ROT:
        A(f"s_mul_i32 s{sToff}, s{sRot}, {tstride}")
        A(f"s_mul_i32 s{sWoff}, s{sRot}, {wstride}")
        A(f"s_mov_b32 s{sTraw}, s{sToff}")
        A(f"s_mov_b32 s{sWraw}, s{sWoff}")
        A(f"s_mov_b32 s{sTcnt}, 0")
        A(f"s_mov_b32 s{sWcnt}, 0")
    else:
        A(f"s_mov_b32 s{sToff}, 0")
        A(f"s_mov_b32 s{sWoff}, 0")
    for s in range(U):
        for g in w_dma(s):
            for l in g: A(l)
        for l in advance(sWraw, sWcnt, sWoff, wstride): A(l)
        if tlds:
            for g in tlds["dma"](s):
                for l in g: A(l)
            for l in advance(sTraw, sTcnt, sToff, tstride): A(l)
        if s == 0 and pre_extra:
            pre_extra()
        if s < U - 1 and not tlds:
            for l in t_loads(s, f"s{sToff}"): A(l)
            for l in advance(sTraw, sTcnt, sToff, tstride): A(l)
    xstamp(A, opts, "issued")
    if after_first_loads:
        after_first_loads()
    for i in range(32):
        A(f"v_mov_b32 v{ACC + i}, 0")
    n_after = n_pre_extra + (U - 1) * 4 + (U - 1) * 2 + extra_after
    xstamp(A, opts, "prewait")
    A(f"s_waitcnt vmcnt({min(n_after, 63)})")
    xstamp(A, opts, "w0")
    A(f"s_barrier")
    xstamp(A, opts, "bar0")
    for l in tr_reads(0, 0, 0): A(l)
    if tlds:
        for l in tlds["reads"](0, 0, 0): A(l)
    if pre_reads:
        pre_reads()

    stamp(A, opts, 1)
    xstamp(A, opts, "loopstart")
    LOOP = f"L_{name}_loop"
    A(f"s_mov_b32 s44, {NIT}")
    A.loop_begin(LOOP)
    wi = 0
    for sl in range(U):
        for s2 in range(2):
            n = waits[wi]; wi += 1
            if tlds and s2 == 0:
                A("s_waitcnt lgkmcnt(0)")
            else:
                A(f"s_waitcnt vmcnt({n}) lgkmcnt(0)")
            if s2 == 1:
                A("s_barrier")
            main = []
            for F in range(4):
                for tl in range(2):
                    main.append(mfma16(acc(F, tl), V(RB[s2] + F * 4, 4), tlds["frag"](s2, tl) if tlds else tslot(sl, s2, tl)))
            xm, xf = step_extra(s2, sl) if step_extra else ([], [])
            main += xm
            f = {}
            n_m = len(main)
            rd_hi = max(4, n_m - opts.get("rd_margin", 3))
            reads, vm = [], []
            if tlds and s2 == 0:
                reads = tlds["reads"](1, sl, 1) + tr_reads(1, sl, 1)
            elif tlds:
                g = w_dma(sl)
                vm = [g[0], g[1] + advance(sWraw, sWcnt, sWoff, wstride)]
                d = tlds["dma"](sl)
                d[-1] = d[-1] + advance(sTraw, sTcnt, sToff, tstride)
                vm += d
                reads = tlds["reads"](0, (sl + 1) % U, 0) + tr_reads(0, (sl + 1) % U, 0)
            elif s2 == 0:
                ld = [[x] for x in t_loads((sl + U - 1) % U, f"s{sToff}")]
                ld[-1] = ld[-1] + advance(sTraw, sTcnt, sToff, tstride)
                vm = ld
                reads = tr_reads(1, sl, 1)
            else:
                g = w_dma(sl)
                vm = [g[0], g[1] + advance(sWraw, sWcnt, sWoff, wstride)]
                reads = tr_reads(0, (sl + 1) % U, 0)
            reads = xf + reads
            if vm:
                f[-1] = list(vm[0])
                spread(f, vm[1:], 0, max(len(vm) - 1, min(n_m - 2, 2 * (len(vm) - 1))))
            spread(f, reads, 0, rd_hi)
            if sl == U - 1 and s2 == 1:
                f.setdefault(n_m - 1, [])
                if iter_end:
                    f[n_m - 1].extend(iter_end())
                f[n_m - 1].append("s_sub_u32 s44, s44, 1")
                f[n_m - 1].append("s_cmp_lg_u32 s44, 0")
            for l in interleave(main, f): A(l)
    A(f"s_cbranch_scc1 {LOOP}")
    A.loop_end()
    stamp(A, opts, 2)
    xstamp(A, opts, "loopend")


def tf_tloads(sl, soff):
    out = []
    for tl in range(2):
        for s2 in range(2):
            out.append(f"buffer_load_dwordx4 {tslot(sl, s2, tl)}, v{vT0}, s[{SRD_T}:{SRD_T+3}], {soff} offen offset:{tl * 2048 + s2 * 1024}")
    return out


def finish(A, name, opts, END, nv):
    xstamp(A, opts, "stored")
    if opts.get("prof"):
        A("s_waitcnt vmcnt(0)")
        stamp(A, opts, 3)
        prof_store(A, opts, 4, opts.get("kidx", 0))
    A.label(END)
    A("s_endpgm")
    return kernel_desc(name, nv, 0, 80)


def gen_k5(A, name="k5_down_kernel", opts=None):
    opts = dict(opts or {})
    U = opts.get("U", 8)
    opts["tstride"] = STAGE_BYTES
    opts.setdefault("rot", "zero")
    kernel_begin(A, name)
    END = f"L_{name}_end"
    A("s_cmp_ge_u32 s2, 256")
    A(f"s_cbranch_scc1 {END}")
    stamp(A, opts, 0)
    A(f"s_load_dwordx2 s[4:5], s[0:1], {KA_WS}")
    A(f"s_load_dwordx4 s[40:43], s[0:1], {KA_WD}")
    ids(A, opts)
    set_rot(A, opts, 56)
    tf_voffsets(A)
    w_setup(A, "A", 2048, packed=True)
    A("s_waitcnt lgkmcnt(0)")
    xstamp(A, opts, "karg")
    srd(A, SRD_T, 4, WS_ACT, ACT_BYTES)
    srd(A, SRD_W, 4, WS_WD, 3584 * 2048)
    srd(A, SRD_X, 4, WS_HC, 4 * MB)
    srd(A, SRD_O, 42, 0, 2048 * 2048)
    HR = XTRA
    MH = XTRA + 16

    def pre_extra():
        A(f"s_lshl_b32 s33, s{sCB}, 18")
        for tl in range(2):
            for P in range(2):
                A(f"buffer_load_dwordx4 {V(HR + (tl * 2 + P) * 4, 4)}, v{vT0}, s[{SRD_X}:{SRD_X+3}], s33 offen offset:{tl * 2048 + P * 1024}")
        srd(A, SRD_X, 4, WS_MH, 8192)
        row_token_addr(A, vt, 2)
        for tl in range(2):
            A(f"buffer_load_dword v{MH + tl}, v{vt}, s[{SRD_X}:{SRD_X+3}], 0 offen offset:{tl * 64}")

    gs_main(A, name, opts, 56, U, "A", 128, tf_tloads, after_first_loads=pre_extra, extra_after=6)

    A("s_waitcnt vmcnt(0) lgkmcnt(0)")
    A(f"s_lshl_b32 s36, s{sW}, 12")
    A(f"s_add_u32 s36, s36, {U * 8192}")
    vA, vO = RB[0], RB[0] + 4
    dlayout_lds_addr(A, vA, 36)
    rowtile_voffsets(A, vO, 7)
    T = vt
    for tl in range(2):
        for F in range(4):
            h = HR + (tl * 2 + F // 2) * 4 + (F % 2) * 2
            a = acc(F, tl).base
            for x in range(2):
                A(f"v_lshlrev_b32 v{T}, 16, v{h + x}")
                A(f"v_and_b32 v{T+1}, 0xffff0000, v{h + x}")
                A(f"v_add_f32 v{T}, v{T}, v{MH + tl}")
                A(f"v_add_f32 v{T+1}, v{T+1}, v{MH + tl}")
                A(f"v_add_f32 v{a + 2*x}, v{a + 2*x}, v{T}")
                A(f"v_add_f32 v{a + 2*x + 1}, v{a + 2*x + 1}, v{T+1}")
            A(f"v_cvt_pk_bf16_f32 v{a}, v{a}, v{a+1}")
            A(f"v_cvt_pk_bf16_f32 v{a+1}, v{a+2}, v{a+3}")
            A(f"ds_write_b64 v{vA + F}, {V(a, 2)} offset:{tl * 2048}")
    A(f"v_lshlrev_b32 v{T}, 4, v0")
    A(f"v_add_u32 v{T}, s36, v{T}")
    A("s_waitcnt lgkmcnt(0)")
    for m in range(4):
        A(f"ds_read_b128 {V(RB[1] + 4 * m, 4)}, v{T} offset:{m * 1024}")
    for m in range(4):
        A(f"s_waitcnt lgkmcnt({3 - m})")
        A(f"buffer_store_dwordx4 {V(RB[1] + 4 * m, 4)}, v{vO + m}, s[{SRD_O}:{SRD_O+3}], 0 offen")
    return finish(A, name, opts, END, TRING + U * 16)


def rowtile_voffsets(A, dst, colbytes_sgpr_shift, rowstride_shift=11):
    A(f"s_lshl_b32 s33, s{sTB}, 2")
    A(f"s_add_u32 s33, s33, s{sW}")
    A(f"s_lshl_b32 s33, s33, 16")
    if colbytes_sgpr_shift is not None:
        A(f"s_lshl_b32 s34, s{sCB}, {colbytes_sgpr_shift}")
        A(f"s_add_u32 s33, s33, s34")
    A(f"v_lshrrev_b32 v{vt}, 3, v0")
    A(f"v_lshlrev_b32 v{vt}, 11, v{vt}")
    A(f"v_add_u32 v{vt}, s33, v{vt}")
    A(f"v_and_b32 v{vt+1}, 7, v0")
    A(f"v_lshrrev_b32 v{vt+2}, 4, v0")
    A(f"v_xor_b32 v{vt+1}, v{vt+1}, v{vt+2}")
    A(f"v_lshl_add_u32 v{dst}, v{vt+1}, 4, v{vt}")
    A(f"v_xor_b32 v{vt+1}, 4, v{vt+1}")
    A(f"v_lshl_add_u32 v{dst+1}, v{vt+1}, 4, v{vt}")
    A(f"v_add_u32 v{dst+2}, {2 * 16384}, v{dst}")
    A(f"v_add_u32 v{dst+3}, {3 * 16384}, v{dst+1}")
    A(f"v_add_u32 v{dst+1}, 16384, v{dst+1}")


def dlayout_lds_addr(A, dst, base_sgpr):
    A(f"v_and_b32 v{vt}, 15, v0")
    A(f"v_lshrrev_b32 v{vt+1}, 1, v{vt}")
    A(f"v_lshrrev_b32 v{vt+2}, 5, v0")
    A(f"v_xor_b32 v{vt+1}, v{vt+1}, v{vt+2}")
    A(f"v_lshlrev_b32 v{vt+1}, 4, v{vt+1}")
    A(f"v_lshl_add_u32 v{vt+1}, v{vt}, 7, v{vt+1}")
    A(f"v_bfe_u32 v{vt+2}, v0, 4, 1")
    A(f"v_lshl_add_u32 v{vt+1}, v{vt+2}, 3, v{vt+1}")
    A(f"v_add_u32 v{dst}, s{base_sgpr}, v{vt+1}")
    for F in range(1, 4):
        A(f"v_xor_b32 v{dst+F}, {F << 5}, v{dst}")


def reduce_over_g(A, reg, tmp):
    A(f"v_mov_b32 v{tmp}, v{reg}")
    A("s_nop 1")
    A(f"v_permlane16_swap_b32 v{reg}, v{tmp}")
    A(f"v_add_f32 v{reg}, v{reg}, v{tmp}")
    A(f"v_mov_b32 v{tmp}, v{reg}")
    A("s_nop 1")
    A(f"v_permlane32_swap_b32 v{reg}, v{tmp}")
    A(f"v_add_f32 v{reg}, v{reg}, v{tmp}")


def row_token_addr(A, dst, shift):
    A(f"v_and_b32 v{dst}, 15, v0")
    A(f"s_lshl_b32 s33, s{sTB}, 2")
    A(f"s_add_u32 s33, s33, s{sW}")
    A(f"s_lshl_b32 s33, s33, 5")
    A(f"v_add_u32 v{dst}, s33, v{dst}")
    A(f"v_lshlrev_b32 v{dst}, {shift}, v{dst}")


def gen_k3(A, name="k3_wo_kernel", opts=None):
    opts = dict(opts or {})
    U = opts.get("U", 4)
    opts["tstride"] = STAGE_BYTES
    opts.setdefault("map", "tokxcd")
    kernel_begin(A, name)
    END = f"L_{name}_end"
    A("s_cmp_ge_u32 s2, 256")
    A(f"s_cbranch_scc1 {END}")
    stamp(A, opts, 0)
    A(f"s_load_dwordx2 s[4:5], s[0:1], {KA_WS}")
    A(f"s_load_dwordx2 s[40:41], s[0:1], {KA_WO}")
    A(f"s_load_dwordx2 s[42:43], s[0:1], {KA_X}")
    ids(A, opts)
    set_rot(A, opts, 16)
    tf_voffsets(A)
    w_setup(A, "B", 2048)
    XR, MACC, WBF, XM, vWB, vX = XTRA, XTRA + 16, XTRA + 24, XTRA + 32, XTRA + 34, XTRA + 36
    WBL = U * 8192
    A("s_waitcnt lgkmcnt(0)")
    xstamp(A, opts, "karg")
    srd(A, SRD_T, 4, WS_O, 4 * MB)
    srd(A, SRD_W, 40, 0, 1024 * 2048)
    srd(A, SRD_X, 42, 0, 2048 * 2048)
    l2_sweep(A, opts, SRD_T, "tf", SRD_W, XTRA + 44)
    srd(A, SRD_O, 4, WS_WB, 4096)
    A(f"v_lshlrev_b32 v{vt}, 4, v0")
    A(f"s_lshl_b32 s33, s{sW}, 10")
    A(f"s_add_u32 m0, s33, {WBL}")
    A("s_nop 0")
    if opts.get("rot") is not None:
        A(f"s_lshl_b32 s34, s{sRot}, 8")
        A(f"v_add_u32 v{vt}, s33, v{vt}")
        A(f"v_add_u32 v{vt}, s34, v{vt}")
        A(f"v_and_b32 v{vt}, 4095, v{vt}")
        A(f"buffer_load_dwordx4 v{vt}, s[{SRD_O}:{SRD_O+3}], 0 offen lds")
    else:
        A(f"buffer_load_dwordx4 v{vt}, s[{SRD_O}:{SRD_O+3}], s33 offen lds")
    A(f"v_and_b32 v{vt}, 1, v0")
    A(f"v_lshlrev_b32 v{vt}, 6, v{vt}")
    A(f"v_lshrrev_b32 v{vt+1}, 4, v0")
    A(f"v_lshl_add_u32 v{vWB}, v{vt+1}, 4, v{vt}")
    A(f"v_add_u32 v{vWB}, {WBL}, v{vWB}")

    XL = WBL + 4096 + 256

    def late_loads():
        rowtile_voffsets(A, vX, 7)
        A(f"s_lshl_b32 s37, s{sW}, 12")
        A(f"s_add_u32 s37, s37, {XL}")
        for m in range(4):
            A(f"s_add_u32 m0, s37, {m * 1024}")
            A("s_nop 0")
            A(f"buffer_load_dwordx4 v{vX + m}, s[{SRD_X}:{SRD_X+3}], 0 offen lds")
        srd(A, SRD_X, 4, WS_XM, 8192)
        row_token_addr(A, vt, 2)
        for tl in range(2):
            A(f"buffer_load_dword v{XM + tl}, v{vt}, s[{SRD_X}:{SRD_X+3}], 0 offen offset:{tl * 64}")

    def pre_reads():
        A(f"ds_read_b128 {V(WBF, 4)}, v{vWB}")

    def step_extra(s2, sl):
        xm = [mfma16(V(MACC + tl * 4, 4), V(WBF + s2 * 4, 4), tslot(sl, s2, tl)) for tl in range(2)]
        xf = [f"ds_read_b128 {V(WBF + (1 - s2) * 4, 4)}, v{vWB} offset:{(2 * sl + s2 + 1) * 128}"]
        return xm, xf

    def iter_end():
        return [f"v_add_u32 v{vWB}, {U * 256}, v{vWB}"]

    def after_first():
        late_loads()
        for i in range(8):
            A(f"v_mov_b32 v{MACC + i}, 0")

    gs_main(A, name, opts, 16, U, "B", 2048, tf_tloads, step_extra=step_extra,
            iter_end=iter_end, pre_reads=pre_reads, after_first_loads=after_first, extra_after=6)

    A("s_waitcnt vmcnt(0) lgkmcnt(0)")
    dlayout_lds_addr(A, vX, 37)
    for tl in range(2):
        for F in range(4):
            A(f"ds_read_b64 {V(XR + (tl * 4 + F) * 2, 2)}, v{vX + F} offset:{tl * 2048}")
    srd(A, SRD_O, 4, WS_MH, 8192)
    srd(A, SRD_T, 4, WS_HC, 4 * MB)
    srd(A, SRD_X, 4, WS_VP, 2048 * 64)
    A(f"s_lshl_b32 s34, s{sCB}, 18")
    vVP, vMH = XTRA + 40, XTRA + 41
    row_token_addr(A, vVP, 6)
    A(f"v_lshrrev_b32 v{vMH}, 4, v{vVP}")
    A(f"s_lshl_b32 s35, s{sCB}, 2")
    T = vt
    A("s_waitcnt lgkmcnt(0)")
    HP, CP = RB[0], RB[1]
    for tl in range(2):
        m = XM + tl
        A(f"v_add_f32 v{m}, v{m}, v{MACC + tl * 4}")
        A(f"v_add_f32 v{m}, v{m}, v{MACC + tl * 4 + 1}")
        ss = T + 3
        A(f"v_mov_b32 v{ss}, 0")
        for F in range(4):
            a = acc(F, tl).base
            x = XR + (tl * 4 + F) * 2
            dc = CP + tl * 8 + (F // 2) * 4 + (F % 2) * 2
            for q in range(2):
                A(f"v_lshlrev_b32 v{T}, 16, v{x + q}")
                A(f"v_and_b32 v{T+1}, 0xffff0000, v{x + q}")
                A(f"v_add_f32 v{a + 2*q}, v{a + 2*q}, v{T}")
                A(f"v_add_f32 v{a + 2*q + 1}, v{a + 2*q + 1}, v{T+1}")
                A(f"v_sub_f32 v{a + 2*q}, v{a + 2*q}, v{m}")
                A(f"v_sub_f32 v{a + 2*q + 1}, v{a + 2*q + 1}, v{m}")
                A(f"v_fmac_f32 v{ss}, v{a + 2*q}, v{a + 2*q}")
                A(f"v_fmac_f32 v{ss}, v{a + 2*q + 1}, v{a + 2*q + 1}")
                A(f"v_cvt_pk_bf16_f32 v{dc + q}, v{a + 2*q}, v{a + 2*q + 1}")
        for P in range(2):
            A(f"buffer_store_dwordx4 {V(CP + tl * 8 + P * 4, 4)}, v{vT0}, s[{SRD_T}:{SRD_T+3}], s34 offen offset:{tl * 2048 + P * 1024}")
        A(f"buffer_store_dword v{m}, v{vMH}, s[{SRD_O}:{SRD_O+3}], 0 offen offset:{tl * 64}")
        reduce_over_g(A, ss, T + 4)
        A(f"buffer_store_dword v{ss}, v{vVP}, s[{SRD_X}:{SRD_X+3}], s35 offen offset:{tl * 16 * 64}")
        A("s_nop 1")
    return finish(A, name, opts, END, TRING + U * 16)


QSCALE = (32 ** -0.5) * 1.4426950408889634


def gen_k1(A, name="k1_qkv_kernel", opts=None):
    opts = dict(opts or {})
    U = opts.get("U", 4)
    opts["tstride"] = 128
    opts.setdefault("rot", "zero")
    kernel_begin(A, name)
    END = f"L_{name}_end"
    A("s_cmp_ge_u32 s2, 256")
    A(f"s_cbranch_scc1 {END}")
    stamp(A, opts, 0)
    A(f"s_load_dwordx2 s[4:5], s[0:1], {KA_WS}")
    A(f"s_load_dwordx4 s[40:43], s[0:1], {KA_X}")
    A(f"s_load_dwordx4 s[48:51], s[0:1], {KA_WK}")
    A(f"s_load_dwordx2 s[52:53], s[0:1], {KA_WO}")
    ids(A, opts)
    set_rot(A, opts, 16)
    KVL = U * 8192
    QOFF = [61, 62, 63, 39]
    KVF, KVACC, CS, ONES, ST, vKV = XTRA, XTRA + 8, XTRA + 16, XTRA + 36, XTRA + 40, XTRA + 44
    SUMA, SQA = TRING, TRING + 8
    TB = TRING + 16
    WROW = TRING + 32
    vXm, vXr = TRING + 40, TRING + 44
    NV1 = TRING + 48
    WBR = XTRA + 46
    XL = KVL + 32768
    A(f"s_lshl_b32 s33, s{sTB}, 2")
    A(f"s_add_u32 s33, s33, s{sW}")
    A(f"s_lshl_b32 s33, s33, 16")
    A(f"v_lshrrev_b32 v{vt}, 3, v0")
    A(f"v_lshlrev_b32 v{vt}, 11, v{vt}")
    A(f"v_add_u32 v{vt}, s33, v{vt}")
    A(f"v_and_b32 v{vt+1}, 7, v0")
    A(f"v_lshrrev_b32 v{vt+2}, 4, v0")
    A(f"v_xor_b32 v{vt+1}, v{vt+1}, v{vt+2}")
    A(f"v_lshl_add_u32 v{vXm}, v{vt+1}, 4, v{vt}")
    A(f"v_xor_b32 v{vt+1}, 4, v{vt+1}")
    A(f"v_lshl_add_u32 v{vXm+1}, v{vt+1}, 4, v{vt}")
    A(f"v_add_u32 v{vXm+2}, {2 * (16384 - 1024)}, v{vXm}")
    A(f"v_add_u32 v{vXm+3}, {3 * (16384 - 1024)}, v{vXm+1}")
    A(f"v_add_u32 v{vXm+1}, {16384 - 1024}, v{vXm+1}")
    A(f"s_lshl_b32 s60, s{sW}, 12")
    A(f"s_add_u32 s60, s60, {XL}")
    A(f"v_and_b32 v{vt}, 15, v0")
    A(f"v_lshrrev_b32 v{vt+1}, 1, v{vt}")
    A(f"v_lshrrev_b32 v{vt+2}, 4, v0")
    A(f"v_xor_b32 v{vt+1}, v{vt+1}, v{vt+2}")
    A(f"v_lshlrev_b32 v{vt+1}, 4, v{vt+1}")
    A(f"v_lshl_add_u32 v{vXr}, v{vt}, 7, v{vt+1}")
    A(f"v_add_u32 v{vXr}, s60, v{vXr}")
    A(f"v_xor_b32 v{vXr+1}, 64, v{vXr}")

    def x_dma(slot):
        out = [[f"s_add_u32 m0, s60, {slot * 16384}", "s_nop 0",
                f"buffer_load_dwordx4 v{vXm}, s[{SRD_T}:{SRD_T+3}], s{sToff} offen lds"]]
        for m in range(1, 4):
            out.append([f"buffer_load_dwordx4 v{vXm+m}, s[{SRD_T}:{SRD_T+3}], s{sToff} offen offset:{m * 1024} lds"])
        return out

    def x_reads(buf, slot, s2):
        return [f"ds_read_b128 {V(TB + buf * 8 + tl * 4, 4)}, v{vXr + s2} offset:{slot * 16384 + tl * 2048}" for tl in range(2)]

    def x_frag(s2, tl):
        return V(TB + s2 * 8 + tl * 4, 4)

    tlds = dict(dma=x_dma, reads=x_reads, frag=x_frag)
    w_setup(A, "N", 2048, rotf=True)
    A("s_waitcnt lgkmcnt(0)")
    xstamp(A, opts, "karg")
    srd(A, SRD_T, 40, 0, 2048 * 2048)
    srd(A, SRD_W, 42, 0, 1024 * 2048)
    l2_sweep(A, opts, SRD_T, "rows", SRD_W, XTRA + 46)
    SKIPKV = f"L_{name}_skipkv"
    A(f"s_cmp_ge_u32 s{sCB}, 4")
    A(f"s_cbranch_scc1 {SKIPKV}")
    A(f"s_cmp_lt_u32 s{sCB}, 2")
    A("s_cselect_b32 s46, s48, s50")
    A("s_cselect_b32 s47, s49, s51")
    srd(A, SRD_X, 46, 0, 1024 * 64)
    A(f"v_lshrrev_b32 v{vt}, 1, v0")
    A(f"v_and_b32 v{vt+1}, 0x13, v{vt}")
    A(f"v_bfe_u32 v{vt+2}, v{vt}, 2, 1")
    A(f"v_lshl_or_b32 v{vt+1}, v{vt+2}, 3, v{vt+1}")
    A(f"v_bfe_u32 v{vt+2}, v{vt}, 3, 1")
    A(f"v_lshl_or_b32 v{vt+1}, v{vt+2}, 2, v{vt+1}")
    A(f"v_lshlrev_b32 v{vt+1}, 6, v{vt+1}")
    A(f"v_and_b32 v{vt+2}, 1, v0")
    A(f"v_lshl_add_u32 v{vt+1}, v{vt+2}, 4, v{vt+1}")
    A(f"s_and_b32 s33, s{sCB}, 1")
    A(f"s_lshl_b32 s33, s33, 5")
    A(f"v_add_u32 v{vt+1}, s33, v{vt+1}")
    A(f"s_lshl_b32 s34, s{sW}, 13")
    A(f"s_add_u32 s34, s34, {KVL}")
    A(f"s_lshl_b32 s35, s{sW}, 3")
    A(f"s_lshl_b32 s37, s{sRot}, 1")
    A(f"s_add_u32 s35, s35, s37")
    for m in range(8):
        A(f"s_add_u32 m0, s34, {m * 1024}")
        A(f"s_add_u32 s36, s35, {m}")
        A(f"s_and_b32 s36, s36, 31")
        A(f"s_lshl_b32 s36, s36, 11")
        A(f"buffer_load_dwordx4 v{vt+1}, s[{SRD_X}:{SRD_X+3}], s36 offen lds")
    A.label(SKIPKV)
    A(f"v_lshrrev_b32 v{vt}, 4, v0")
    A(f"v_lshrrev_b32 v{vt+1}, 1, v{vt}")
    A(f"v_lshlrev_b32 v{vt+1}, 4, v{vt+1}")
    A(f"v_and_b32 v{vt}, 1, v{vt}")
    A(f"v_lshl_add_u32 v{vt+1}, v{vt}, 2, v{vt+1}")
    A(f"v_bfe_u32 v{vt}, v0, 2, 2")
    A(f"v_add_u32 v{vt+1}, v{vt+1}, v{vt}")
    A(f"v_lshlrev_b32 v{vt+1}, 5, v{vt+1}")
    A(f"v_and_b32 v{vt}, 3, v0")
    A(f"v_lshl_add_u32 v{vKV}, v{vt}, 3, v{vt+1}")
    A(f"v_add_u32 v{vKV}, {KVL}, v{vKV}")

    def after_first():
        srd(A, SRD_X, 52, 0, 1024 * 2048)
        A(f"s_lshl_b32 s54, s2, 2")
        A(f"s_add_u32 s54, s54, s{sW}")
        A(f"s_lshl_b32 s33, s54, 11")
        A(f"v_lshlrev_b32 v{vt}, 5, v0")
        A(f"buffer_load_dwordx4 {V(WROW, 4)}, v{vt}, s[{SRD_X}:{SRD_X+3}], s33 offen")
        A(f"buffer_load_dwordx4 {V(WROW + 4, 4)}, v{vt}, s[{SRD_X}:{SRD_X+3}], s33 offen offset:16")
        for i in range(8 + 20):
            A(f"v_mov_b32 v{KVACC + i}, 0")
        for i in range(4):
            A(f"v_mov_b32 v{ONES + i}, 0x3f803f80")
        for i in range(16):
            A(f"v_mov_b32 v{SUMA + i}, 0")

    def wbar_job():
        A(f"v_mov_b32 v{vt}, 0")
        for i in range(8):
            A(f"v_dot2c_f32_bf16 v{vt}, v{WROW + i}, v{ONES}")
        A("s_nop 2")
        for sh in (8, 4, 2, 1):
            A(f"v_add_f32_dpp v{vt}, v{vt}, v{vt} row_ror:{sh} row_mask:0xf bank_mask:0xf")
            A("s_nop 1")
        reduce_over_g(A, vt, vt + 1)
        A(f"v_mul_f32 v{vt}, {f32hex(1.0 / 1024)}, v{vt}")
        A(f"v_cvt_pk_bf16_f32 v{vt+1}, v{vt}, v{vt}")
        A(f"v_lshlrev_b32 v{vt+2}, 16, v{vt+1}")
        A(f"v_sub_f32 v{vt+2}, v{vt}, v{vt+2}")
        A(f"v_cvt_pk_bf16_f32 v{vt+2}, v{vt+2}, v{vt+2}")
        A("s_lshr_b32 s33, s54, 5"); A("s_lshl_b32 s33, s33, 7")
        A("s_bfe_u32 s34, s54, 0x10004"); A("s_lshl_b32 s34, s34, 5"); A("s_add_u32 s33, s33, s34")
        A("s_bfe_u32 s34, s54, 0x10002"); A("s_lshl_b32 s34, s34, 4"); A("s_add_u32 s33, s33, s34")
        A("s_bfe_u32 s34, s54, 0x10003"); A("s_lshl_b32 s34, s34, 3"); A("s_add_u32 s33, s33, s34")
        A("s_and_b32 s34, s54, 3"); A("s_lshl_b32 s34, s34, 1"); A("s_add_u32 s33, s33, s34")
        srd(A, SRD_X, 4, WS_WB, 4096)
        A(f"v_mov_b32 v{vt+3}, 0")
        A(f"buffer_store_short v{vt+1}, v{vt+3}, s[{SRD_X}:{SRD_X+3}], s33 offen")
        A(f"buffer_store_short v{vt+2}, v{vt+3}, s[{SRD_X}:{SRD_X+3}], s33 offen offset:64")

    def kv_reads(buf, step_ahead_imm):
        return [f"ds_read_b64_tr_b16 {V(KVF + buf * 4 + 2 * i, 2)}, v{vKV} offset:{step_ahead_imm + i * 256}" for i in range(2)]

    def pre_reads():
        for l in kv_reads(0, 0): A(l)

    def step_extra(s2, sl):
        xm = []
        for tl in range(2):
            xm.append(mfma16(V(KVACC + tl * 4, 4), V(KVF + s2 * 4, 4), x_frag(s2, tl)))
        xm.append(mfma16(V(CS, 4), V(RB[s2], 4), V(ONES, 4)))
        xm.append(mfma16(V(CS + 16, 4), V(KVF + s2 * 4, 4), V(ONES, 4)))
        for tl in range(2):
            xm.append(mfma16(V(SUMA + tl * 4, 4), V(ONES, 4), x_frag(s2, tl)))
            xm.append(mfma16(V(SQA + tl * 4, 4), x_frag(s2, tl), x_frag(s2, tl)))
        xf = kv_reads(1 - s2, (2 * sl + s2 + 1) * 1024)
        if opts.get("x_nokvread"): xf = []
        if opts.get("x_noextra"): xm = []
        if opts.get("x_nostat"): xm = xm[:7]
        if opts.get("x_nocs"): xm = xm[:2] + xm[7:]
        return xm, xf

    def iter_end():
        return [f"v_add_u32 v{vKV}, {U * 2048}, v{vKV}"]

    gs_main(A, name, opts, 16, U, "N", 2048, None, step_extra=step_extra,
            iter_end=iter_end, pre_reads=pre_reads, after_first_loads=after_first, extra_after=2, tlds=tlds)

    A("s_waitcnt vmcnt(0) lgkmcnt(0)")
    T = vt
    CSL = XL + U * 16384
    A(f"v_lshrrev_b32 v{T}, 4, v0")
    A(f"v_lshlrev_b32 v{T}, 4, v{T}")
    A(f"s_lshl_b32 s33, s{sW}, 6")
    A(f"s_add_u32 s33, s33, {CSL}")
    A(f"v_add_u32 v{T+1}, s33, v{T}")
    A(f"ds_write_b128 v{T+1}, {V(CS, 4)}")
    A("s_waitcnt lgkmcnt(0)")
    A("s_barrier")
    for F in range(4):
        A(f"s_add_u32 s33, s{sW}, {F}")
        A(f"s_and_b32 s33, s33, 3")
        A(f"s_lshl_b32 s33, s33, 6")
        A(f"s_add_u32 s33, s33, {CSL}")
        A(f"v_add_u32 v{T+1}, s33, v{T}")
        A(f"ds_read_b128 {V(CS + 4 * F, 4)}, v{T+1}")
    MR = RB[0]
    A(f"v_and_b32 v{T}, 3, v0")
    A(f"v_bfe_u32 v{T+1}, v0, 2, 2")
    A(f"v_lshrrev_b32 v{T+2}, 4, v0")
    A(f"v_cmp_eq_u32 s[34:35], v{T+1}, v{T+2}")
    A(f"v_cmp_eq_u32 s[36:37], 1, v{T}")
    A(f"v_cmp_eq_u32 s[38:39], 2, v{T}")
    A(f"v_cmp_eq_u32 s[46:47], 3, v{T}")
    for tl in range(2):
        q = SQA + tl * 4
        A(f"v_cndmask_b32 v{ST + 2 + tl}, v{q}, v{q+1}, s[36:37]")
        A(f"v_cndmask_b32 v{ST + 2 + tl}, v{ST + 2 + tl}, v{q+2}, s[38:39]")
        A(f"v_cndmask_b32 v{ST + 2 + tl}, v{ST + 2 + tl}, v{q+3}, s[46:47]")
        A(f"v_cndmask_b32 v{ST + 2 + tl}, 0, v{ST + 2 + tl}, s[34:35]")
        A(f"v_mov_b32 v{ST + tl}, v{SUMA + tl * 4}")
    for tl in range(2):
        reduce_over_g(A, ST + 2 + tl, T)
        A(f"v_mul_f32 v{MR + tl}, {f32hex(1.0 / 1024)}, v{ST + tl}")
        A(f"v_mul_f32 v{T}, {f32hex(1.0 / 1024)}, v{ST + 2 + tl}")
        A(f"v_fma_f32 v{T}, -v{MR + tl}, v{MR + tl}, v{T}")
        A(f"v_add_f32 v{T}, {f32hex(EPS)}, v{T}")
        A(f"v_rsq_f32 v{MR + 2 + tl}, v{T}")
    srd(A, SRD_X, 4, WS_XM, 8192)
    row_token_addr(A, T, 2)
    for tl in range(2):
        A(f"buffer_store_dword v{MR + tl}, v{T}, s[{SRD_X}:{SRD_X+3}], 0 offen offset:{tl * 64}")
    srd(A, SRD_O, 4, WS_Q, 4 * MB)
    vQ = MR + 4
    A(f"v_lshrrev_b32 v{T}, 5, v0")
    A(f"v_lshlrev_b32 v{vQ}, 9, v{T}")
    A(f"v_bfe_u32 v{T}, v0, 4, 1")
    A(f"v_lshl_add_u32 v{vQ}, v{T}, 3, v{vQ}")
    A(f"v_and_b32 v{T}, 15, v0")
    A(f"v_lshl_add_u32 v{vQ}, v{T}, 4, v{vQ}")
    A(f"s_lshl_b32 s33, s{sTB}, 2")
    A(f"s_add_u32 s33, s33, s{sW}")
    A(f"s_lshl_b32 s34, s{sCB}, 7")
    A(f"s_add_u32 s34, s34, s33")
    A(f"s_lshl_b32 s34, s34, 11")
    for F in range(4):
        A(f"s_add_u32 s35, s{sW}, {F}")
        A(f"s_and_b32 s35, s35, 3")
        A(f"s_lshr_b32 s36, s35, 1")
        A(f"s_lshl_b32 s36, s36, 17")
        A(f"s_and_b32 s35, s35, 1")
        A(f"s_lshl_b32 s35, s35, 10")
        A(f"s_add_u32 s35, s35, s36")
        A(f"s_add_u32 s{QOFF[F]}, s34, s35")
    SC = MR + 6
    for tl in range(2):
        A(f"v_mul_f32 v{SC + tl}, {f32hex(QSCALE)}, v{MR + 2 + tl}")
    QN = MR + 10
    A("s_waitcnt lgkmcnt(0)")
    for tl in range(2):
        for F in range(4):
            a = acc(F, tl).base
            n = QN + tl * 4 + F
            for r in range(4):
                A(f"v_fma_f32 v{a + r}, -v{MR + tl}, v{CS + F * 4 + r}, v{a + r}")
                A(f"v_mul_f32 v{a + r}, v{SC + tl}, v{a + r}")
            A(f"v_mul_f32 v{n}, v{a}, v{a}")
            for r in range(1, 4):
                A(f"v_fmac_f32 v{n}, v{a + r}, v{a + r}")
            A(f"v_cvt_pk_bf16_f32 v{a}, v{a}, v{a+1}")
            A(f"v_cvt_pk_bf16_f32 v{a+1}, v{a+2}, v{a+3}")
            A(f"buffer_store_dwordx2 {V(a, 2)}, v{vQ}, s[{SRD_O}:{SRD_O+3}], s{QOFF[F]} offen offset:{tl * 256}")
    A(f"s_and_b32 s35, s{sW}, 1")
    A(f"s_cmp_eq_u32 s35, 1")
    A(f"s_cselect_b64 s[36:37], -1, 0")
    for tl in range(2):
        n = QN + tl * 4
        A(f"v_cndmask_b32 v{T}, v{n+1}, v{n+3}, s[36:37]")
        A(f"v_cndmask_b32 v{T+1}, v{n+3}, v{n+1}, s[36:37]")
        A(f"v_add_f32 v{n}, v{n}, v{T}")
        A(f"v_add_f32 v{n+1}, v{n+2}, v{T+1}")
    for tl in range(2):
        for x in range(2):
            reduce_over_g(A, QN + tl * 4 + x, T)
    A(f"v_max_f32 v{QN}, v{QN}, v{QN+1}")
    A(f"v_max3_f32 v{QN}, v{QN}, v{QN+4}, v{QN+5}")
    for sh in (8, 4, 2, 1):
        A("s_nop 1")
        A(f"v_max_f32_dpp v{QN}, v{QN}, v{QN} row_ror:{sh} row_mask:0xf bank_mask:0xf")
    srd(A, SRD_X, 4, WS_QN, 4096)
    A(f"s_lshl_b32 s35, s{sTB}, 4")
    A(f"s_add_u32 s35, s35, s{sCB}")
    A(f"s_lshl_b32 s35, s35, 2")
    A(f"s_add_u32 s35, s35, s{sW}")
    A(f"s_lshl_b32 s35, s35, 2")
    A(f"v_mov_b32 v{T}, 0")
    A(f"buffer_store_dword v{QN}, v{T}, s[{SRD_X}:{SRD_X+3}], s35 offen")
    DONE = f"L_{name}_done"
    ISV = f"L_{name}_isv"
    NRM = f"L_{name}_nrm"
    A(f"s_cmp_ge_u32 s{sCB}, 4")
    A(f"s_cbranch_scc1 {DONE}")
    srd(A, SRD_O, 4, WS_KV, 256 * 1024)
    NS = MR + 8
    for tl in range(2):
        a = KVACC + tl * 4
        A(f"v_mov_b32 v{NS + tl}, 0")
        for r in range(4):
            A(f"v_fma_f32 v{a + r}, -v{MR + tl}, v{CS + 16 + r}, v{a + r}")
            A(f"v_mul_f32 v{a + r}, v{MR + 2 + tl}, v{a + r}")
            A(f"v_fmac_f32 v{NS + tl}, v{a + r}, v{a + r}")
        A(f"v_cvt_pk_bf16_f32 v{a}, v{a}, v{a+1}")
        A(f"v_cvt_pk_bf16_f32 v{a+1}, v{a+2}, v{a+3}")
    A(f"s_lshl_b32 s33, s33, 12")
    A(f"s_cmp_ge_u32 s{sCB}, 2")
    A(f"s_cbranch_scc1 {ISV}")
    A(f"s_lshl_b32 s34, s{sCB}, 10")
    A(f"s_add_u32 s33, s33, s34")
    for tl in range(2):
        A(f"buffer_store_dwordx2 {V(KVACC + tl * 4, 2)}, v{vQ}, s[{SRD_O}:{SRD_O+3}], s33 offen offset:{tl * 256}")
    A(f"s_branch {NRM}")
    A.label(ISV)
    A(f"s_and_b32 s34, s{sCB}, 1")
    A(f"s_lshl_b32 s34, s34, 8")
    A(f"s_add_u32 s33, s33, s34")
    A(f"s_add_u32 s33, s33, 2048")
    A(f"v_bfe_u32 v{T}, v0, 2, 1")
    A(f"v_lshlrev_b32 v{T+1}, 9, v{T}")
    A(f"v_lshrrev_b32 v{T}, 4, v0")
    A(f"v_lshl_add_u32 v{T+1}, v{T}, 6, v{T+1}")
    A(f"v_bfe_u32 v{T}, v0, 3, 1")
    A(f"v_lshl_add_u32 v{T+1}, v{T}, 3, v{T+1}")
    A(f"v_and_b32 v{T}, 3, v0")
    A(f"v_lshl_add_u32 v{T+1}, v{T}, 1, v{T+1}")
    for tl in range(2):
        a = KVACC + tl * 4
        for r in range(4):
            op = "buffer_store_short" if r % 2 == 0 else "buffer_store_short_d16_hi"
            A(f"{op} v{a + r // 2}, v{T+1}, s[{SRD_O}:{SRD_O+3}], s33 offen offset:{tl * 1024 + r * 16}")
    A.label(NRM)
    for tl in range(2):
        reduce_over_g(A, NS + tl, T + 2)
    A(f"v_max_f32 v{NS}, v{NS}, v{NS+1}")
    A("s_nop 1")
    for sh in (8, 4, 2, 1):
        A(f"v_max_f32_dpp v{NS}, v{NS}, v{NS} row_ror:{sh} row_mask:0xf bank_mask:0xf")
        A("s_nop 1")
    srd(A, SRD_X, 4, WS_NRM, 1024)
    A(f"s_lshl_b32 s33, s{sCB}, 6")
    A(f"s_lshl_b32 s34, s{sTB}, 2")
    A(f"s_add_u32 s33, s33, s34")
    A(f"s_add_u32 s33, s33, s{sW}")
    A(f"s_lshl_b32 s33, s33, 2")
    A(f"v_mov_b32 v{T}, 0")
    A(f"buffer_store_dword v{NS}, v{T}, s[{SRD_X}:{SRD_X+3}], s33 offen")
    A.label(DONE)
    wbar_job()
    return finish(A, name, opts, END, NV1)
```

```python
from gen_common import *

T_BOUND = 80.0
V_BOUND2 = 2.0 ** 60


def wave_max(A, reg, tmp):
    for sh in (8, 4, 2, 1):
        A("s_nop 1")
        A(f"v_max_f32_dpp v{reg}, v{reg}, v{reg} row_ror:{sh} row_mask:0xf bank_mask:0xf")
    for sw in ("16", "32"):
        A(f"v_mov_b32 v{tmp}, v{reg}")
        A("s_nop 1")
        A(f"v_permlane{sw}_swap_b32 v{reg}, v{tmp}")
        A(f"v_max_f32 v{reg}, v{reg}, v{tmp}")


def n_prefetch(opts):
    return 0 if opts.get("no_pf") else 4


PK = 156
vPS, vPD = 184, 185


def side_setup(A, opts, sW, vt):
    A(f"s_lshl_b32 s33, s2, 2")
    A(f"s_and_b32 s34, s{sW}, 3")
    A(f"s_add_u32 s33, s33, s34")
    A(f"s_mul_i32 s34, s33, {56 * 128}")
    A(f"v_lshlrev_b32 v{vt}, 7, v0")
    A(f"v_add_u32 v155, s34, v{vt}")
    A("s_mov_b32 s92, 3584")
    srd(A, 48, 88, 0, 3584 * 2048)
    srd(A, 52, 4, WS_WD, 3584 * 2048)
    A("s_mov_b32 s93, s33")
    A(f"v_lshrrev_b32 v{vt}, 3, v0")
    A(f"v_lshlrev_b32 v{vt}, 11, v{vt}")
    A(f"v_and_b32 v{vt+1}, 7, v0")
    A(f"v_bfe_u32 v{vt+2}, v0, 4, 2")
    A(f"v_lshlrev_b32 v{vt+2}, 1, v{vt+2}")
    A(f"v_xor_b32 v{vt+1}, v{vt+1}, v{vt+2}")
    A(f"v_lshl_add_u32 v{vPS}, v{vt+1}, 4, v{vt}")
    A(f"v_lshlrev_b32 v{vPD}, 4, v0")


def pack_loads(A, opts, lo, hi):
    for i in range(lo, hi):
        if opts.get("x_nopackld"): continue
        A(f"s_add_u32 s34, s93, {1024 * i}")
        A("s_mul_i32 s35, s34, 9363")
        A("s_lshr_b32 s35, s35, 22")
        A("s_mul_i32 s36, s35, 448")
        A("s_sub_u32 s34, s34, s36")
        A("s_lshl_b32 s34, s34, 14")
        A("s_lshl_b32 s35, s35, 7")
        A("s_add_u32 s35, s35, s34")
        A(f"buffer_load_dwordx4 v[{PK + 4*i}:{PK + 4*i + 3}], v{vPS}, s[48:51], s35 offen")


def prefetch_step(opts, name):
    if opts.get("x_nogather"): return []
    return [["s_mov_b64 exec, 0xfffffff", "global_load_dword v154, v155, s[84:85]", "s_mov_b64 exec, -1"],
            ["v_add_u32 v155, s92, v155", "s_sub_u32 s92, 0, s92",
             "s_cmp_gt_i32 s92, 0",
             "s_cselect_b32 s84, s86, s84", "s_cselect_b32 s85, s87, s85"]]


def l2_prefetch(A, opts, sW, vt, part):
    if opts.get("no_pf"):
        A("s_nop 0")
        return
    A("s_lshr_b32 s33, s2, 3")
    A("s_lshl_b32 s33, s33, 2")
    A(f"s_and_b32 s34, s{sW}, 3")
    A(f"s_add_u32 s33, s33, s34")
    A("s_lshl_b32 s34, s33, 13")
    if part:
        A("s_add_u32 s34, s34, 0x100000")
    A(f"v_lshlrev_b32 v{vt}, 7, v0")
    A(f"v_add_u32 v{vt+1}, s34, v{vt}")
    A(f"global_load_dword v154, v{vt+1}, s[80:81]")
    if part:
        A("s_lshl_b32 s34, s33, 12")
        A("s_and_b32 s35, s2, 7")
        A("s_lshl_b32 s35, s35, 19")
        A("s_add_u32 s34, s34, s35")
        A(f"v_add_u32 v{vt+1}, s34, v{vt}")
        A("s_mov_b64 exec, 0xffffffff")
        A(f"global_load_dword v154, v{vt+1}, s[98:99]")
        A("s_mov_b64 exec, -1")


def once_jobs(A, opts, name, tag, sW, vt):
    L = lambda x: f"L_{name}_{x}{tag}"
    A("s_cmp_ge_u32 s44, 7")
    A(f"s_cbranch_scc1 {L('pld')}")
    A("s_cmp_le_u32 s44, 5")
    A(f"s_cbranch_scc1 {L('tail')}")
    A.label(L('go'))

    def stores(lo, hi):
        for i in range(lo, hi):
            if opts.get("x_nopackst"): continue
            A(f"s_add_u32 s35, s93, {1024 * i}")
            A("s_lshl_b32 s35, s35, 10")
            A(f"buffer_store_dwordx4 v[{PK + 4*i}:{PK + 4*i + 3}], v{vPD}, s[52:55], s35 offen {opts.get('packflag', 'sc1')}")

    def outline():
        A.label(L('pld'))
        A("s_cmp_lg_u32 s44, 8")
        A(f"s_cbranch_scc1 {L('pld2')}")
        pack_loads(A, opts, 0, 4)
        A(f"s_branch {L('go')}")
        A.label(L('pld2'))
        pack_loads(A, opts, 4, 7)
        A(f"s_branch {L('go')}")
        A.label(L('tail'))
        A("s_cmp_lg_u32 s44, 5")
        A(f"s_cbranch_scc1 {L('t4')}")
        A(f"s_waitcnt vmcnt({0 if opts.get('x_nogather') else 2})")
        stores(0, 2)
        A(f"s_branch {L('go')}")
        A.label(L('t4'))
        A("s_cmp_lg_u32 s44, 4")
        A(f"s_cbranch_scc1 {L('t3')}")
        stores(2, 4)
        A(f"s_branch {L('go')}")
        A.label(L('t3'))
        A("s_cmp_lg_u32 s44, 3")
        A(f"s_cbranch_scc1 {L('t2')}")
        stores(4, 6)
        l2_prefetch(A, opts, sW, vt, 0)
        A(f"s_branch {L('go')}")
        A.label(L('t2'))
        A("s_cmp_lg_u32 s44, 2")
        A(f"s_cbranch_scc1 {L('go')}")
        stores(6, 7)
        l2_prefetch(A, opts, sW, vt, 1)
        A(f"s_branch {L('go')}")
    return outline


def gen_k2(A, name="k2_attn_kernel", opts=None):
    opts = opts or {}
    kernel_begin(A, name)
    END = f"L_{name}_end"
    sW, sTB, sHG, sH = 24, 25, 26, 27
    sCoff, sM0, sHalf = 28, 29, 30
    CH = 32768
    RMASK = 4 * CH - 1
    SRD_KV, SRD_Q, SRD_O, SRD_N = 8, 12, 16, 20
    vL, vLn, vD, vt = 1, 2, 3, 4
    Q = [12, 20]
    Sx = [28, 44]
    P = [60, 68]
    O = [76, 92]
    L = [108, 112]
    KB = [116, 124]
    VB = [132, 140]
    SEL = 148
    MX = [152, 153]
    NV = 188
    NRM_LDS = 4 * CH

    A("s_cmp_ge_u32 s2, 256")
    A(f"s_cbranch_scc1 {END}")
    stamp(A, opts, 0)
    A(f"s_load_dwordx2 s[4:5], s[0:1], {KA_WS}")
    if True:
        A(f"s_load_dwordx2 s[80:81], s[0:1], {KA_WO}")
        A(f"s_load_dwordx4 s[84:87], s[0:1], {KA_WG}")
        A(f"s_load_dwordx2 s[88:89], s[0:1], {KA_WD}")
        A(f"s_load_dwordx2 s[98:99], s[0:1], {KA_X}")
    A(f"v_lshrrev_b32 v{vt}, 6, v0")
    A("v_and_b32 v0, 63, v0")
    A(f"s_and_b32 s{sTB}, s2, 7")
    A(f"s_lshl_b32 s{sTB}, s{sTB}, 2")
    A(f"s_bfe_u32 s33, s2, 0x20003")
    A(f"s_add_u32 s{sTB}, s{sTB}, s33")
    A(f"v_readfirstlane_b32 s{sW}, v{vt}")
    A(f"s_lshr_b32 s{sHG}, s2, 5")
    A(f"v_lshlrev_b32 v{vL}, 4, v0")
    A(f"s_and_b32 s33, s{sW}, 3")
    A(f"s_lshr_b32 s{sHalf}, s{sW}, 2")
    A(f"s_lshl_b32 s{sH}, s{sHG}, 2")
    A(f"s_add_u32 s{sH}, s{sH}, s33")
    A(f"s_lshl_b32 s33, s33, 12")
    A(f"v_add_u32 v{vD}, s33, v{vL}")
    A(f"s_mov_b32 s{sM0}, s33")
    A("s_waitcnt lgkmcnt(0)")
    xstamp(A, opts, "karg")
    A(f"s_lshr_b32 s33, s{sTB}, 1")
    A(f"s_lshl_b32 s33, s33, 4")
    A(f"s_lshl_b32 s34, s{sHG}, 1")
    A(f"s_add_u32 s33, s33, s34")
    A(f"s_lshl_b32 s33, s33, 2")
    A(f"s_and_b32 s34, s{sTB}, 1")
    A(f"s_lshl_b32 s34, s34, 1")
    A(f"s_add_u32 s33, s33, s34")
    A(f"s_lshl_b32 s33, s33, 2")
    A(f"s_add_u32 s36, s4, {WS_QN}")
    A(f"s_addc_u32 s37, s5, 0")
    A(f"s_add_u32 s36, s36, s33")
    A(f"s_addc_u32 s37, s37, 0")
    A(f"s_load_dwordx2 s[94:95], s[36:37], 0")
    A(f"s_load_dwordx2 s[96:97], s[36:37], 16")
    srd(A, SRD_KV, 4, WS_KV, 256 * 1024)
    srd(A, SRD_Q, 4, WS_Q, 4 * MB)
    srd(A, SRD_N, 4, WS_NRM, 1024)
    srd(A, SRD_O, 4, WS_O, 4 * MB)

    def kv_dma(slot):
        out = []
        for hf in range(2):
            if isinstance(slot, int):
                pre = [f"s_add_u32 m0, s{sM0}, {slot * CH + hf * 16384}"]
            else:
                pre = [f"s_add_u32 m0, s{sM0}, {slot}"] + (["s_add_u32 m0, m0, 16384"] if hf else [])
            pre.append(f"s_add_u32 s46, s{sCoff}, {hf * 131072}")
            out.append(pre + [f"buffer_load_dwordx4 v{vD}, s[{SRD_KV}:{SRD_KV+3}], s46 offen lds"])
            for i in range(1, 4):
                out.append([f"buffer_load_dwordx4 v{vD}, s[{SRD_KV}:{SRD_KV+3}], s46 offen offset:{i * 1024} lds"])
        out[-1].append(f"s_add_u32 s{sCoff}, s{sCoff}, 16384")
        return out

    NOD0 = f"L_{name}_nod0"
    A(f"s_mov_b32 s{sCoff}, 0")
    A(f"s_cmp_lg_u32 s{sHalf}, 0")
    A(f"s_cbranch_scc1 {NOD0}")
    for g in kv_dma(0):
        for l in g: A(l)
    A.label(NOD0)
    A(f"s_lshl_b32 s33, s{sH}, 6")
    A(f"s_lshl_b32 s34, s{sTB}, 1")
    A(f"s_add_u32 s33, s33, s34")
    A(f"s_lshl_b32 s33, s33, 11")
    for X in range(2):
        for m in range(2):
            A(f"buffer_load_dwordx4 {V(Q[X] + 4 * m, 4)}, v{vL}, s[{SRD_Q}:{SRD_Q+3}], s33 offen offset:{X * 2048 + m * 1024}")
    A(f"buffer_load_dwordx4 {V(vt + 4, 4)}, v{vL}, s[{SRD_N}:{SRD_N+3}], 0 offen")
    A(f"s_lshl_b32 s33, s{sHalf}, 14")
    A(f"v_add_u32 v{vL}, s33, v{vL}")
    A(f"v_lshrrev_b32 v{vt}, 4, v0")
    A(f"v_lshrrev_b32 v{vt+1}, 2, v0")
    A(f"v_xor_b32 v{vt}, v{vt}, v{vt+1}")
    A(f"v_and_b32 v{vt}, 1, v{vt}")
    A(f"v_mov_b32 v{vt+1}, 0x3f803f80")
    A(f"v_cmp_eq_u32 vcc, 0, v{vt}")
    A("s_nop 1")
    A(f"v_cndmask_b32 v{SEL}, 0, v{vt+1}, vcc")
    for i in range(1, 4):
        A(f"v_mov_b32 v{SEL + i}, v{SEL}")
    for X in range(2):
        for i in range(0, 16, 2): A(f"v_mov_b64 v[{O[X] + i}:{O[X] + i + 1}], 0")
        for i in range(0, 4, 2): A(f"v_mov_b64 v[{L[X] + i}:{L[X] + i + 1}], 0")
    for i in range(0, 8, 2):
        A(f"v_mov_b64 v[{P[1] + i}:{P[1] + i + 1}], 0")
        A(f"v_mov_b64 v[{VB[1] + i}:{VB[1] + i + 1}], 0")
    side_setup(A, opts, sW, vt)
    n = vt + 4
    xstamp(A, opts, "prewait")
    A("s_waitcnt vmcnt(0)")
    A(f"v_max_f32 v{n}, v{n}, v{n+1}")
    A(f"v_max3_f32 v{n}, v{n}, v{n+2}, v{n+3}")
    for sh in (8, 4, 2, 1):
        A("s_nop 1")
        A(f"v_max_f32_dpp v{n}, v{n}, v{n} row_ror:{sh} row_mask:0xf bank_mask:0xf")
    xstamp(A, opts, "w0")
    A("s_barrier")
    xstamp(A, opts, "bar0")
    A(f"v_readlane_b32 s34, v{n}, 0")
    A(f"v_readlane_b32 s35, v{n}, 16")
    A(f"v_readlane_b32 s36, v{n}, 32")
    A(f"v_readlane_b32 s37, v{n}, 48")
    A(f"v_add_u32 v{vLn}, {CH}, v{vL}")
    for m in range(2):
        A(f"ds_read_b128 {V(KB[0] + 4 * m, 4)}, v{vL} offset:{m * 1024}")

    A("s_waitcnt lgkmcnt(0)")
    A("s_max_u32 s94, s94, s95")
    A("s_max_u32 s96, s96, s97")
    A("s_max_u32 s94, s94, s96")
    A(f"v_mov_b32 v{vt}, s34")
    A(f"v_add_f32 v{vt}, s35, v{vt}")
    A(f"v_mov_b32 v{vt+2}, s36")
    A(f"v_max_f32 v{vt+2}, s37, v{vt+2}")
    A(f"v_mul_f32 v{vt}, s94, v{vt}")
    A(f"v_mov_b32 v{vt+1}, {f32hex(T_BOUND * T_BOUND / 1.05)}")
    A(f"v_cmp_le_f32 vcc, v{vt}, v{vt+1}")
    A(f"v_mov_b32 v{vt+1}, {f32hex(V_BOUND2)}")
    A(f"v_cmp_le_f32 s[36:37], v{vt+2}, v{vt+1}")
    A("s_nop 1")
    A("s_and_b64 vcc, vcc, s[36:37]")
    SLOW = f"L_{name}_slow"
    FIN = f"L_{name}_fin"
    if opts.get("force_slow"):
        A("s_mov_b64 vcc, 0")
    A("s_nop 4")
    A(f"s_cbranch_vccz {SLOW}")

    def k_reads(buf, base, off):
        return [f"ds_read_b128 {V(KB[buf] + 4 * m, 4)}, v{base} offset:{off + m * 1024}" for m in range(2)]

    def v_reads(buf, base, off):
        return [f"ds_read_b128 {V(VB[buf] + 4 * m, 4)}, v{base} offset:{off + 2048 + m * 1024}" for m in range(2)]

    def s_mfma(X, kb):
        return [mfma32(V(Sx[X], 16), V(KB[kb], 4), V(Q[X], 4), "0"),
                mfma32(V(Sx[X], 16), V(KB[kb] + 4, 4), V(Q[X] + 4, 4))]

    def pv_mfma(X, vb):
        return [mfma32(V(O[X], 16), V(VB[vb], 4), V(P[X], 4)),
                mfma16(V(L[X], 4), V(SEL, 4), V(P[X], 4)),
                mfma32(V(O[X], 16), V(VB[vb] + 4, 4), V(P[X] + 4, 4)),
                mfma16(V(L[X], 4), V(SEL, 4), V(P[X] + 4, 4))]

    def softmax_valu(X):
        out = []
        s, p = Sx[X], P[X]
        lag = opts.get("lag", 1)
        if opts.get("no_valu"): return ["s_nop 0"] * 24
        if opts.get("exp_const"):
            for j in range(8):
                out.append(f"v_exp_f32 v{s + 2*j}, v{SEL}")
                out.append(f"v_exp_f32 v{s + 2*j + 1}, v{SEL}")
                if j >= lag:
                    out.append(f"v_cvt_pk_bf16_f32 v{p + j - lag}, v{SEL}, v{SEL}")
            for jj in range(8 - lag, 8):
                out.append(f"v_cvt_pk_bf16_f32 v{p + jj}, v{SEL}, v{SEL}")
            return out
        for j in range(8):
            out.append(f"v_exp_f32 v{s + 2*j}, v{s + 2*j}")
            out.append(f"v_exp_f32 v{s + 2*j + 1}, v{s + 2*j + 1}")
            if j >= lag:
                jj = j - lag
                out.append(f"v_cvt_pk_bf16_f32 v{p + jj}, v{s + 2*jj}, v{s + 2*jj + 1}")
        for jj in range(8 - lag, 8):
            out.append(f"v_cvt_pk_bf16_f32 v{p + jj}, v{s + 2*jj}, v{s + 2*jj + 1}")
        return out

    def phase(valu, mf, lds, extra=None):
        valu = list(valu)
        out = []
        n = len(valu)
        pos = opts.get("mfpos", [0, 4, 9, 13, 17, 21])
        items = {}
        for k, m in enumerate(mf):
            items.setdefault(pos[k], []).append(m)
        for k, l in enumerate(lds):
            items.setdefault(1 + 2 * k, []).append(l)
        for k, e in enumerate(extra or []):
            items.setdefault(6 + 2 * k, []).extend(e if isinstance(e, list) else [e])
        for i, v in enumerate(valu):
            out += items.get(i, [])
            if v == "NOPSLOT":
                if not items.get(i): out.append("s_nop 0")
                continue
            out.append(v)
        return out

    for l in s_mfma(0, 0): A(l)
    A("s_nop 7")
    A("s_nop 3")
    stamp(A, opts, 1)
    xstamp(A, opts, "loopstart")
    A("s_mov_b32 s44, 8")
    A(f"s_mov_b32 s45, {3 * CH}")
    A(f"s_cmp_lg_u32 s{sHalf}, 0")
    A(f"s_cbranch_scc1 L_{name}_sstart")

    def fast_loop(role):
        LOOP = f"L_{name}_loop{role}"
        A.loop_begin(LOOP)
        for t in range(4):
            kb, vb = t % 2, t % 2
            if t < 2 and role == "p":
                A("s_cmp_eq_u32 s44, 8")
                A(f"s_cbranch_scc1 L_{name}_ramp{t}")
                A.label(f"L_{name}_rampback{t}")
            extra, extra2 = [], []
            if t == 3:
                if role == "p":
                    A("s_waitcnt vmcnt(8)")
                    A("s_barrier")
                    g = kv_dma("s45")
                    g[-1] = g[-1] + [f"s_add_u32 s45, s45, {CH}", f"s_and_b32 s45, s45, {RMASK}"]
                    extra, extra2 = g[:4], g[4:]
                else:
                    A("s_barrier")
                    extra = prefetch_step(opts, name)
                lds = k_reads(1 - kb, vLn, 0) + v_reads(vb, vL, t * 4096)
            else:
                lds = k_reads(1 - kb, vL, (t + 1) * 4096) + v_reads(vb, vL, t * 4096)
            mf = s_mfma(1, kb) + pv_mfma(1, 1 - vb)
            if opts.get("no_lds"): lds = []
            if opts.get("no_L"): mf = [m for m in mf if "16x16" not in m]
            if opts.get("no_mfma"): mf = []
            for l in phase(softmax_valu(0), mf, lds, extra): A(l)
            A("s_waitcnt lgkmcnt(0)")
            if t == 3:
                extra2 = extra2 + [[f"v_mov_b32 v{vL}, v{vLn}"], [f"v_add_u32 v{vLn}, {CH}, v{vLn}"], [f"v_and_b32 v{vLn}, {RMASK}, v{vLn}"]]
            mf = s_mfma(0, 1 - kb) + pv_mfma(0, vb)
            if opts.get("no_L"): mf = [m for m in mf if "16x16" not in m]
            if opts.get("no_mfma"): mf = []
            for l in phase(softmax_valu(1), mf, [], extra2): A(l)
        out = once_jobs(A, opts, name, "f", sW, vt) if role == "s" else None
        A("s_sub_u32 s44, s44, 1")
        A("s_cmp_lg_u32 s44, 0")
        A(f"s_cbranch_scc1 {LOOP}")
        A.loop_end()
        A("s_nop 1")
        for l in pv_mfma(1, 1): A(l)
        A(f"s_branch {FIN}")
        if role == "p":
            for t in range(2):
                A.label(f"L_{name}_ramp{t}")
                for g in kv_dma(t + 1):
                    for l in g: A(l)
                A(f"s_branch L_{name}_rampback{t}")
        else:
            out()

    fast_loop("p")
    A.label(f"L_{name}_sstart")
    fast_loop("s")

    A.label(SLOW)
    A(f"s_cmp_lg_u32 s{sHalf}, 0")
    A(f"s_cbranch_scc1 L_{name}_s12")
    for c in (1, 2):
        for g in kv_dma(c):
            for l in g: A(l)
    A.label(f"L_{name}_s12")
    for X in range(2):
        A(f"v_mov_b32 v{MX[X]}, 0xff7fffff")
    A("s_mov_b32 s44, 8")
    A(f"s_mov_b32 s45, {3 * CH}")
    OUTER, INNER = f"L_{name}_so", f"L_{name}_si"
    A.loop_begin(OUTER)
    A(f"v_mov_b32 v{vt+6}, v{vL}")
    A("s_mov_b32 s46, 4")
    A.loop_begin(INNER)
    for l in k_reads(0, vt + 6, 0) + v_reads(0, vt + 6, 0): A(l)
    A("s_waitcnt lgkmcnt(0)")
    for X in range(2):
        s, p = Sx[X], P[X]
        for l in s_mfma(X, 0): A(l)
        A("s_nop 7"); A("s_nop 4")
        A(f"v_max_f32 v{vt}, v{s}, v{s+1}")
        for i in range(2, 16, 2):
            A(f"v_max3_f32 v{vt}, v{vt}, v{s+i}, v{s+i+1}")
        A(f"v_mov_b32 v{vt+1}, v{vt}")
        A("s_nop 1")
        A(f"v_permlane32_swap_b32 v{vt}, v{vt+1}")
        A(f"v_max3_f32 v{vt}, v{vt}, v{vt+1}, v{MX[X]}")
        A(f"v_sub_f32 v{vt+1}, v{MX[X]}, v{vt}")
        A(f"v_exp_f32 v{vt+1}, v{vt+1}")
        A(f"v_mov_b32 v{MX[X]}, v{vt}")
        for i in range(16):
            A(f"v_sub_f32 v{s+i}, v{s+i}, v{vt}")
        for i in range(16):
            A(f"v_exp_f32 v{s+i}, v{s+i}")
        for i in range(16):
            A(f"v_mul_f32 v{O[X]+i}, v{O[X]+i}, v{vt+1}")
        for i in range(4):
            A(f"v_mul_f32 v{L[X]+i}, v{L[X]+i}, v{vt+1}")
        for j in range(8):
            A(f"v_cvt_pk_bf16_f32 v{p+j}, v{s+2*j}, v{s+2*j+1}")
        A("s_nop 1")
        for l in pv_mfma(X, 0): A(l)
        A("s_nop 7"); A("s_nop 4")
    A(f"v_add_u32 v{vt+6}, 4096, v{vt+6}")
    A("s_sub_u32 s46, s46, 1")
    A("s_cmp_lg_u32 s46, 0")
    A(f"s_cbranch_scc1 {INNER}")
    A.loop_end()
    A(f"s_cmp_lg_u32 s{sHalf}, 0")
    A(f"s_cbranch_scc1 L_{name}_sside")
    A("s_waitcnt vmcnt(8)")
    A("s_barrier")
    for g in kv_dma("s45"):
        for l in g: A(l)
    A(f"s_add_u32 s45, s45, {CH}")
    A(f"s_and_b32 s45, s45, {RMASK}")
    A(f"s_branch L_{name}_snext")
    A.label(f"L_{name}_sside")
    A("s_barrier")
    for g in prefetch_step(opts, name):
        for l in g: A(l)
    out_s = once_jobs(A, opts, name, "s", sW, vt)
    A.label(f"L_{name}_snext")
    A(f"v_add_u32 v{vL}, {CH}, v{vL}")
    A(f"v_and_b32 v{vL}, {RMASK}, v{vL}")
    A("s_sub_u32 s44, s44, 1")
    A("s_cmp_lg_u32 s44, 0")
    A(f"s_cbranch_scc1 {OUTER}")
    A.loop_end()
    A(f"s_branch L_{name}_sdone")
    out_s()
    A.label(f"L_{name}_sdone")
    A(f"v_lshlrev_b32 v{vt}, 3, v0")
    A(f"s_lshl_b32 s33, s{sW}, 9")
    A(f"s_add_u32 s33, s33, {NRM_LDS + 64}")
    A(f"v_add_u32 v{vt+1}, s33, v{vt}")
    A(f"ds_write_b64 v{vt+1}, {V(MX[0], 2)}")
    A(f"s_xor_b32 s34, s{sW}, 4")
    A(f"s_lshl_b32 s34, s34, 9")
    A(f"s_add_u32 s34, s34, {NRM_LDS + 64}")
    A(f"v_add_u32 v{vt+1}, s34, v{vt}")
    A("s_waitcnt lgkmcnt(0)")
    A("s_barrier")
    A(f"ds_read_b64 {V(vt + 2, 2)}, v{vt+1}")
    A("s_waitcnt lgkmcnt(0)")
    for X in range(2):
        A(f"v_max_f32 v{vt+2+X}, v{vt+2+X}, v{MX[X]}")
        A(f"v_sub_f32 v{vt+2+X}, v{MX[X]}, v{vt+2+X}")
        A(f"v_exp_f32 v{vt+2+X}, v{vt+2+X}")
        A("s_nop 0")
        for i in range(16):
            A(f"v_mul_f32 v{O[X]+i}, v{O[X]+i}, v{vt+2+X}")
        A(f"v_mul_f32 v{L[X]}, v{L[X]}, v{vt+2+X}")

    A.label(FIN)
    stamp(A, opts, 2)
    xstamp(A, opts, "loopend")
    A("s_waitcnt vmcnt(0)")
    A("s_barrier")
    A("s_nop 4")
    A(f"v_lshlrev_b32 v{vt}, 4, v0")
    A(f"s_lshl_b32 s33, s{sW}, 13")
    A(f"v_add_u32 v{vt+1}, s33, v{vt}")
    A(f"s_xor_b32 s34, s{sW}, 4")
    A(f"s_lshl_b32 s34, s34, 13")
    A(f"v_add_u32 v{vt+2}, s34, v{vt}")
    KEEPB = f"L_{name}_keepb"
    JOIN = f"L_{name}_join"
    A(f"s_cmp_lg_u32 s{sHalf}, 0")
    A(f"s_cbranch_scc1 {KEEPB}")
    for i in range(4):
        A(f"ds_write_b128 v{vt+1}, {V(O[1] + 4*i, 4)} offset:{i * 1024}")
    A(f"ds_write_b128 v{vt+1}, {V(L[1], 4)} offset:4096")
    A(f"s_branch {JOIN}")
    A.label(KEEPB)
    for i in range(4):
        A(f"ds_write_b128 v{vt+1}, {V(O[0] + 4*i, 4)} offset:{i * 1024}")
    A(f"ds_write_b128 v{vt+1}, {V(L[0], 4)} offset:4096")
    A("s_waitcnt lgkmcnt(0)")
    for i in range(16):
        A(f"v_mov_b32 v{O[0]+i}, v{O[1]+i}")
    A(f"v_mov_b32 v{L[0]}, v{L[1]}")
    A.label(JOIN)
    A("s_waitcnt lgkmcnt(0)")
    A("s_barrier")
    xstamp(A, opts, "xbar")
    for i in range(4):
        A(f"ds_read_b128 {V(O[1] + 4*i, 4)}, v{vt+2} offset:{i * 1024}")
    A(f"ds_read_b128 {V(L[1], 4)}, v{vt+2} offset:4096")
    A(f"v_bfe_u32 v{vt}, v0, 4, 1")
    A(f"v_lshlrev_b32 v{vt+1}, 11, v{vt}")
    A(f"v_lshrrev_b32 v{vt}, 5, v0")
    A(f"v_lshl_add_u32 v{vt+1}, v{vt}, 8, v{vt+1}")
    A(f"v_and_b32 v{vt}, 15, v0")
    A(f"v_lshl_add_u32 v{vt+1}, v{vt}, 4, v{vt+1}")
    A(f"s_lshr_b32 s33, s{sH}, 1")
    A(f"s_lshl_b32 s33, s33, 18")
    A(f"s_and_b32 s34, s{sH}, 1")
    A(f"s_lshl_b32 s34, s34, 10")
    A(f"s_add_u32 s33, s33, s34")
    A(f"s_lshl_b32 s34, s{sTB}, 13")
    A(f"s_add_u32 s33, s33, s34")
    A(f"s_lshl_b32 s34, s{sHalf}, 12")
    A(f"s_add_u32 s33, s33, s34")
    A("s_waitcnt lgkmcnt(0)")
    A(f"v_add_f32 v{L[0]}, v{L[0]}, v{L[1]}")
    A(f"v_rcp_f32 v{vt+2}, v{L[0]}")
    for i in range(16):
        A(f"v_add_f32 v{O[0]+i}, v{O[0]+i}, v{O[1]+i}")
    for i in range(16):
        A(f"v_mul_f32 v{O[0]+i}, v{O[0]+i}, v{vt+2}")
    for j in range(8):
        A(f"v_cvt_pk_bf16_f32 v{P[0]+j}, v{O[0]+2*j}, v{O[0]+2*j+1}")
    for c in range(2):
        A(f"buffer_store_dwordx4 {V(P[0] + 4*c, 4)}, v{vt+1}, s[{SRD_O}:{SRD_O+3}], s33 offen offset:{c * 512}")
    xstamp(A, opts, "stored")
    if opts.get("prof"):
        A("s_waitcnt vmcnt(0)")
        stamp(A, opts, 3)
        prof_store(A, opts, 4, opts.get("kidx", 0))
    A.label(END)
    A("s_endpgm")
    return kernel_desc(name, NV, 0, 102)
```

```python
from gen_common import *
import math

C0 = -2.0 * math.sqrt(2.0 / math.pi) * math.log2(math.e)
C1 = C0 * 0.044715


def gen_k4(A, name="k4_gateup_kernel", opts=None):
    opts = opts or {}
    kernel_begin(A, name)
    END = f"L_{name}_end"
    vT0, vT1 = 1, 2
    vWo = 3
    vWa = 10
    vt = 12
    ACC = 32
    R = [0, 56]
    TS = 112
    SLOT = 28672
    sW, sTB, sJB = 24, 25, 26
    sToff, sWoff, sM0b = 27, 28, 31
    SRD_T, SRD_W, SRD_O, SRD_V = 8, 12, 16, 20

    def acc(wf, tl):
        return V(ACC + (wf * 4 + tl) * 4, 4)

    A(f"s_cmp_ge_u32 s2, 256")
    A(f"s_cbranch_scc1 {END}")
    stamp(A, opts, 0)
    A(f"s_load_dwordx2 s[4:5], s[0:1], {KA_WS}")
    A(f"s_load_dwordx4 s[40:43], s[0:1], {KA_WG}")
    A(f"v_lshrrev_b32 v{vt}, 6, v0")
    A(f"v_and_b32 v0, 63, v0")
    A(f"s_and_b32 s3, s2, 7")
    A(f"v_readfirstlane_b32 s{sW}, v{vt}")
    A(f"s_lshr_b32 s30, s2, 3")
    A(f"s_and_b32 s{sTB}, s3, 1")
    A(f"s_lshl_b32 s{sTB}, s{sTB}, 2")
    A(f"s_and_b32 s33, s30, 3")
    A(f"s_add_u32 s{sTB}, s{sTB}, s33")
    A(f"s_lshr_b32 s{sJB}, s3, 1")
    A(f"s_lshl_b32 s{sJB}, s{sJB}, 3")
    A(f"s_lshr_b32 s33, s30, 2")
    A(f"s_add_u32 s{sJB}, s{sJB}, s33")
    A(f"s_lshl_b32 s33, s{sTB}, 2")
    A(f"s_add_u32 s33, s33, s{sW}")
    A(f"s_lshl_b32 s33, s33, 13")
    A(f"v_lshlrev_b32 v{vT0}, 4, v0")
    A(f"v_add_u32 v{vT0}, s33, v{vT0}")
    A(f"v_add_u32 v{vT1}, 0x1000, v{vT0}")
    A(f"s_waitcnt lgkmcnt(0)")
    xstamp(A, opts, "karg")
    srd(A, SRD_T, 4, WS_HC, 4 * MB)
    srd(A, SRD_V, 4, WS_VP, 2048 * 64)
    A(f"s_cmp_lt_u32 s{sW}, 2")
    A(f"s_cselect_b32 s6, s40, s42")
    A(f"s_cselect_b32 s7, s41, s43")
    srd(A, SRD_W, 6, 0, 1024 * 7168)
    srd(A, SRD_O, 4, WS_ACT, ACT_BYTES)

    def t_load(u, soff):
        out = []
        for tl in range(4):
            dst = Ac(TS + (u % 4) * 16 + tl * 4, 4)
            vo = vT0 if tl < 2 else vT1
            out.append(f"buffer_load_dwordx4 {dst}, v{vo}, s[{SRD_T}:{SRD_T+3}], {soff} offen offset:{(tl % 2) * 2048 + (u % 2) * 1024}")
        return out

    def w_dma(slot, soff):
        out = []
        for m in range(7):
            grp = []
            if m % 4 == 0:
                grp.append(f"s_add_u32 m0, s{sM0b}, {slot * SLOT + (m // 4) * 4096}")
                grp.append("s_nop 0")
            grp.append(f"buffer_load_dwordx4 v{vWo + m}, s[{SRD_W}:{SRD_W+3}], {soff} offen offset:{(m % 4) * 1024} lds")
            out.append(grp)
        return out

    A(f"s_lshl_b32 s33, s{sTB}, 2")
    A(f"s_add_u32 s33, s33, s{sW}")
    A(f"s_lshl_b32 s33, s33, 12")
    A(f"v_lshlrev_b32 v{ACC}, 4, v0")
    for i in range(4):
        A(f"buffer_load_dwordx4 {V(vt + 4 * i, 4)}, v{ACC}, s[{SRD_V}:{SRD_V+3}], s33 offen offset:{1024 * i}")
    A(f"s_mov_b32 s{sToff}, 0")
    for l in t_load(0, f"s{sToff}"):
        A(l)
    A(f"s_and_b32 s34, s{sJB}, 1")
    A(f"s_lshl_b32 s34, s34, 1")
    A(f"s_mul_i32 s35, s{sJB}, 224")
    A(f"s_and_b32 s36, s{sW}, 1")
    A(f"s_mul_i32 s36, s36, {32 * 7168}")
    A(f"s_add_u32 s35, s35, s36")
    A(f"s_movk_i32 s37, 4682")
    A(f"s_movk_i32 s38, 7168")
    A(f"s_mul_i32 s{sM0b}, s{sW}, 7168")
    A(f"s_mov_b32 s{sWoff}, 0")
    w0 = w_dma(0, f"s{sWoff}")
    t0 = ACC + 4
    for m in range(7):
        d = vWo + m
        A(f"v_add_u32 v{t0}, {64 * m}, v0")
        A(f"v_mul_u32_u24 v{t0+1}, s37, v{t0}")
        A(f"v_lshrrev_b32 v{t0+1}, 16, v{t0+1}")
        A(f"v_mul_u32_u24 v{t0+2}, 14, v{t0+1}")
        A(f"v_sub_u32 v{t0}, v{t0}, v{t0+2}")
        A(f"v_add_u32 v{t0}, s34, v{t0}")
        A(f"v_subrev_u32 v{t0+2}, 14, v{t0}")
        A(f"v_min_u32 v{t0}, v{t0}, v{t0+2}")
        A(f"v_mul_u32_u24 v{t0+1}, s38, v{t0+1}")
        A(f"v_lshl_add_u32 v{d}, v{t0}, 4, v{t0+1}")
        A(f"s_sub_u32 s39, s35, {(m % 4) * 1024}")
        A(f"v_add_u32 v{d}, s39, v{d}")
        for l in w0[m]: A(l)

    NIT = 8

    def seq(tr, it):
        if it == -1:
            for t, n in ((("VP", 0), 4), (("T", 0), 4), (("W", 0), 7), (("W", 1), 7), (("T", 1), 4)):
                for _ in range(n): tr.issue(t)
            return None
        ns = []
        for s in (2 * it, 2 * it + 1):
            ns.append(tr.wait_for(lambda t: t == ("T", 2 * s)))
            for _ in range(4): tr.issue(("T", 2 * s + 2))
            ns.append(tr.wait_for(lambda t: t == ("T", 2 * s + 1) or t == ("W", s + 1)))
            for _ in range(7): tr.issue(("W", s + 2))
            for _ in range(4): tr.issue(("T", 2 * s + 3))
        return ns

    waits = resolve_waits(seq, NIT)
    waits = [63 if w is None else w for w in waits]

    xstamp(A, opts, "issued")
    A(f"v_lshrrev_b32 v{ACC}, 2, v0")
    A(f"v_mul_u32_u24 v{vWa}, 224, v{ACC}")
    A(f"v_and_b32 v{ACC}, 3, v0")
    A(f"v_lshl_add_u32 v{vWa}, v{ACC}, 3, v{vWa}")
    for i in range(0, 224, 2):
        A(f"v_mov_b64 v[{ACC + i}:{ACC + i + 1}], 0")
    cAB = 20
    cR = 28
    A("s_waitcnt vmcnt(11)")
    A(f"s_mov_b32 s45, {f32hex(1.0 / 1024)}")
    for tl in range(4):
        b = vt + 4 * tl
        A(f"v_add_f32 v{b}, v{b}, v{b+1}")
        A(f"v_add_f32 v{b+2}, v{b+2}, v{b+3}")
    for tl in range(4):
        b = vt + 4 * tl
        A(f"v_add_f32 v{b}, v{b}, v{b+2}")
    for pm in ("[1,0,3,2]", "[2,3,0,1]"):
        A("s_nop 1")
        for tl in range(4):
            b = vt + 4 * tl
            A(f"v_add_f32_dpp v{b}, v{b}, v{b} quad_perm:{pm} row_mask:0xf bank_mask:0xf")
    A(f"v_and_b32 v{vt+1}, 15, v0")
    A(f"v_lshlrev_b32 v{vt+1}, 4, v{vt+1}")
    A(f"v_mov_b32 v{vt+2}, {f32hex(EPS)}")
    for tl in range(4):
        A(f"ds_bpermute_b32 v{cR + tl}, v{vt+1}, v{vt + 4 * tl}")
    A(f"s_waitcnt lgkmcnt(0)")
    for tl in range(4):
        A(f"v_fma_f32 v{cR + tl}, v{cR + tl}, s45, v{vt+2}")
    for tl in range(4):
        A(f"v_rsq_f32 v{vt + 4 + tl}, v{cR + tl}")
    for tl in range(4):
        r = vt + 4 + tl
        A(f"v_mul_f32 v{cAB + 2 * tl}, {f32hex(C0)}, v{r}")
        A(f"v_mul_f32 v{cAB + 2 * tl + 1}, v{r}, v{r}")
        A(f"v_mul_f32 v{cAB + 2 * tl + 1}, v{cAB + 2 * tl + 1}, v{r}")
        A(f"v_mul_f32 v{cAB + 2 * tl + 1}, {f32hex(C1)}, v{cAB + 2 * tl + 1}")

    def tr_reads(rbuf, vbase, slot, s2):
        out = []
        for F in range(7):
            for mat in range(2):
                wf = mat * 7 + F
                for i in range(2):
                    off = slot * SLOT + mat * 14336 + (32 * s2 + 16 * i) * 224 + F * 32
                    out.append(f"ds_read_b64_tr_b16 {Ac(R[rbuf] + wf * 4 + 2 * i, 2)}, v{vbase} offset:{off}")
        return out

    xstamp(A, opts, "prewait")
    A(f"s_waitcnt vmcnt(0)")
    xstamp(A, opts, "w0")
    A(f"s_barrier")
    rd0 = tr_reads(0, vWa, 0, 0)
    A(f"s_add_u32 s{sWoff}, s{sWoff}, {64 * 7168}")
    g1 = w_dma(1, f"s{sWoff}")
    for m in range(7):
        for l in g1[m]: A(l)
        for l in rd0[4 * m: 4 * m + 4]: A(l)
    A(f"s_add_u32 s{sWoff}, s{sWoff}, {64 * 7168}")
    for l in t_load(1, f"s{sToff}"): A(l)
    A(f"s_mov_b32 s{sToff}, {STAGE_BYTES}")

    def step_mfmas(rbuf, tslot):
        out = []
        for F in range(7):
            for mat in range(2):
                wf = mat * 7 + F
                for tl in range(4):
                    out.append(mfma16(acc(wf, tl), Ac(R[rbuf] + wf * 4, 4), Ac(TS + tslot * 16 + tl * 4, 4)))
        return out

    LOOP = f"L_{name}_loop"
    stamp(A, opts, 1)
    xstamp(A, opts, "loopstart")
    A(f"s_mov_b32 s44, {NIT}")
    A.loop_begin(LOOP)
    wi = 0
    for sp in range(2):
        u = 2 * sp
        A(f"s_waitcnt vmcnt({waits[wi]}) lgkmcnt(0)"); wi += 1
        f = {}
        spread(f, tr_reads(1, vWa, sp, 1), 0, 44)
        spread(f, t_load(u + 2, f"s{sToff}"), 2, 24)
        main = step_mfmas(0, u % 4)
        for l in interleave(main, f): A(l)
        A(f"s_waitcnt vmcnt({waits[wi]}) lgkmcnt(0)"); wi += 1
        A(f"s_barrier")
        f = {}
        spread(f, tr_reads(0, vWa, 1 - sp, 0), 0, 44)
        spread(f, w_dma(sp, f"s{sWoff}"), 0, 28)
        spread(f, t_load(u + 3, f"s{sToff}"), 30, 46)
        f.setdefault(48, []).append(f"s_add_u32 s{sWoff}, s{sWoff}, {64 * 7168}")
        f[48].append(f"s_add_u32 s{sToff}, s{sToff}, {STAGE_BYTES}")
        if sp == 1:
            f.setdefault(54, []).append(f"s_sub_u32 s44, s44, 1")
            f[54].append(f"s_cmp_lg_u32 s44, 0")
        main = step_mfmas(1, (u + 1) % 4)
        for l in interleave(main, f): A(l)
    A(f"s_cbranch_scc1 {LOOP}")
    A.loop_end()

    stamp(A, opts, 2)
    xstamp(A, opts, "loopend")
    A(f"s_waitcnt lgkmcnt(0)")
    A(f"s_and_b32 s34, s{sJB}, 1")
    A(f"s_mul_i32 s35, s{sJB}, 7")
    A(f"s_add_u32 s35, s35, s34")
    A(f"s_lshr_b32 s35, s35, 1")
    for P in range(4):
        if P < 3:
            A(f"s_add_u32 s36, s35, {P}")
        else:
            A(f"s_lshl_b32 s37, s34, 2")
            A(f"s_add_u32 s36, s35, 3")
            A(f"s_sub_u32 s36, s36, s37")
        A(f"s_lshr_b32 s37, s36, 1")
        A(f"s_lshl_b32 s37, s37, 18")
        A(f"s_and_b32 s36, s36, 1")
        A(f"s_lshl_b32 s36, s36, 10")
        A(f"s_add_u32 s{48 + P}, s36, s37")
    A(f"s_lshl_b32 s34, s34, 3")
    A(f"s_add_u32 s51, s51, s34")

    xstamp(A, opts, "epi1")
    TA, TB = 4, 6

    def glu(F, tl, h, T, dst):
        a = V(acc(F, tl).base + 2 * h, 2)
        u = V(acc(7 + F, tl).base + 2 * h, 2)
        AB = V(cAB + 2 * tl, 2)
        Rr = cR + tl
        Rp = V(Rr & ~1, 2)
        sel = "op_sel:[0,1,1] op_sel_hi:[1,1,1]" if Rr & 1 else "op_sel:[0,0,0] op_sel_hi:[1,0,0]"
        t = V(T, 2)
        return [
            f"v_pk_mul_f32 {t}, {a}, {a}",
            f"v_pk_fma_f32 {t}, {t}, {AB}, {AB} op_sel:[0,1,0] op_sel_hi:[1,1,0]",
            f"v_pk_mul_f32 {t}, {t}, {a}",
            f"v_exp_f32 v{T}, v{T}",
            f"v_exp_f32 v{T+1}, v{T+1}",
            f"v_pk_mul_f32 {a}, {a}, {u}",
            f"v_pk_fma_f32 {t}, {t}, {Rp}, {Rp} {sel}",
            f"v_rcp_f32 v{T}, v{T}",
            f"v_rcp_f32 v{T+1}, v{T+1}",
            "NOP",
            f"v_pk_mul_f32 {a}, {a}, {t}",
            f"v_cvt_pk_bf16_f32 v{dst}, v{a.base}, v{a.base+1}",
        ]

    for tl in range(4):
        vo = vT0 if tl < 2 else vT1
        for P in range(4):
            Fs = (2 * P, 2 * P + 1) if P < 3 else (6,)
            dbase = acc(7 + Fs[0], tl).base
            for n, F in enumerate(Fs):
                s0 = glu(F, tl, 0, TA, dbase + 2 * n)
                s1 = glu(F, tl, 1, TB, dbase + 2 * n + 1)
                for x, y in zip(s0, s1):
                    if x != "NOP": A(x)
                    if y != "NOP": A(y)
            if P < 3:
                A(f"buffer_store_dwordx4 {V(dbase, 4)}, v{vo}, s[{SRD_O}:{SRD_O+3}], s{48 + P} offen offset:{(tl % 2) * 2048}")
            else:
                A(f"buffer_store_dwordx2 {V(dbase, 2)}, v{vo}, s[{SRD_O}:{SRD_O+3}], s{48 + P} offen offset:{(tl % 2) * 2048}")
    xstamp(A, opts, "stored")
    if opts.get("prof"):
        A("s_waitcnt vmcnt(0)")
        stamp(A, opts, 3)
        prof_store(A, opts, 4, opts.get("kidx", 0))
    A.label(END)
    A("s_endpgm")
    return kernel_desc(name, 256, 176, 80)
```

```python
import sys, json
sys.path.insert(0,'work')
from build import build
from gen_gs import *
from gen_k2 import gen_k2
from gen_k4 import gen_k4
import gen_gs_v1
def make(prof=0, o=None):
    o = dict(o or {})
    for k, d in (("k1", {"stflag":"sc1"}), ("k5", {"stflag":"sc1"})):
        o[k] = dict(d, **(o.get(k) or {}))
    P = lambda i, extra=None: dict({"prof":prof,"kidx":i}, **(extra or {}))
    U5 = o.get("U5", 4)
    parts = [(gen_k1,"k1_qkv_kernel",P(0,o.get("k1"))),(gen_k2,"k2_attn_kernel",P(1,o.get("k2"))),(gen_k3,"k3_wo_kernel",P(2,o.get("k3"))),
             (gen_k4,"k4_gateup_kernel",P(3,o.get("k4"))),(gen_k5,"k5_down_kernel",P(4,dict({"U":U5},**(o.get("k5") or {}))))]
    U1 = (o.get("k1") or {}).get("U", 4); U3 = (o.get("k3") or {}).get("U", 4); U5 = (o.get("k5") or {}).get("U", U5)
    launches = [("k1_qkv_kernel",256,256,U1*8192+32768+U1*16384+256),("k2_attn_kernel",256,512,4*32768+4352),("k3_wo_kernel",256,256,U3*8192+4096+256+16384),
                ("k4_gateup_kernel",256,256,2*28672),("k5_down_kernel",256,256,U5*8192+16384)]
    if o.get("v1"):
        parts = [((gen_gs_v1.gen_k3 if fn is gen_k3 and "3" in o["v1"] else gen_gs_v1.gen_k5 if fn is gen_k5 and "5" in o["v1"] else gen_gs_v1.gen_k1 if fn is gen_k1 and "1" in o["v1"] else fn), n, op) for fn, n, op in parts]
    return build(parts, launches)
if __name__ == "__main__":
    asm, probs = make(0)
    print("hazards:", len(probs)); print("\n".join(probs[:20]))
    open('sequential_preLN__grouped_kv_mqa__geglu_ffn__prompt.s','w').write(asm)
    asm, probs = make(1)
    open('all_prof.s','w').write(asm)
```

```python
import sys, json
sys.path.insert(0,'work')
from mk_all import make
V = json.loads(sys.argv[1])
for n,o in V.items():
    asm, probs = make(1, o)
    if probs: print(n, "hazards", len(probs), probs[:2])
    names = {"k1":"k1_qkv_kernel","k2":"k2_attn_kernel","k3":"k3_wo_kernel","k4":"k4_gateup_kernel","k5":"k5_down_kernel"}
    st = {names[k]: v["st"] for k,v in o.items() if isinstance(v,dict) and "st" in v}
    asm = "; stamps " + json.dumps(st) + "\n" + asm
    open(f'all_prof_{n}.s','w').write(asm)
```

```python
from asmlib import *

KA_X, KA_WQ, KA_WK, KA_WV, KA_WO, KA_BX, KA_WG, KA_WU, KA_WD, KA_OUT, KA_DBG, KA_WS = [8 * i for i in range(12)]

MB = 1 << 20
WS_Q = 0
WS_XN = 0
WS_KV = 4 * MB
WS_NRM = WS_KV + 256 * 1024
WS_XM = WS_NRM + 4096
WS_WB = WS_XM + 16384
WS_VP = WS_WB + 4096
WS_QN = WS_VP + 2048 * 64
WS_MH = WS_QN + 4096
WS_O = 5 * MB
WS_H = 9 * MB
WS_HC = 13 * MB
WS_ACT = 17 * MB
WS_WD = 32 * MB
WS_XB = 48 * MB

WS_FA = 57 * MB
WS_NONCE = 58 * MB
WS_F3 = 59 * MB
WS_F4 = WS_F3 + 32768
WS_FL = WS_F4 + 32768
ACT_BYTES = 2048 * 3584 * 2
STAGE_BYTES = 128 * 2048

EPS = 1e-5


def f32hex(x):
    import struct
    return "0x%08x" % struct.unpack("<I", struct.pack("<f", x))[0]


def kernel_begin(A, name):
    A.raw(f".globl {name}")
    A.raw(".p2align 8")
    A.raw(f".type {name},@function")
    A.raw(f"{name}:")


def kernel_desc(name, nv, na, ns):
    acc = (nv + 3) // 4 * 4
    if na:
        total = acc + na
    else:
        total = nv
    return f""".amdhsa_kernel {name}
  .amdhsa_next_free_vgpr {total}
  .amdhsa_next_free_sgpr {ns}
  .amdhsa_accum_offset {acc}
  .amdhsa_group_segment_fixed_size 0
  .amdhsa_kernarg_size 96
  .amdhsa_user_sgpr_count 2
  .amdhsa_user_sgpr_kernarg_segment_ptr 1
  .amdhsa_system_sgpr_workgroup_id_x 1
  .amdhsa_float_denorm_mode_32 3
.end_amdhsa_kernel
"""


def srd(A, s, base_pair, offset, nbytes):
    if offset:
        A(f"s_add_u32 s{s}, s{base_pair}, {offset}")
        A(f"s_addc_u32 s{s+1}, s{base_pair+1}, 0")
        A(f"s_and_b32 s{s+1}, s{s+1}, 0xffff")
    else:
        A(f"s_mov_b32 s{s}, s{base_pair}")
        A(f"s_and_b32 s{s+1}, s{base_pair+1}, 0xffff")
    A(f"s_mov_b32 s{s+2}, {nbytes}")
    A(f"s_mov_b32 s{s+3}, 0x20000")


def mfma16(d, a, b, c=None):
    return f"v_mfma_f32_16x16x32_bf16 {d}, {a}, {b}, {d if c is None else c}"


def mfma32(d, a, b, c=None):
    return f"v_mfma_f32_32x32x16_bf16 {d}, {a}, {b}, {d if c is None else c}"


def resolve_waits(seq_builder, n_iter):
    tr = VmTracker()
    seq_builder(tr, -1)
    best = None
    for it in range(n_iter):
        ns = seq_builder(tr, it)
        if best is None:
            best = list(ns)
        else:
            best = [min(a, b) if (a is not None and b is not None) else (a if b is None else b) for a, b in zip(best, ns)]
    return best


WS_PROF = 40 * MB
STAMP_TAGS = {}


def xstamp(A, opts, tag):
    st = opts.get("st")
    if st and tag in st:
        stamp(A, opts, 1 + st.index(tag), True)


def stamp(A, opts, i, forced=False):
    if not opts.get("prof"): return
    if not forced:
        if i in (1, 2) and opts.get("st"): return
        i = {0: 0, 1: 1, 2: 4, 3: 5}[i]
    A(f"s_memtime s[{64+2*i}:{65+2*i}]")
    if i == 0: A("s_memrealtime s[76:77]")
    if i == 5: A("s_memrealtime s[78:79]")


def prof_store(A, opts, ws_pair, kidx):
    if not opts.get("prof"): return
    A("s_waitcnt lgkmcnt(0)")
    for k, sreg in enumerate((64, 66, 68, 70, 72, 74, 76, 78)):
        A(f"v_mov_b32 v{k}, s{sreg}")
    A("s_lshl_b32 s64, s2, 5")
    A(f"s_add_u32 s64, s64, {WS_PROF + kidx * 16384}")
    A("v_mov_b32 v8, s64")
    A("s_nop 4")
    A(f"global_store_dwordx4 v8, v[0:3], s[{ws_pair}:{ws_pair+1}]")
    A(f"global_store_dwordx4 v8, v[4:7], s[{ws_pair}:{ws_pair+1}] offset:16")


def prof_report(arr, label, st=None):
    import numpy as np
    a = arr.astype(np.int64)
    rt0 = a[:,6]; rt1 = a[:,7]
    tot = (rt1.max() - rt0.min())/100.0
    cyc = (a[:,5]-a[:,0]) & 0xffffffff
    clk = np.median(cyc / np.maximum((rt1-rt0),1) * 100)
    d = lambda i, j: (a[:,j]-a[:,i]) & 0xffffffff
    if st:
        idx = [0] + [1+k for k in range(len(st))] + [5]
        parts = " ".join(f"{(['start']+list(st))[k]}->{(list(st)+['end'])[k]}: {np.median(d(idx[k], idx[k+1])):.0f}" for k in range(len(idx)-1))
    else:
        d1, d2, d3 = d(0,1), d(1,4), d(4,5)
        parts = f"cyc pro {np.median(d1):.0f} loop {np.median(d2):.0f} epi {np.median(d3):.0f} (max pro {d1.max()} loop {d2.max()} epi {d3.max()})"
    print(f"{label}: span {tot:6.2f}us | start spread {(rt0.max()-rt0.min())/100:.2f}us | per-WG {np.median(rt1-rt0)/100:6.2f}us | {parts} clk {clk:.0f}MHz")
    return rt0.min(), rt1.max()


def code_prefetch(A, opts, tag, label, nbytes, sW, vtmp, spair, wave=0):
    if opts.get("no_cpf") or not label:
        return 0
    n = (nbytes + 127) // 128
    SK = f"L_cpf_{tag}"
    A(f"s_cmp_lg_u32 s{sW}, {wave}")
    A(f"s_cbranch_scc1 {SK}")
    A(f"s_getpc_b64 s[{spair}:{spair+1}]")
    A.label(f"L_cpfpc_{tag}")
    A(f"s_add_u32 s{spair}, s{spair}, {label}-L_cpfpc_{tag}")
    A(f"s_addc_u32 s{spair+1}, s{spair+1}, 0")
    A(f"v_lshlrev_b32 v{vtmp}, 7, v0")
    done = 0
    while done < n:
        k = min(64, n - done)
        if k < 64:
            A(f"s_mov_b32 exec_lo, {hex((1 << min(k, 32)) - 1)}")
            A(f"s_mov_b32 exec_hi, {hex((1 << max(k - 32, 0)) - 1)}")
        A(f"global_load_dword v{vtmp+1}, v{vtmp}, s[{spair}:{spair+1}]")
        done += k
        if done < n:
            A(f"v_add_u32 v{vtmp}, 0x2000, v{vtmp}")
    A("s_mov_b64 exec, -1")
    A.label(SK)
    return 1
```

```python
from gen_common import *

sW, sWT, sWC = 24, 25, 26
sTB, sCB, sKH = 27, 28, 29
sToff, sWoff, sMT, sMW = 30, 31, 32, 38
SRD_T, SRD_W, SRD_O, SRD_X = 8, 12, 16, 20
vTd, vW0, vW1 = 1, 2, 3
vTr = [4, 5]
vR = [[6, 7, 8, 9], [10, 11, 12, 13]]
vt = 14
ACC = 20
WF = 52
TFR = 116
XTRA = 148


def acc(F, tl):
    return V(ACC + (F * 2 + tl) * 4, 4)


def wfrag(par, s2, F):
    return V(WF + par * 32 + s2 * 16 + F * 4, 4)


def tfrag(par, s2, tl):
    return V(TFR + par * 16 + s2 * 8 + tl * 4, 4)


def wave_ids(A):
    A(f"v_lshrrev_b32 v{vt}, 6, v0")
    A("v_and_b32 v0, 63, v0")
    A("s_nop 0")
    A(f"v_readfirstlane_b32 s{sW}, v{vt}")
    A("s_and_b32 s3, s2, 7")
    A("s_lshr_b32 s33, s2, 3")
    A("s_nop 0")
    A(f"s_and_b32 s{sWT}, s{sW}, 3")
    A(f"s_lshr_b32 s{sWC}, s{sW}, 2")


def tr_bases(A, perm, SLOT, woff):
    A(f"v_lshrrev_b32 v{vt}, 4, v0")
    A(f"v_bfe_u32 v{vt+1}, v0, 2, 2")
    if perm == "A":
        A(f"v_lshl_add_u32 v{vt+2}, v{vt}, 2, v{vt+1}")
    elif perm == "B":
        A(f"v_lshrrev_b32 v{vt+2}, 1, v{vt}")
        A(f"v_lshlrev_b32 v{vt+2}, 4, v{vt+2}")
        A(f"v_and_b32 v{vt+3}, 1, v{vt}")
        A(f"v_lshl_add_u32 v{vt+2}, v{vt+3}, 2, v{vt+2}")
        A(f"v_add_u32 v{vt+2}, v{vt+2}, v{vt+1}")
    else:
        A(f"v_lshl_add_u32 v{vt+2}, v{vt}, 3, v{vt+1}")
    A(f"v_lshlrev_b32 v{vt+2}, 7, v{vt+2}")
    A(f"v_and_b32 v{vt+3}, 3, v0")
    A(f"v_lshl_add_u32 v{vt+2}, v{vt+3}, 3, v{vt+2}")
    A(f"v_lshrrev_b32 v{vt+1}, 1, v{vt+1}")
    A(f"v_and_b32 v{vt}, 1, v{vt}")
    A(f"v_lshl_or_b32 v{vt}, v{vt}, 1, v{vt+1}")
    A(f"v_lshl_or_b32 v{vt}, v{vt}, 5, v{vt+2}")
    A(f"v_add_u32 v{vt}, s{woff}, v{vt}")
    for F in range(4):
        A(f"v_xor_b32 v{vR[0][F]}, {F << 5}, v{vt}")
        A(f"v_add_u32 v{vR[1][F]}, {2 * SLOT}, v{vR[0][F]}")


def g8_main(A, name, opts, nst, U, perm, NF, SLOT, dma, nops, t_reads, step_extra=None, stage_reads=None, pre_reads=None,
            after_first=None, extra_after=0, iter_end=None, fsel=None):
    di = {"A": 16, "B": 8, "N": 4}[perm]
    fsel = fsel or (lambda F: F)
    WOFF = 16384

    def tr_reads(par, slot):
        out = []
        h, sl = slot // 2, slot % 2
        for s2 in range(2):
            for F in range(NF):
                for i in range(2):
                    off = sl * SLOT + (32 * s2 + di * i) * 128
                    out.append(f"ds_read_b64_tr_b16 {V(wfrag(par, s2, F).base + 2 * i, 2)}, v{vR[h][fsel(F)]} offset:{off}")
        return out

    NIT = nst // U
    assert NIT * U == nst and U == 4

    def seq(tr, it):
        if it == -1:
            for s in range(U):
                for _ in range(nops): tr.issue(("S", s))
            for _ in range(extra_after): tr.issue(("Y", 0))
            return None
        ns = []
        for s in range(U * it, U * it + U):
            ns.append(tr.wait_for(lambda t: t == ("S", s + 1)))
            for _ in range(nops): tr.issue(("S", s + U))
        return ns

    waits = [63 if w is None else min(w, 63) for w in resolve_waits(seq, NIT)]
    for s in range(U):
        for g in dma(s):
            for l in g: A(l)
    xstamp(A, opts, "issued")
    if after_first:
        after_first()
    for i in range(0, 32, 2):
        A(f"v_mov_b64 v[{ACC + i}:{ACC + i + 1}], 0")
    xstamp(A, opts, "prewait")
    A(f"s_waitcnt vmcnt({(U - 1) * nops + extra_after})")
    A("s_barrier")
    for l in t_reads(0, 0) + tr_reads(0, 0): A(l)
    if pre_reads:
        pre_reads()
    stamp(A, opts, 1)
    xstamp(A, opts, "loopstart")
    LOOP = f"L_{name}_loop"
    A(f"s_mov_b32 s44, {NIT}")
    A.loop_begin(LOOP)
    for sl in range(U):
        par = sl % 2
        A(f"s_waitcnt vmcnt({waits[sl]}) lgkmcnt(0)")
        A("s_barrier")
        main = []
        for s2 in range(2):
            for F in range(NF):
                for tl in range(2):
                    main.append(mfma16(acc(F, tl), wfrag(par, s2, F), tfrag(par, s2, tl)))
            if step_extra:
                main += step_extra(par, s2, sl)
        n_m = len(main)
        nsl = (sl + 1) % U
        reads = t_reads(1 - par, nsl) + tr_reads(1 - par, nsl)
        if stage_reads:
            reads = stage_reads(1 - par, sl) + reads
        vm = dma(sl)
        f = {-1: list(vm[0])}
        spread(f, vm[1:], 0, min(n_m - 1, 2 * len(vm)))
        spread(f, reads, 0, max(2, n_m - opts.get("rd_margin", 3)))
        if sl == U - 1:
            f.setdefault(n_m - 1, [])
            if iter_end:
                f[n_m - 1].extend(iter_end())
            f[n_m - 1].append("s_sub_u32 s44, s44, 1")
            f[n_m - 1].append("s_cmp_lg_u32 s44, 0")
        for l in interleave(main, f): A(l)
    A(f"s_cbranch_scc1 {LOOP}")
    A.loop_end()
    stamp(A, opts, 2)
    xstamp(A, opts, "loopend")
    code_prefetch(A, opts, name, opts.get("next"), opts.get("next_bytes", 8192), sW, vt + 4, 46)


def advance(off, raw, stride, limit):
    return [f"s_add_u32 s{raw}, s{raw}, {stride}", f"s_cmp_lt_u32 s{raw}, s{limit}", f"s_cselect_b32 s{off}, s{raw}, 0x7ff00000"]


def finish(A, name, opts, END, nv):
    xstamp(A, opts, "stored")
    if opts.get("prof"):
        A("s_waitcnt vmcnt(0)")
        stamp(A, opts, 3)
        prof_store(A, opts, 4, opts.get("kidx", 0))
    A.label(END)
    A("s_endpgm")
    return kernel_desc(name, nv, 0, 80)


K5_LDS = 4 * 32768


def gen_k5s(A, name="k5_down_kernel", opts=None):
    opts = dict(opts or {})
    U, SLOT = 4, 32768
    kernel_begin(A, name)
    END = f"L_{name}_end"
    A("s_cmp_ge_u32 s2, 256")
    A(f"s_cbranch_scc1 {END}")
    stamp(A, opts, 0)
    A(f"s_load_dwordx2 s[4:5], s[0:1], {KA_WS}")
    A(f"s_load_dwordx2 s[42:43], s[0:1], {KA_OUT}")
    wave_ids(A)
    A(f"s_and_b32 s{sKH}, s3, 1")
    A(f"s_lshr_b32 s{sTB}, s3, 1")
    A(f"s_lshl_b32 s{sTB}, s{sTB}, 2")
    A("s_and_b32 s34, s33, 3")
    A(f"s_add_u32 s{sTB}, s{sTB}, s34")
    A(f"s_lshr_b32 s{sCB}, s33, 2")
    A(f"v_lshlrev_b32 v{vt}, 4, v0")
    A(f"s_lshl_b32 s34, s{sTB}, 3")
    A(f"s_add_u32 s34, s34, s{sW}")
    A(f"s_lshl_b32 s34, s34, 11")
    A(f"v_add_u32 v{vTd}, s34, v{vt}")
    A(f"s_mul_i32 s34, s{sCB}, {2 * 56 * 8192}")
    A(f"s_lshl_b32 s35, s{sW}, 10")
    A(f"s_add_u32 s34, s34, s35")
    A(f"v_add_u32 v{vW0}, s34, v{vt}")
    A(f"v_add_u32 v{vW1}, {56 * 8192}, v{vW0}")
    A(f"s_lshl_b32 s{sMT}, s{sW}, 11")
    A(f"s_lshl_b32 s{sMW}, s{sW}, 10")
    A(f"s_add_u32 s{sMW}, s{sMW}, 16384")
    A(f"s_mul_i32 s56, s{sKH}, {28 * STAGE_BYTES}")
    A(f"s_add_u32 s58, s56, {28 * STAGE_BYTES}")
    A(f"s_mul_i32 s57, s{sKH}, {28 * 8192}")
    A(f"s_add_u32 s59, s57, {28 * 8192}")
    A(f"s_mov_b32 s{sToff}, s56")
    A(f"s_mov_b32 s{sWoff}, s57")
    A("s_waitcnt lgkmcnt(0)")
    xstamp(A, opts, "karg")
    srd(A, SRD_T, 4, WS_ACT, ACT_BYTES)
    srd(A, SRD_W, 4, WS_WD, 3584 * 2048)

    def dma(slot):
        return [[f"s_add_u32 m0, s{sMT}, {slot * SLOT}", "s_nop 0",
                 f"buffer_load_dwordx4 v{vTd}, s[{SRD_T}:{SRD_T+3}], s{sToff} offen lds"],
                [f"buffer_load_dwordx4 v{vTd}, s[{SRD_T}:{SRD_T+3}], s{sToff} offen offset:1024 lds",
                 f"s_add_u32 m0, s{sMW}, {slot * SLOT}"] + advance(sToff, 56, STAGE_BYTES, 58),
                [f"buffer_load_dwordx4 v{vW0}, s[{SRD_W}:{SRD_W+3}], s{sWoff} offen lds",
                 f"s_add_u32 m0, s{sMW}, {slot * SLOT + 8192}", "s_nop 0"],
                [f"buffer_load_dwordx4 v{vW1}, s[{SRD_W}:{SRD_W+3}], s{sWoff} offen lds"] + advance(sWoff, 57, 8192, 59)]

    def read_setup():
        A(f"s_lshl_b32 s34, s{sWT}, 1")
        A(f"s_add_u32 s34, s34, s{sKH}")
        A(f"s_lshl_b32 s34, s34, 11")
        A(f"v_lshlrev_b32 v{vt}, 4, v0")
        A(f"v_add_u32 v{vTr[0]}, s34, v{vt}")
        A(f"v_add_u32 v{vTr[1]}, {2 * SLOT}, v{vTr[0]}")
        A(f"v_xor_b32 v{XT1[0]}, 2048, v{vTr[0]}")
        A(f"v_xor_b32 v{XT1[1]}, 2048, v{vTr[1]}")
        A(f"s_lshl_b32 s34, s{sWC}, 13")
        A(f"s_add_u32 s34, s34, 16384")
        tr_bases(A, "A", SLOT, 34)

    XT1 = [XTRA, XTRA + 1]
    HR, MH = XTRA + 4, XTRA + 12
    RX = XTRA + 16
    vF = XTRA + 2

    def t_reads(par, slot):
        h, sl = slot // 2, slot % 2
        return [f"ds_read_b128 {tfrag(par, s2, tl)}, v{(vTr[h] if tl == 0 else XT1[h])} offset:{sl * SLOT + s2 * 1024}"
                for s2 in range(2) for tl in range(2)]

    def after_first():
        read_setup()
        srd(A, SRD_X, 4, WS_HC, 4 * MB)
        A(f"s_lshl_b32 s34, s{sTB}, 3")
        A(f"s_lshl_b32 s35, s{sWT}, 1")
        A(f"s_add_u32 s34, s34, s35")
        A(f"s_add_u32 s34, s34, s{sKH}")
        A(f"s_mov_b32 s60, s34")
        A(f"s_lshl_b32 s34, s34, 11")
        A(f"s_lshl_b32 s35, s{sCB}, 1")
        A(f"s_add_u32 s35, s35, s{sWC}")
        A(f"s_mov_b32 s61, s35")
        A(f"s_lshl_b32 s35, s35, 18")
        A(f"s_add_u32 s34, s34, s35")
        A(f"v_lshlrev_b32 v{vt}, 4, v0")
        for P in range(2):
            A(f"buffer_load_dwordx4 {V(HR + 4 * P, 4)}, v{vt}, s[{SRD_X}:{SRD_X+3}], s34 offen offset:{P * 1024}")
        srd(A, SRD_X, 4, WS_MH, 8192)
        A(f"v_and_b32 v{vt}, 15, v0")
        A(f"v_lshlrev_b32 v{vt}, 2, v{vt}")
        A(f"s_lshl_b32 s34, s60, 6")
        A(f"buffer_load_dword v{MH}, v{vt}, s[{SRD_X}:{SRD_X+3}], s34 offen")

    g8_main(A, name, opts, 28, U, "A", 4, SLOT, dma, 4, t_reads, after_first=after_first, extra_after=3)

    A(f"s_lshl_b32 s34, s{sTB}, 3")
    A(f"s_add_u32 s34, s34, s{sCB}")
    A(f"s_lshl_b32 s34, s34, 1")
    A(f"s_add_u32 s35, s34, s{sKH}")
    A(f"s_lshl_b32 s35, s35, 3")
    A(f"s_add_u32 s35, s35, s{sW}")
    A(f"s_xor_b32 s36, s35, 8")
    srd(A, SRD_T, 4, WS_XB, 8 * MB)
    srd(A, SRD_W, 4, WS_FL, 2048 * 128)
    A(f"v_lshlrev_b32 v{vt}, 4, v0")
    A(f"s_lshl_b32 s37, s35, 12")
    A("s_nop 1")
    for F in range(4):
        A(f"buffer_store_dwordx4 {acc(F, 1)}, v{vt}, s[{SRD_T}:{SRD_T+3}], s37 offen offset:{F * 1024} sc1")
    T = vt + 1
    for F in range(4):
        h = HR + (F // 2) * 4 + (F % 2) * 2
        a = acc(F, 0).base
        for x in range(2):
            A(f"v_lshlrev_b32 v{T}, 16, v{h + x}")
            A(f"v_and_b32 v{T+1}, 0xffff0000, v{h + x}")
            A(f"v_add_f32 v{T}, v{T}, v{MH}")
            A(f"v_add_f32 v{T+1}, v{T+1}, v{MH}")
            A(f"v_add_f32 v{a + 2*x}, v{a + 2*x}, v{T}")
            A(f"v_add_f32 v{a + 2*x + 1}, v{a + 2*x + 1}, v{T+1}")
    A(f"v_mov_b32 v{vF}, 0")
    A(f"v_mov_b32 v{vF+1}, 1")
    A(f"s_lshl_b32 s35, s35, 7")
    A(f"s_lshl_b32 s39, s36, 7")
    A("s_waitcnt vmcnt(0)")
    A(f"buffer_store_dword v{vF+1}, v{vF}, s[{SRD_W}:{SRD_W+3}], s35 offen sc1")
    xstamp(A, opts, "sent")
    POLL, GOT = f"L_{name}_poll", f"L_{name}_got"
    A("s_mov_b32 s44, 0x8000")
    A.label(POLL)
    if opts.get("poll", "atomic") == "atomic":
        A(f"v_mov_b32 v{T}, 0")
        A("s_mov_b64 exec, 1")
        A(f"buffer_atomic_or v{T}, v{vF}, s[{SRD_W}:{SRD_W+3}], s39 offen sc0 sc1")
        A("s_mov_b64 exec, -1")
    else:
        A(f"buffer_load_dword v{T}, v{vF}, s[{SRD_W}:{SRD_W+3}], s39 offen {opts.get('pollflag', 'sc1')}")
    A("s_waitcnt vmcnt(0)")
    A(f"v_readfirstlane_b32 s34, v{T}")
    A("s_sub_u32 s44, s44, 1")
    A("s_cmp_eq_u32 s44, 0")
    A(f"s_cbranch_scc1 {GOT}")
    A("s_cmp_lg_u32 s34, 1")
    A(f"s_cbranch_scc1 {POLL}")
    A.label(GOT)
    xstamp(A, opts, "got")
    A(f"s_lshl_b32 s37, s36, 12")
    for F in range(4):
        A(f"buffer_load_dwordx4 {V(RX + 4 * F, 4)}, v{vt}, s[{SRD_T}:{SRD_T+3}], s37 offen offset:{F * 1024} sc1")
    A("s_barrier")
    srd(A, SRD_O, 42, 0, 2048 * 2048)
    A(f"s_lshl_b32 s36, s{sW}, 11")
    vA, vO = WF, WF + 4
    A(f"v_and_b32 v{T}, 15, v0")
    A(f"v_lshrrev_b32 v{T+1}, 1, v{T}")
    A(f"v_lshrrev_b32 v{T+2}, 5, v0")
    A(f"v_xor_b32 v{T+1}, v{T+1}, v{T+2}")
    A(f"v_lshlrev_b32 v{T+1}, 4, v{T+1}")
    A(f"v_lshl_add_u32 v{T+1}, v{T}, 7, v{T+1}")
    A(f"v_bfe_u32 v{T+2}, v0, 4, 1")
    A(f"v_lshl_add_u32 v{T+1}, v{T+2}, 3, v{T+1}")
    A(f"v_add_u32 v{vA}, s36, v{T+1}")
    for F in range(1, 4):
        A(f"v_xor_b32 v{vA+F}, {F << 5}, v{vA}")
    A(f"s_lshl_b32 s34, s60, 15")
    A(f"s_lshl_b32 s35, s61, 7")
    A(f"s_add_u32 s34, s34, s35")
    A(f"v_lshrrev_b32 v{T}, 3, v0")
    A(f"v_lshlrev_b32 v{T}, 11, v{T}")
    A(f"v_add_u32 v{T}, s34, v{T}")
    A(f"v_and_b32 v{T+1}, 7, v0")
    A(f"v_lshrrev_b32 v{T+2}, 4, v0")
    A(f"v_xor_b32 v{T+1}, v{T+1}, v{T+2}")
    A(f"v_lshl_add_u32 v{vO}, v{T+1}, 4, v{T}")
    A(f"v_xor_b32 v{T+1}, 4, v{T+1}")
    A(f"v_lshl_add_u32 v{vO+1}, v{T+1}, 4, v{T}")
    A(f"v_add_u32 v{vO+1}, 16384, v{vO+1}")
    for F in range(4):
        a = acc(F, 0).base
        A(f"s_waitcnt vmcnt({3 - F})")
        for r in range(4):
            A(f"v_add_f32 v{a + r}, v{a + r}, v{RX + 4 * F + r}")
        A(f"v_cvt_pk_bf16_f32 v{a}, v{a}, v{a+1}")
        A(f"v_cvt_pk_bf16_f32 v{a+1}, v{a+2}, v{a+3}")
        A(f"ds_write_b64 v{vA + F}, {V(a, 2)}")
    A(f"v_lshlrev_b32 v{T}, 4, v0")
    A(f"v_add_u32 v{T}, s36, v{T}")
    A("s_waitcnt lgkmcnt(0)")
    for m in range(2):
        A(f"ds_read_b128 {V(WF + 8 + 4 * m, 4)}, v{T} offset:{m * 1024}")
    for m in range(2):
        A(f"s_waitcnt lgkmcnt({1 - m})")
        A(f"buffer_store_dwordx4 {V(WF + 8 + 4 * m, 4)}, v{vO + m}, s[{SRD_O}:{SRD_O+3}], 0 offen")
    return finish(A, name, opts, END, XTRA + 32)
```

```python
from gen_common import *

sW, sTB, sCB = 24, 25, 26
sToff, sWoff, sM0b = 27, 28, 29
sRot, sTraw, sWraw, sTcnt, sWcnt = 55, 56, 57, 58, 59
SRD_T, SRD_W, SRD_O, SRD_X = 8, 12, 16, 20
vT0, vT1 = 1, 2
vW0, vW1 = 3, 4
vR = 6
vt = 10
ACC = 16
RB = [48, 80]
XTRA = 112
TRING = 160


def acc(F, tl):
    return V(ACC + (F * 2 + tl) * 4, 4)


def tslot(stage_slot, s2, tl):
    return Ac(stage_slot * 16 + s2 * 8 + tl * 4, 4)


def ids(A, opts=None):
    if not (opts and opts.get("emb")):
        A(f"v_lshrrev_b32 v{vt}, 6, v0")
        A(f"v_and_b32 v0, 63, v0")
    A(f"s_and_b32 s3, s2, 7")
    if not (opts and opts.get("emb")):
        A(f"v_readfirstlane_b32 s{sW}, v{vt}")
    A(f"s_lshr_b32 s30, s2, 3")
    A(f"s_lshr_b32 s{sTB}, s3, 1")
    A(f"s_lshl_b32 s{sTB}, s{sTB}, 2")
    A(f"s_and_b32 s33, s30, 3")
    A(f"s_add_u32 s{sTB}, s{sTB}, s33")
    A(f"s_and_b32 s{sCB}, s3, 1")
    A(f"s_lshl_b32 s{sCB}, s{sCB}, 3")
    A(f"s_lshr_b32 s33, s30, 2")
    A(f"s_add_u32 s{sCB}, s{sCB}, s33")
    if opts and opts.get("map") == "same":
        A(f"s_mov_b32 s{sTB}, 0"); A(f"s_mov_b32 s{sCB}, 0")
    if opts and opts.get("map") == "sametb":
        A(f"s_mov_b32 s{sTB}, 0")
    if opts and opts.get("map") == "samecb":
        A(f"s_mov_b32 s{sCB}, 0")
    if opts and opts.get("map") == "tokxcd":
        A(f"s_lshl_b32 s{sTB}, s3, 1"); A(f"s_and_b32 s33, s30, 1"); A(f"s_add_u32 s{sTB}, s{sTB}, s33")
        A(f"s_lshr_b32 s{sCB}, s30, 1")
    if opts and opts.get("map") == "cbx":
        A(f"s_xor_b32 s{sCB}, s{sCB}, 5")
    if opts and opts.get("map") == "rowmajor":
        A(f"s_lshr_b32 s{sTB}, s2, 4"); A(f"s_and_b32 s{sCB}, s2, 15")
    if opts and opts.get("map") == "m8x4":
        A(f"s_lshr_b32 s{sTB}, s3, 2"); A(f"s_lshl_b32 s{sTB}, s{sTB}, 3"); A(f"s_and_b32 s33, s30, 7"); A(f"s_add_u32 s{sTB}, s{sTB}, s33")
        A(f"s_and_b32 s{sCB}, s3, 3"); A(f"s_lshl_b32 s{sCB}, s{sCB}, 2"); A(f"s_lshr_b32 s33, s30, 3"); A(f"s_add_u32 s{sCB}, s{sCB}, s33")


def set_rot(A, opts, nstages):
    r = opts.get("rot")
    if r is None:
        return
    if r == "cb":
        A(f"s_and_b32 s{sRot}, s{sCB}, 15")
    elif r == "tb":
        A(f"s_and_b32 s{sRot}, s{sTB}, 15")
    elif r == "cbtb":
        A(f"s_add_u32 s{sRot}, s{sCB}, s{sTB}"); A(f"s_and_b32 s{sRot}, s{sRot}, 15")
    elif r == "cb7":
        A(f"s_and_b32 s{sRot}, s{sCB}, 7"); A(f"s_mul_i32 s{sRot}, s{sRot}, {opts.get('rotk', 1)}")
    elif r == "tb3":
        A(f"s_and_b32 s{sRot}, s{sTB}, 3"); A(f"s_mul_i32 s{sRot}, s{sRot}, {opts.get('rotk', 1)}")
    elif r == "idx":
        A(f"s_lshr_b32 s{sRot}, s2, 3"); A(f"s_mul_i32 s{sRot}, s{sRot}, {opts.get('rotk', 1)}"); A(f"s_lshr_b32 s{sRot}, s{sRot}, {opts.get('rotsh', 0)}")
    elif r == "ct":
        a, b = opts.get("rota", 2), opts.get("rotb", 4)
        A(f"s_and_b32 s33, s{sCB}, 7"); A(f"s_mul_i32 s33, s33, {a}")
        A(f"s_and_b32 s34, s{sTB}, 3"); A(f"s_mul_i32 s34, s34, {b}")
        A(f"s_add_u32 s{sRot}, s33, s34")
        for _ in range((7 * a + 3 * b) // nstages):
            A(f"s_cmp_ge_u32 s{sRot}, {nstages}"); A(f"s_cselect_b32 s33, {nstages}, 0"); A(f"s_sub_u32 s{sRot}, s{sRot}, s33")
    elif r == "zero":
        A(f"s_mov_b32 s{sRot}, 0")


def l2_sweep(A, opts, srd_t, tok_kind, srd_w, dummy):
    if not opts.get("sweep"):
        return 0
    A(f"s_lshr_b32 s33, s2, 3")
    A(f"s_lshl_b32 s33, s33, 2")
    A(f"s_add_u32 s33, s33, s{sW}")
    A(f"s_lshl_b32 s33, s33, 6")
    A(f"v_add_u32 v{vt}, s33, v0")
    A(f"s_and_b32 s34, s2, 7")
    A(f"v_lshrrev_b32 v{vt+1}, 3, v{vt}")
    A(f"v_lshlrev_b32 v{vt+1}, 11, v{vt+1}")
    A(f"v_and_b32 v{vt+2}, 7, v{vt}")
    A(f"v_lshl_add_u32 v{vt+1}, v{vt+2}, 7, v{vt+1}")
    A(f"s_and_b32 s35, s34, 1")
    A(f"s_lshl_b32 s35, s35, 10")
    A(f"buffer_load_dword v{dummy}, v{vt+1}, s[{srd_w}:{srd_w+3}], s35 offen")
    A(f"s_lshr_b32 s34, s34, 1")
    if tok_kind == "rows":
        A(f"v_lshlrev_b32 v{vt+1}, 7, v{vt}")
        A(f"s_lshl_b32 s35, s34, 20")
    else:
        A(f"v_lshrrev_b32 v{vt+1}, 9, v{vt}")
        A(f"v_lshlrev_b32 v{vt+1}, 18, v{vt+1}")
        A(f"v_and_b32 v{vt+2}, 511, v{vt}")
        A(f"v_lshl_add_u32 v{vt+1}, v{vt+2}, 7, v{vt+1}")
        A(f"s_lshl_b32 s35, s34, 16")
    A(f"buffer_load_dword v{dummy}, v{vt+1}, s[{srd_t}:{srd_t+3}], s35 offen")
    return 2


def tf_voffsets(A):
    A(f"s_lshl_b32 s33, s{sTB}, 2")
    A(f"s_add_u32 s33, s33, s{sW}")
    A(f"s_lshl_b32 s33, s33, 12")
    A(f"v_lshlrev_b32 v{vT0}, 4, v0")
    A(f"v_add_u32 v{vT0}, s33, v{vT0}")


def w_setup(A, perm, rowstride, rotf=False, packed=False):
    A(f"v_lshrrev_b32 v{vt}, 3, v0")
    A(f"s_lshl_b32 s33, s{sW}, 4")
    A(f"v_add_u32 v{vt}, s33, v{vt}")
    A(f"s_mov_b32 s34, {rowstride}")
    A(f"v_mul_lo_u32 v{vt}, v{vt}, s34")
    A(f"s_lshl_b32 s33, s{sCB}, 7")
    A(f"v_add_u32 v{vt}, s33, v{vt}")
    A(f"v_and_b32 v{vt+1}, 7, v0")
    if perm in "AB":
        A(f"v_bfe_u32 v{vt+2}, v0, 4, 2")
        A(f"v_lshlrev_b32 v{vt+2}, 1, v{vt+2}")
        A(f"v_xor_b32 v{vt+1}, v{vt+1}, v{vt+2}")
        A(f"v_lshl_add_u32 v{vW0}, v{vt+1}, 4, v{vt}")
        A(f"v_add_u32 v{vW1}, {8 * rowstride - 1024}, v{vW0}")
    else:
        A(f"v_bfe_u32 v{vt+2}, v0, 4, 1")
        A(f"v_lshlrev_b32 v{vt+2}, 1, v{vt+2}")
        A(f"v_xor_b32 v{vt+1}, v{vt+1}, v{vt+2}")
        A(f"v_lshl_add_u32 v{vW0}, v{vt+1}, 4, v{vt}")
        A(f"v_xor_b32 v{vt+1}, 4, v{vt+1}")
        A(f"v_lshl_add_u32 v{vW1}, v{vt+1}, 4, v{vt}")
        A(f"v_add_u32 v{vW1}, {8 * rowstride - 1024}, v{vW1}")
    A(f"s_lshl_b32 s{sM0b}, s{sW}, 11")
    if packed:
        A(f"s_mul_i32 s33, s{sCB}, {56 * 8192}")
        A(f"s_add_u32 s33, s33, s{sM0b}")
        A(f"v_lshlrev_b32 v{vW0}, 4, v0")
        A(f"v_add_u32 v{vW0}, s33, v{vW0}")
        A(f"v_mov_b32 v{vW1}, v{vW0}")
    A(f"v_lshrrev_b32 v{vt}, 4, v0")
    A(f"v_bfe_u32 v{vt+1}, v0, 2, 2")
    if perm == "A":
        A(f"v_lshl_add_u32 v{vt+2}, v{vt}, 2, v{vt+1}")
    elif perm == "B":
        A(f"v_lshrrev_b32 v{vt+2}, 1, v{vt}")
        A(f"v_lshlrev_b32 v{vt+2}, 4, v{vt+2}")
        A(f"v_and_b32 v{vt+3}, 1, v{vt}")
        A(f"v_lshl_add_u32 v{vt+2}, v{vt+3}, 2, v{vt+2}")
        A(f"v_add_u32 v{vt+2}, v{vt+2}, v{vt+1}")
    else:
        A(f"v_lshl_add_u32 v{vt+2}, v{vt}, 3, v{vt+1}")
    A(f"v_lshlrev_b32 v{vt+2}, 7, v{vt+2}")
    A(f"v_and_b32 v{vt+3}, 3, v0")
    A(f"v_lshl_add_u32 v{vt+2}, v{vt+3}, 3, v{vt+2}")
    A(f"v_lshrrev_b32 v{vt+1}, 1, v{vt+1}")
    A(f"v_and_b32 v{vt}, 1, v{vt}")
    A(f"v_lshl_or_b32 v{vt}, v{vt}, 1, v{vt+1}")
    if not rotf:
        A(f"v_lshl_or_b32 v{vR}, v{vt}, 5, v{vt+2}")
        for F in range(1, 4):
            A(f"v_xor_b32 v{vR+F}, {F << 5}, v{vR}")
    else:
        A(f"v_lshl_or_b32 v{vt}, v{vt}, 5, v{vt+2}")
        for F in range(4):
            A(f"s_add_u32 s33, s{sW}, {F}")
            A(f"s_and_b32 s33, s33, 3")
            A(f"s_lshl_b32 s33, s33, 5")
            A(f"v_xor_b32 v{vR+F}, s33, v{vt}")


def wfrag(par, s2, F):
    return V(RB[par] + s2 * 16 + F * 4, 4)


def gs_main(A, name, opts, nstages, U, perm, rowstride, t_loads, step_extra=None, stage_reads=None,
            after_first_loads=None, iter_end=None, pre_reads=None, extra_after=0, tlds=None):
    di = {"A": 16, "B": 8, "N": 4}[perm]
    tstride = opts["tstride"]
    assert U % 2 == 0

    def w_dma(slot):
        return [[f"s_add_u32 m0, s{sM0b}, {slot * 8192}", "s_nop 0",
                 f"buffer_load_dwordx4 v{vW0}, s[{SRD_W}:{SRD_W+3}], s{sWoff} offen lds"],
                [f"buffer_load_dwordx4 v{vW1}, s[{SRD_W}:{SRD_W+3}], s{sWoff} offen offset:1024 lds"]]

    def tr_reads(par, slot):
        out = []
        for s2 in range(2):
            for F in range(4):
                for i in range(2):
                    off = slot * 8192 + (32 * s2 + di * i) * 128
                    out.append(f"ds_read_b64_tr_b16 {V(wfrag(par, s2, F).base + 2 * i, 2)}, v{vR+F} offset:{off}")
        return out

    NIT = nstages // U
    assert NIT * U == nstages
    ROT = opts.get("rot") is not None
    wstride = 64 * rowstride

    def advance(raw, cnt, off, stride):
        if not ROT:
            return [f"s_add_u32 s{off}, s{off}, {stride}"]
        return [f"s_add_u32 s{raw}, s{raw}, {stride}",
                f"s_cmp_eq_u32 s{raw}, {nstages * stride}",
                f"s_cselect_b32 s{raw}, 0, s{raw}",
                f"s_add_u32 s{cnt}, s{cnt}, 1",
                f"s_cmp_lt_u32 s{cnt}, {nstages}",
                f"s_cselect_b32 s{off}, s{raw}, 0x7ff00000"]

    handoff = opts.get("handoff")

    def seq(tr, it):
        if it == -1 and handoff:
            for s in range(U - 1):
                for _ in range(4): tr.issue(("T", s))
            for _ in range(extra_after): tr.issue(("Y", 0))
            return None
        if it == -1:
            for s in range(U):
                for _ in range(2): tr.issue(("W", s))
                if tlds:
                    for _ in range(4): tr.issue(("W", s))
                elif s >= 1:
                    for _ in range(4): tr.issue(("T", s - 1))
            for _ in range(extra_after): tr.issue(("Y", 0))
            return None
        ns = []
        for s in range(U * it, U * it + U):
            ns.append(tr.wait_for(lambda t: t == ("T", s) or t == ("W", s + 1)))
            for _ in range(2): tr.issue(("W", s + U))
            for _ in range(4): tr.issue(("W", s + U) if tlds else ("T", s + U - 1))
        return ns

    waits = [63 if w is None else min(w, 63) for w in resolve_waits(seq, NIT)]

    if ROT:
        A(f"s_mul_i32 s{sToff}, s{sRot}, {tstride}")
        A(f"s_mul_i32 s{sWoff}, s{sRot}, {wstride}")
        A(f"s_mov_b32 s{sTraw}, s{sToff}")
        A(f"s_mov_b32 s{sWraw}, s{sWoff}")
        A(f"s_mov_b32 s{sTcnt}, 0")
        A(f"s_mov_b32 s{sWcnt}, 0")
    else:
        A(f"s_mov_b32 s{sToff}, 0")
        A(f"s_mov_b32 s{sWoff}, 0")
    if handoff:
        opts["publish"]()
        for s in range(U):
            for g in w_dma(s):
                for l in g: A(l)
            for l in advance(sWraw, sWcnt, sWoff, wstride): A(l)
        handoff()
        for s in range(U - 1):
            for l in t_loads(s, f"s{sToff}"): A(l)
            for l in advance(sTraw, sTcnt, sToff, tstride): A(l)
    for s in range(0 if not handoff else U, U):
        for g in w_dma(s):
            for l in g: A(l)
        for l in advance(sWraw, sWcnt, sWoff, wstride): A(l)
        if tlds:
            for g in tlds["dma"](s):
                for l in g: A(l)
            for l in advance(sTraw, sTcnt, sToff, tstride): A(l)
        elif s >= 1:
            for l in t_loads(s - 1, f"s{sToff}"): A(l)
            for l in advance(sTraw, sTcnt, sToff, tstride): A(l)
    xstamp(A, opts, "issued")
    if after_first_loads:
        after_first_loads()
    for i in range(0, 32, 2):
        A(f"v_mov_b64 v[{ACC + i}:{ACC + i + 1}], 0")
    n_after = (U - 1) * 6 + extra_after
    xstamp(A, opts, "prewait")
    if not handoff:
        A(f"s_waitcnt vmcnt({min(n_after, 63)})")
        A(f"s_barrier")
    for l in tr_reads(0, 0): A(l)
    if tlds:
        for l in tlds["reads"](0, 0): A(l)
    if pre_reads:
        pre_reads()

    stamp(A, opts, 1)
    xstamp(A, opts, "loopstart")
    LOOP = f"L_{name}_loop"
    A(f"s_mov_b32 s44, {NIT}")
    A.loop_begin(LOOP)
    for sl in range(U):
        par = sl % 2
        A(f"s_waitcnt vmcnt({waits[sl]}) lgkmcnt(0)")
        A("s_barrier")
        main = []
        for s2 in range(2):
            for F in range(4):
                for tl in range(2):
                    main.append(mfma16(acc(F, tl), wfrag(par, s2, F), tlds["frag"](par, s2, tl) if tlds else tslot(sl, s2, tl)))
            if step_extra:
                main += step_extra(par, s2, sl)
        n_m = len(main)
        nsl = (sl + 1) % U
        reads = tr_reads(1 - par, nsl)
        if tlds:
            reads = tlds["reads"](1 - par, nsl) + reads
        if stage_reads:
            reads = stage_reads(1 - par, sl) + reads
        g = w_dma(sl)
        vm = [g[0], g[1] + advance(sWraw, sWcnt, sWoff, wstride)]
        if tlds:
            d = tlds["dma"](sl)
            d[-1] = d[-1] + advance(sTraw, sTcnt, sToff, tstride)
            vm += d
        else:
            ld = [[x] for x in t_loads((sl + U - 1) % U, f"s{sToff}")]
            ld[-1] = ld[-1] + advance(sTraw, sTcnt, sToff, tstride)
            vm += ld
        f = {}
        f[-1] = list(vm[0])
        spread(f, vm[1:], 0, min(n_m - 2, 2 * (len(vm) - 1)))
        spread(f, reads, 0, n_m - opts.get("rd_margin", 4))
        if sl == U - 1:
            f.setdefault(n_m - 1, [])
            if iter_end:
                f[n_m - 1].extend(iter_end())
            f[n_m - 1].append("s_sub_u32 s44, s44, 1")
            f[n_m - 1].append("s_cmp_lg_u32 s44, 0")
        for l in interleave(main, f): A(l)
    A(f"s_cbranch_scc1 {LOOP}")
    A.loop_end()
    stamp(A, opts, 2)
    xstamp(A, opts, "loopend")
    code_prefetch(A, opts, name, opts.get("next"), opts.get("next_bytes", 8192), sW, vt + 4, 46)


def tf_tloads(sl, soff):
    out = []
    for tl in range(2):
        for s2 in range(2):
            out.append(f"buffer_load_dwordx4 {tslot(sl, s2, tl)}, v{vT0}, s[{SRD_T}:{SRD_T+3}], {soff} offen offset:{tl * 2048 + s2 * 1024}")
    return out


def finish(A, name, opts, END, nv, na=0):
    xstamp(A, opts, "stored")
    if opts.get("emb"):
        return None
    if opts.get("prof"):
        A("s_waitcnt vmcnt(0)")
        stamp(A, opts, 3)
        prof_store(A, opts, 4, opts.get("kidx", 0))
    A.label(END)
    A("s_endpgm")
    return kernel_desc(name, nv, na, 80)


def gen_k5(A, name="k5_down_kernel", opts=None):
    opts = dict(opts or {})
    U = opts.get("U", 8)
    opts["tstride"] = STAGE_BYTES
    opts.setdefault("rot", "zero")
    END = f"L_{name}_end"
    if opts.get("emb"):
        A("s_mov_b64 s[42:43], s[88:89]")
    else:
        kernel_begin(A, name)
        A("s_cmp_ge_u32 s2, 256")
        A(f"s_cbranch_scc1 {END}")
        stamp(A, opts, 0)
        A(f"s_load_dwordx2 s[4:5], s[0:1], {KA_WS}")
        A(f"s_load_dwordx4 s[40:43], s[0:1], {KA_WD}")
    ids(A, opts)
    set_rot(A, opts, 56)
    tf_voffsets(A)
    w_setup(A, "A", 2048, packed=True)
    A("s_waitcnt lgkmcnt(0)")
    xstamp(A, opts, "karg")
    srd(A, SRD_T, 4, WS_ACT, ACT_BYTES)
    srd(A, SRD_W, 4, WS_WD, 3584 * 2048)
    srd(A, SRD_X, 4, WS_HC, 4 * MB)
    srd(A, SRD_O, 42, 0, 2048 * 2048)
    HR = XTRA
    MH = XTRA + 16

    def pre_extra():
        A(f"s_lshl_b32 s33, s{sCB}, 18")
        for tl in range(2):
            for P in range(2):
                A(f"buffer_load_dwordx4 {V(HR + (tl * 2 + P) * 4, 4)}, v{vT0}, s[{SRD_X}:{SRD_X+3}], s33 offen offset:{tl * 2048 + P * 1024}")
        srd(A, SRD_X, 4, WS_MH, 8192)
        row_token_addr(A, vt, 2)
        for tl in range(2):
            A(f"buffer_load_dword v{MH + tl}, v{vt}, s[{SRD_X}:{SRD_X+3}], 0 offen offset:{tl * 64}")

    gs_main(A, name, opts, 56, U, "A", 128, tf_tloads, after_first_loads=pre_extra, extra_after=6)

    A("s_waitcnt vmcnt(0) lgkmcnt(0)")
    A(f"s_lshl_b32 s36, s{sW}, 12")
    A(f"s_add_u32 s36, s36, {U * 8192}")
    vA, vO = RB[0], RB[0] + 4
    dlayout_lds_addr(A, vA, 36)
    rowtile_voffsets(A, vO, 7)
    T = vt
    for tl in range(2):
        for F in range(4):
            h = HR + (tl * 2 + F // 2) * 4 + (F % 2) * 2
            a = acc(F, tl).base
            for x in range(2):
                A(f"v_lshlrev_b32 v{T}, 16, v{h + x}")
                A(f"v_and_b32 v{T+1}, 0xffff0000, v{h + x}")
                A(f"v_add_f32 v{T}, v{T}, v{MH + tl}")
                A(f"v_add_f32 v{T+1}, v{T+1}, v{MH + tl}")
                A(f"v_add_f32 v{a + 2*x}, v{a + 2*x}, v{T}")
                A(f"v_add_f32 v{a + 2*x + 1}, v{a + 2*x + 1}, v{T+1}")
            A(f"v_cvt_pk_bf16_f32 v{a}, v{a}, v{a+1}")
            A(f"v_cvt_pk_bf16_f32 v{a+1}, v{a+2}, v{a+3}")
            A(f"ds_write_b64 v{vA + F}, {V(a, 2)} offset:{tl * 2048}")
    A(f"v_lshlrev_b32 v{T}, 4, v0")
    A(f"v_add_u32 v{T}, s36, v{T}")
    A("s_waitcnt lgkmcnt(0)")
    for m in range(4):
        A(f"ds_read_b128 {V(RB[1] + 4 * m, 4)}, v{T} offset:{m * 1024}")
    for m in range(4):
        A(f"s_waitcnt lgkmcnt({3 - m})")
        A(f"buffer_store_dwordx4 {V(RB[1] + 4 * m, 4)}, v{vO + m}, s[{SRD_O}:{SRD_O+3}], 0 offen")
    return finish(A, name, opts, END, TRING, U * 16)


def rowtile_voffsets(A, dst, colbytes_sgpr_shift, rowstride_shift=11):
    A(f"s_lshl_b32 s33, s{sTB}, 2")
    A(f"s_add_u32 s33, s33, s{sW}")
    A(f"s_lshl_b32 s33, s33, 16")
    if colbytes_sgpr_shift is not None:
        A(f"s_lshl_b32 s34, s{sCB}, {colbytes_sgpr_shift}")
        A(f"s_add_u32 s33, s33, s34")
    A(f"v_lshrrev_b32 v{vt}, 3, v0")
    A(f"v_lshlrev_b32 v{vt}, 11, v{vt}")
    A(f"v_add_u32 v{vt}, s33, v{vt}")
    A(f"v_and_b32 v{vt+1}, 7, v0")
    A(f"v_lshrrev_b32 v{vt+2}, 4, v0")
    A(f"v_xor_b32 v{vt+1}, v{vt+1}, v{vt+2}")
    A(f"v_lshl_add_u32 v{dst}, v{vt+1}, 4, v{vt}")
    A(f"v_xor_b32 v{vt+1}, 4, v{vt+1}")
    A(f"v_lshl_add_u32 v{dst+1}, v{vt+1}, 4, v{vt}")
    A(f"v_add_u32 v{dst+2}, {2 * 16384}, v{dst}")
    A(f"v_add_u32 v{dst+3}, {3 * 16384}, v{dst+1}")
    A(f"v_add_u32 v{dst+1}, 16384, v{dst+1}")


def dlayout_lds_addr(A, dst, base_sgpr):
    A(f"v_and_b32 v{vt}, 15, v0")
    A(f"v_lshrrev_b32 v{vt+1}, 1, v{vt}")
    A(f"v_lshrrev_b32 v{vt+2}, 5, v0")
    A(f"v_xor_b32 v{vt+1}, v{vt+1}, v{vt+2}")
    A(f"v_lshlrev_b32 v{vt+1}, 4, v{vt+1}")
    A(f"v_lshl_add_u32 v{vt+1}, v{vt}, 7, v{vt+1}")
    A(f"v_bfe_u32 v{vt+2}, v0, 4, 1")
    A(f"v_lshl_add_u32 v{vt+1}, v{vt+2}, 3, v{vt+1}")
    A(f"v_add_u32 v{dst}, s{base_sgpr}, v{vt+1}")
    for F in range(1, 4):
        A(f"v_xor_b32 v{dst+F}, {F << 5}, v{dst}")


def reduce_over_g(A, reg, tmp):
    A(f"v_mov_b32 v{tmp}, v{reg}")
    A("s_nop 1")
    A(f"v_permlane16_swap_b32 v{reg}, v{tmp}")
    A(f"v_add_f32 v{reg}, v{reg}, v{tmp}")
    A(f"v_mov_b32 v{tmp}, v{reg}")
    A("s_nop 1")
    A(f"v_permlane32_swap_b32 v{reg}, v{tmp}")
    A(f"v_add_f32 v{reg}, v{reg}, v{tmp}")


def row_token_addr(A, dst, shift):
    A(f"v_and_b32 v{dst}, 15, v0")
    A(f"s_lshl_b32 s33, s{sTB}, 2")
    A(f"s_add_u32 s33, s33, s{sW}")
    A(f"s_lshl_b32 s33, s33, 5")
    A(f"v_add_u32 v{dst}, s33, v{dst}")
    A(f"v_lshlrev_b32 v{dst}, {shift}, v{dst}")


def gen_k3(A, name="k3_wo_kernel", opts=None):
    opts = dict(opts or {})
    U = opts.get("U", 4)
    opts["tstride"] = STAGE_BYTES
    opts.setdefault("map", "tokxcd")
    END = f"L_{name}_end"
    if opts.get("emb"):
        A("s_waitcnt lgkmcnt(0)")
        A("s_mov_b64 s[40:41], s[80:81]")
        A("s_mov_b64 s[42:43], s[82:83]")
        A("s_mov_b64 s[48:49], s[84:85]")
        A("s_mov_b64 s[50:51], s[86:87]")
    else:
        kernel_begin(A, name)
        A("s_cmp_ge_u32 s2, 256")
        A(f"s_cbranch_scc1 {END}")
        stamp(A, opts, 0)
        A(f"s_load_dwordx2 s[4:5], s[0:1], {KA_WS}")
        A(f"s_load_dwordx2 s[40:41], s[0:1], {KA_WO}")
        A(f"s_load_dwordx2 s[42:43], s[0:1], {KA_X}")
        A(f"s_load_dwordx4 s[48:51], s[0:1], {KA_WG}")
    ids(A, opts)
    set_rot(A, opts, 16)
    tf_voffsets(A)
    w_setup(A, "B", 2048)
    MACC, WBF, XM, vWB, vX = XTRA, XTRA + 8, XTRA + 24, XTRA + 26, XTRA + 28
    XR = TRING
    WBL = U * 8192
    A("s_waitcnt lgkmcnt(0)")
    xstamp(A, opts, "karg")
    srd(A, SRD_T, 4, WS_O, 4 * MB)
    srd(A, SRD_W, 40, 0, 1024 * 2048)
    srd(A, SRD_X, 42, 0, 2048 * 2048)
    l2_sweep(A, opts, SRD_T, "tf", SRD_W, XTRA + 36)
    srd(A, SRD_O, 4, WS_WB, 4096)
    A(f"v_lshlrev_b32 v{vt}, 4, v0")
    A(f"s_lshl_b32 s33, s{sW}, 10")
    A(f"s_add_u32 m0, s33, {WBL}")
    A("s_nop 0")
    if opts.get("rot") is not None:
        A(f"s_lshl_b32 s34, s{sRot}, 8")
        A(f"v_add_u32 v{vt}, s33, v{vt}")
        A(f"v_add_u32 v{vt}, s34, v{vt}")
        A(f"v_and_b32 v{vt}, 4095, v{vt}")
        A(f"buffer_load_dwordx4 v{vt}, s[{SRD_O}:{SRD_O+3}], 0 offen lds")
    else:
        A(f"buffer_load_dwordx4 v{vt}, s[{SRD_O}:{SRD_O+3}], s33 offen lds")
    A(f"v_and_b32 v{vt}, 1, v0")
    A(f"v_lshlrev_b32 v{vt}, 6, v{vt}")
    A(f"v_lshrrev_b32 v{vt+1}, 4, v0")
    A(f"v_lshl_add_u32 v{vWB}, v{vt+1}, 4, v{vt}")
    A(f"v_add_u32 v{vWB}, {WBL}, v{vWB}")

    XL = WBL + 4096 + 256

    def late_loads():
        rowtile_voffsets(A, vX, 7)
        A(f"s_lshl_b32 s37, s{sW}, 12")
        A(f"s_add_u32 s37, s37, {XL}")
        for m in range(4):
            A(f"s_add_u32 m0, s37, {m * 1024}")
            A("s_nop 0")
            A(f"buffer_load_dwordx4 v{vX + m}, s[{SRD_X}:{SRD_X+3}], 0 offen lds")
        if not opts.get("no_l2w"):
            A(f"s_lshr_b32 s33, s2, 3")
            A(f"s_lshl_b32 s33, s33, 2")
            A(f"s_add_u32 s33, s33, s{sW}")
            if opts.get("m216"):
                A(f"s_and_b32 s35, s33, 1")
                A(f"s_mul_i32 s35, s35, 1792")
                A(f"s_lshr_b32 s33, s33, 1")
                A(f"s_mul_i32 s33, s33, 7168")
                A(f"s_add_u32 s33, s33, s35")
                A(f"s_and_b32 s34, s2, 1")
                A(f"s_mul_i32 s34, s34, 3584")
            else:
                A(f"s_mul_i32 s33, s33, 7168")
                A(f"s_bfe_u32 s34, s2, 0x20001")
                A(f"s_mul_i32 s34, s34, 1792")
            A(f"s_add_u32 s33, s33, s34")
            A(f"v_lshlrev_b32 v{vt}, 7, v0")
            A(f"v_add_u32 v{vt}, s33, v{vt}")
            A("s_mov_b64 exec, 0x3fff")
            A(f"global_load_dword v{XTRA + 40}, v{vt}, s[48:49]")
            A(f"global_load_dword v{XTRA + 40}, v{vt}, s[50:51]")
            A("s_mov_b64 exec, -1")
        srd(A, SRD_X, 4, WS_XM, 16384)
        row_token_addr(A, vt, 3)
        for tl in range(2):
            A(f"buffer_load_dword v{XM + tl}, v{vt}, s[{SRD_X}:{SRD_X+3}], 0 offen offset:{tl * 128}")

    def wb_reads(par, imm):
        return [f"ds_read_b128 {V(WBF + par * 8 + s2 * 4, 4)}, v{vWB} offset:{imm + s2 * 128}" for s2 in range(2)]

    def pre_reads():
        for l in wb_reads(0, 0): A(l)

    def step_extra(par, s2, sl):
        return [mfma16(V(MACC + tl * 4, 4), V(WBF + par * 8 + s2 * 4, 4), tslot(sl, s2, tl)) for tl in range(2)]

    def stage_reads(par, sl):
        return wb_reads(par, (sl + 1) * 256)

    def iter_end():
        return [f"v_add_u32 v{vWB}, {U * 256}, v{vWB}"]

    def after_first():
        late_loads()
        for i in range(8):
            A(f"v_mov_b32 v{MACC + i}, 0")

    gs_main(A, name, opts, 16, U, "B", 2048, tf_tloads, step_extra=step_extra, stage_reads=stage_reads,
            iter_end=iter_end, pre_reads=pre_reads, after_first_loads=after_first,
            extra_after=6 if opts.get("no_l2w") else 8)

    A("s_waitcnt vmcnt(0) lgkmcnt(0)")
    dlayout_lds_addr(A, vX, 37)
    for tl in range(2):
        for F in range(4):
            A(f"ds_read_b64 {V(XR + (tl * 4 + F) * 2, 2)}, v{vX + F} offset:{tl * 2048}")
    srd(A, SRD_O, 4, WS_MH, 8192)
    srd(A, SRD_T, 4, WS_HC, 4 * MB)
    srd(A, SRD_X, 4, WS_VP, 2048 * 64)
    A(f"s_lshl_b32 s34, s{sCB}, 18")
    vVP, vMH = XTRA + 32, XTRA + 33
    row_token_addr(A, vVP, 6)
    A(f"v_lshrrev_b32 v{vMH}, 4, v{vVP}")
    A(f"s_cmp_eq_u32 s{sCB}, 0")
    A(f"s_cselect_b32 s36, 0, 0x7ff00000")
    A(f"s_lshl_b32 s35, s{sCB}, 2")
    T = vt
    A("s_waitcnt lgkmcnt(0)")
    CP = RB[1]
    for tl in range(2):
        m = XM + tl
        A(f"v_add_f32 v{m}, v{m}, v{MACC + tl * 4}")
        A(f"v_add_f32 v{m}, v{m}, v{MACC + tl * 4 + 1}")
        ss = T + 3
        A(f"v_mov_b32 v{ss}, 0")
        for F in range(4):
            a = acc(F, tl).base
            x = XR + (tl * 4 + F) * 2
            dc = CP + tl * 8 + (F // 2) * 4 + (F % 2) * 2
            for q in range(2):
                A(f"v_lshlrev_b32 v{T}, 16, v{x + q}")
                A(f"v_and_b32 v{T+1}, 0xffff0000, v{x + q}")
                A(f"v_add_f32 v{a + 2*q}, v{a + 2*q}, v{T}")
                A(f"v_add_f32 v{a + 2*q + 1}, v{a + 2*q + 1}, v{T+1}")
                A(f"v_sub_f32 v{a + 2*q}, v{a + 2*q}, v{m}")
                A(f"v_sub_f32 v{a + 2*q + 1}, v{a + 2*q + 1}, v{m}")
                A(f"v_fmac_f32 v{ss}, v{a + 2*q}, v{a + 2*q}")
                A(f"v_fmac_f32 v{ss}, v{a + 2*q + 1}, v{a + 2*q + 1}")
                A(f"v_cvt_pk_bf16_f32 v{dc + q}, v{a + 2*q}, v{a + 2*q + 1}")
        for P in range(2):
            A(f"buffer_store_dwordx4 {V(CP + tl * 8 + P * 4, 4)}, v{vT0}, s[{SRD_T}:{SRD_T+3}], s34 offen offset:{tl * 2048 + P * 1024}")
        reduce_over_g(A, ss, T + 4)
        A("s_mov_b64 exec, 0xffff")
        A(f"buffer_store_dword v{ss}, v{vVP}, s[{SRD_X}:{SRD_X+3}], s35 offen offset:{tl * 16 * 64}")
        A(f"buffer_store_dword v{m}, v{vMH}, s[{SRD_O}:{SRD_O+3}], s36 offen offset:{tl * 64}")
        A("s_mov_b64 exec, -1")
        A("s_nop 1")
    return finish(A, name, opts, END, TRING + 16, U * 16)


QSCALE = (32 ** -0.5) * 1.4426950408889634


def gen_k1(A, name="k1_qkv_kernel", opts=None):
    opts = dict(opts or {})
    U = opts.get("U", 4)
    opts["tstride"] = 128
    opts.setdefault("rot", "zero")
    kernel_begin(A, name)
    END = f"L_{name}_end"
    A("s_cmp_ge_u32 s2, 256")
    A(f"s_cbranch_scc1 {END}")
    stamp(A, opts, 0)
    A(f"s_load_dwordx2 s[4:5], s[0:1], {KA_WS}")
    A(f"s_load_dwordx4 s[40:43], s[0:1], {KA_X}")
    A(f"s_load_dwordx4 s[48:51], s[0:1], {KA_WK}")
    A(f"s_load_dwordx2 s[52:53], s[0:1], {KA_WO}")
    ids(A, opts)
    set_rot(A, opts, 16)
    KVL = U * 8192
    QOFF = [61, 62, 63, 39]
    KVACC, CS, ONES, ST, vKV = XTRA, XTRA + 8, XTRA + 28, XTRA + 32, XTRA + 36
    KVF = TRING
    SUMA, SQA = TRING + 16, TRING + 24
    TB = TRING + 32
    WROW = TRING + 64
    vXm, vXr = TRING + 72, TRING + 76
    NV1 = TRING + 80
    XL = KVL + 32768
    A(f"s_lshl_b32 s33, s{sTB}, 2")
    A(f"s_add_u32 s33, s33, s{sW}")
    A(f"s_lshl_b32 s33, s33, 16")
    A(f"v_lshrrev_b32 v{vt}, 3, v0")
    A(f"v_lshlrev_b32 v{vt}, 11, v{vt}")
    A(f"v_add_u32 v{vt}, s33, v{vt}")
    A(f"v_and_b32 v{vt+1}, 7, v0")
    A(f"v_lshrrev_b32 v{vt+2}, 4, v0")
    A(f"v_xor_b32 v{vt+1}, v{vt+1}, v{vt+2}")
    A(f"v_lshl_add_u32 v{vXm}, v{vt+1}, 4, v{vt}")
    A(f"v_xor_b32 v{vt+1}, 4, v{vt+1}")
    A(f"v_lshl_add_u32 v{vXm+1}, v{vt+1}, 4, v{vt}")
    A(f"v_add_u32 v{vXm+2}, {2 * (16384 - 1024)}, v{vXm}")
    A(f"v_add_u32 v{vXm+3}, {3 * (16384 - 1024)}, v{vXm+1}")
    A(f"v_add_u32 v{vXm+1}, {16384 - 1024}, v{vXm+1}")
    A(f"s_lshl_b32 s60, s{sW}, 12")
    A(f"s_add_u32 s60, s60, {XL}")
    A(f"v_and_b32 v{vt}, 15, v0")
    A(f"v_lshrrev_b32 v{vt+1}, 1, v{vt}")
    A(f"v_lshrrev_b32 v{vt+2}, 4, v0")
    A(f"v_xor_b32 v{vt+1}, v{vt+1}, v{vt+2}")
    A(f"v_lshlrev_b32 v{vt+1}, 4, v{vt+1}")
    A(f"v_lshl_add_u32 v{vXr}, v{vt}, 7, v{vt+1}")
    A(f"v_add_u32 v{vXr}, s60, v{vXr}")
    A(f"v_xor_b32 v{vXr+1}, 64, v{vXr}")

    def x_dma(slot):
        out = [[f"s_add_u32 m0, s60, {slot * 16384}", "s_nop 0",
                f"buffer_load_dwordx4 v{vXm}, s[{SRD_T}:{SRD_T+3}], s{sToff} offen lds"]]
        for m in range(1, 4):
            out.append([f"buffer_load_dwordx4 v{vXm+m}, s[{SRD_T}:{SRD_T+3}], s{sToff} offen offset:{m * 1024} lds"])
        return out

    def x_frag(par, s2, tl):
        return V(TB + par * 16 + s2 * 8 + tl * 4, 4)

    def x_reads(par, slot):
        return [f"ds_read_b128 {x_frag(par, s2, tl)}, v{vXr + s2} offset:{slot * 16384 + tl * 2048}" for s2 in range(2) for tl in range(2)]

    tlds = dict(dma=x_dma, reads=x_reads, frag=x_frag)
    w_setup(A, "N", 2048, rotf=True)
    A("s_waitcnt lgkmcnt(0)")
    xstamp(A, opts, "karg")
    srd(A, SRD_T, 40, 0, 2048 * 2048)
    srd(A, SRD_W, 42, 0, 1024 * 2048)
    l2_sweep(A, opts, SRD_T, "rows", SRD_W, XTRA + 38)
    SKIPKV = f"L_{name}_skipkv"
    A(f"s_cmp_ge_u32 s{sCB}, 4")
    A(f"s_cbranch_scc1 {SKIPKV}")
    A(f"s_cmp_lt_u32 s{sCB}, 2")
    A("s_cselect_b32 s46, s48, s50")
    A("s_cselect_b32 s47, s49, s51")
    srd(A, SRD_X, 46, 0, 1024 * 64)
    A(f"v_lshrrev_b32 v{vt}, 1, v0")
    A(f"v_and_b32 v{vt+1}, 0x13, v{vt}")
    A(f"v_bfe_u32 v{vt+2}, v{vt}, 2, 1")
    A(f"v_lshl_or_b32 v{vt+1}, v{vt+2}, 3, v{vt+1}")
    A(f"v_bfe_u32 v{vt+2}, v{vt}, 3, 1")
    A(f"v_lshl_or_b32 v{vt+1}, v{vt+2}, 2, v{vt+1}")
    A(f"v_lshlrev_b32 v{vt+1}, 6, v{vt+1}")
    A(f"v_and_b32 v{vt+2}, 1, v0")
    A(f"v_lshl_add_u32 v{vt+1}, v{vt+2}, 4, v{vt+1}")
    A(f"s_and_b32 s33, s{sCB}, 1")
    A(f"s_lshl_b32 s33, s33, 5")
    A(f"v_add_u32 v{vt+1}, s33, v{vt+1}")
    A(f"s_lshl_b32 s34, s{sW}, 13")
    A(f"s_add_u32 s34, s34, {KVL}")
    A(f"s_lshl_b32 s35, s{sW}, 3")
    A(f"s_lshl_b32 s37, s{sRot}, 1")
    A(f"s_add_u32 s35, s35, s37")
    for m in range(8):
        A(f"s_add_u32 m0, s34, {m * 1024}")
        A(f"s_add_u32 s36, s35, {m}")
        A(f"s_and_b32 s36, s36, 31")
        A(f"s_lshl_b32 s36, s36, 11")
        A(f"buffer_load_dwordx4 v{vt+1}, s[{SRD_X}:{SRD_X+3}], s36 offen lds")
    A.label(SKIPKV)
    A(f"v_lshrrev_b32 v{vt}, 4, v0")
    A(f"v_lshrrev_b32 v{vt+1}, 1, v{vt}")
    A(f"v_lshlrev_b32 v{vt+1}, 4, v{vt+1}")
    A(f"v_and_b32 v{vt}, 1, v{vt}")
    A(f"v_lshl_add_u32 v{vt+1}, v{vt}, 2, v{vt+1}")
    A(f"v_bfe_u32 v{vt}, v0, 2, 2")
    A(f"v_add_u32 v{vt+1}, v{vt+1}, v{vt}")
    A(f"v_lshlrev_b32 v{vt+1}, 5, v{vt+1}")
    A(f"v_and_b32 v{vt}, 3, v0")
    A(f"v_lshl_add_u32 v{vKV}, v{vt}, 3, v{vt+1}")
    A(f"v_add_u32 v{vKV}, {KVL}, v{vKV}")

    def after_first():
        srd(A, SRD_X, 52, 0, 1024 * 2048)
        A(f"s_lshl_b32 s54, s2, 2")
        A(f"s_add_u32 s54, s54, s{sW}")
        A(f"s_lshl_b32 s33, s54, 11")
        A(f"v_lshlrev_b32 v{vt}, 5, v0")
        A(f"buffer_load_dwordx4 {V(WROW, 4)}, v{vt}, s[{SRD_X}:{SRD_X+3}], s33 offen")
        A(f"buffer_load_dwordx4 {V(WROW + 4, 4)}, v{vt}, s[{SRD_X}:{SRD_X+3}], s33 offen offset:16")
        for i in range(8 + 20):
            A(f"v_mov_b32 v{KVACC + i}, 0")
        for i in range(4):
            A(f"v_mov_b32 v{ONES + i}, 0x3f803f80")
        for i in range(16):
            A(f"v_mov_b32 v{SUMA + i}, 0")

    def wbar_job():
        A(f"v_mov_b32 v{vt}, 0")
        for i in range(8):
            A(f"v_dot2c_f32_bf16 v{vt}, v{WROW + i}, v{ONES}")
        A("s_nop 2")
        for sh in (8, 4, 2, 1):
            A(f"v_add_f32_dpp v{vt}, v{vt}, v{vt} row_ror:{sh} row_mask:0xf bank_mask:0xf")
            A("s_nop 1")
        reduce_over_g(A, vt, vt + 1)
        A(f"v_mul_f32 v{vt}, {f32hex(1.0 / 1024)}, v{vt}")
        A(f"v_cvt_pk_bf16_f32 v{vt+1}, v{vt}, v{vt}")
        A(f"v_lshlrev_b32 v{vt+2}, 16, v{vt+1}")
        A(f"v_sub_f32 v{vt+2}, v{vt}, v{vt+2}")
        A(f"v_cvt_pk_bf16_f32 v{vt+2}, v{vt+2}, v{vt+2}")
        A("s_lshr_b32 s33, s54, 5"); A("s_lshl_b32 s33, s33, 7")
        A("s_bfe_u32 s34, s54, 0x10004"); A("s_lshl_b32 s34, s34, 5"); A("s_add_u32 s33, s33, s34")
        A("s_bfe_u32 s34, s54, 0x10002"); A("s_lshl_b32 s34, s34, 4"); A("s_add_u32 s33, s33, s34")
        A("s_bfe_u32 s34, s54, 0x10003"); A("s_lshl_b32 s34, s34, 3"); A("s_add_u32 s33, s33, s34")
        A("s_and_b32 s34, s54, 3"); A("s_lshl_b32 s34, s34, 1"); A("s_add_u32 s33, s33, s34")
        srd(A, SRD_X, 4, WS_WB, 4096)
        A(f"v_mov_b32 v{vt+3}, 0")
        A(f"buffer_store_short v{vt+1}, v{vt+3}, s[{SRD_X}:{SRD_X+3}], s33 offen")
        A(f"buffer_store_short v{vt+2}, v{vt+3}, s[{SRD_X}:{SRD_X+3}], s33 offen offset:64")

    def kv_reads(par, imm):
        return [f"ds_read_b64_tr_b16 {V(KVF + par * 8 + s2 * 4 + 2 * i, 2)}, v{vKV} offset:{imm + s2 * 1024 + i * 256}"
                for s2 in range(2) for i in range(2)]

    def pre_reads():
        for l in kv_reads(0, 0): A(l)

    def stage_reads(par, sl):
        return kv_reads(par, (sl + 1) * 2048)

    def step_extra(par, s2, sl):
        xm = []
        kvf = V(KVF + par * 8 + s2 * 4, 4)
        for tl in range(2):
            xm.append(mfma16(V(KVACC + tl * 4, 4), kvf, x_frag(par, s2, tl)))
        xm.append(mfma16(V(CS, 4), wfrag(par, s2, 0), V(ONES, 4)))
        xm.append(mfma16(V(CS + 16, 4), kvf, V(ONES, 4)))
        for tl in range(2):
            xm.append(mfma16(V(SUMA + tl * 4, 4), V(ONES, 4), x_frag(par, s2, tl)))
            xm.append(mfma16(V(SQA + tl * 4, 4), x_frag(par, s2, tl), x_frag(par, s2, tl)))
        return xm

    def iter_end():
        return [f"v_add_u32 v{vKV}, {U * 2048}, v{vKV}"]

    gs_main(A, name, opts, 16, U, "N", 2048, None, step_extra=step_extra, stage_reads=stage_reads,
            iter_end=iter_end, pre_reads=pre_reads, after_first_loads=after_first, extra_after=2, tlds=tlds)

    A("s_waitcnt vmcnt(0) lgkmcnt(0)")
    T = vt
    CSL = XL + U * 16384
    A(f"v_lshrrev_b32 v{T}, 4, v0")
    A(f"v_lshlrev_b32 v{T}, 4, v{T}")
    A(f"s_lshl_b32 s33, s{sW}, 6")
    A(f"s_add_u32 s33, s33, {CSL}")
    A(f"v_add_u32 v{T+1}, s33, v{T}")
    A(f"ds_write_b128 v{T+1}, {V(CS, 4)}")
    A("s_waitcnt lgkmcnt(0)")
    A("s_barrier")
    for F in range(4):
        A(f"s_add_u32 s33, s{sW}, {F}")
        A(f"s_and_b32 s33, s33, 3")
        A(f"s_lshl_b32 s33, s33, 6")
        A(f"s_add_u32 s33, s33, {CSL}")
        A(f"v_add_u32 v{T+1}, s33, v{T}")
        A(f"ds_read_b128 {V(CS + 4 * F, 4)}, v{T+1}")
    MR = RB[0]
    A(f"v_and_b32 v{T}, 3, v0")
    A(f"v_bfe_u32 v{T+1}, v0, 2, 2")
    A(f"v_lshrrev_b32 v{T+2}, 4, v0")
    A(f"v_cmp_eq_u32 s[34:35], v{T+1}, v{T+2}")
    A(f"v_cmp_eq_u32 s[36:37], 1, v{T}")
    A(f"v_cmp_eq_u32 s[38:39], 2, v{T}")
    A(f"v_cmp_eq_u32 s[46:47], 3, v{T}")
    for tl in range(2):
        q = SQA + tl * 4
        A(f"v_cndmask_b32 v{ST + 2 + tl}, v{q}, v{q+1}, s[36:37]")
        A(f"v_cndmask_b32 v{ST + 2 + tl}, v{ST + 2 + tl}, v{q+2}, s[38:39]")
        A(f"v_cndmask_b32 v{ST + 2 + tl}, v{ST + 2 + tl}, v{q+3}, s[46:47]")
        A(f"v_cndmask_b32 v{ST + 2 + tl}, 0, v{ST + 2 + tl}, s[34:35]")
        A(f"v_mov_b32 v{ST + tl}, v{SUMA + tl * 4}")
    for tl in range(2):
        reduce_over_g(A, ST + 2 + tl, T)
        A(f"v_mul_f32 v{MR + tl}, {f32hex(1.0 / 1024)}, v{ST + tl}")
        A(f"v_mul_f32 v{T}, {f32hex(1.0 / 1024)}, v{ST + 2 + tl}")
        A(f"v_fma_f32 v{T}, -v{MR + tl}, v{MR + tl}, v{T}")
        A(f"v_add_f32 v{T}, {f32hex(EPS)}, v{T}")
        A(f"v_rsq_f32 v{MR + 2 + tl}, v{T}")
    srd(A, SRD_X, 4, WS_XM, 8192)
    row_token_addr(A, T, 2)
    for tl in range(2):
        A(f"buffer_store_dword v{MR + tl}, v{T}, s[{SRD_X}:{SRD_X+3}], 0 offen offset:{tl * 64}")
    srd(A, SRD_O, 4, WS_Q, 4 * MB)
    vQ = MR + 4
    A(f"v_lshrrev_b32 v{T}, 5, v0")
    A(f"v_lshlrev_b32 v{vQ}, 9, v{T}")
    A(f"v_bfe_u32 v{T}, v0, 4, 1")
    A(f"v_lshl_add_u32 v{vQ}, v{T}, 3, v{vQ}")
    A(f"v_and_b32 v{T}, 15, v0")
    A(f"v_lshl_add_u32 v{vQ}, v{T}, 4, v{vQ}")
    A(f"s_lshl_b32 s33, s{sTB}, 2")
    A(f"s_add_u32 s33, s33, s{sW}")
    A(f"s_lshl_b32 s34, s{sCB}, 7")
    A(f"s_add_u32 s34, s34, s33")
    A(f"s_lshl_b32 s34, s34, 11")
    for F in range(4):
        A(f"s_add_u32 s35, s{sW}, {F}")
        A(f"s_and_b32 s35, s35, 3")
        A(f"s_lshr_b32 s36, s35, 1")
        A(f"s_lshl_b32 s36, s36, 17")
        A(f"s_and_b32 s35, s35, 1")
        A(f"s_lshl_b32 s35, s35, 10")
        A(f"s_add_u32 s35, s35, s36")
        A(f"s_add_u32 s{QOFF[F]}, s34, s35")
    SC = MR + 6
    for tl in range(2):
        A(f"v_mul_f32 v{SC + tl}, {f32hex(QSCALE)}, v{MR + 2 + tl}")
    QN = MR + 10
    A("s_waitcnt lgkmcnt(0)")
    for tl in range(2):
        for F in range(4):
            a = acc(F, tl).base
            n = QN + tl * 4 + F
            for r in range(4):
                A(f"v_fma_f32 v{a + r}, -v{MR + tl}, v{CS + F * 4 + r}, v{a + r}")
                A(f"v_mul_f32 v{a + r}, v{SC + tl}, v{a + r}")
            A(f"v_mul_f32 v{n}, v{a}, v{a}")
            for r in range(1, 4):
                A(f"v_fmac_f32 v{n}, v{a + r}, v{a + r}")
            A(f"v_cvt_pk_bf16_f32 v{a}, v{a}, v{a+1}")
            A(f"v_cvt_pk_bf16_f32 v{a+1}, v{a+2}, v{a+3}")
            A(f"buffer_store_dwordx2 {V(a, 2)}, v{vQ}, s[{SRD_O}:{SRD_O+3}], s{QOFF[F]} offen offset:{tl * 256}")
    A(f"s_and_b32 s35, s{sW}, 1")
    A(f"s_cmp_eq_u32 s35, 1")
    A(f"s_cselect_b64 s[36:37], -1, 0")
    for tl in range(2):
        n = QN + tl * 4
        A(f"v_cndmask_b32 v{T}, v{n+1}, v{n+3}, s[36:37]")
        A(f"v_cndmask_b32 v{T+1}, v{n+3}, v{n+1}, s[36:37]")
        A(f"v_add_f32 v{n}, v{n}, v{T}")
        A(f"v_add_f32 v{n+1}, v{n+2}, v{T+1}")
    for tl in range(2):
        for x in range(2):
            reduce_over_g(A, QN + tl * 4 + x, T)
    A(f"v_max_f32 v{QN}, v{QN}, v{QN+1}")
    A(f"v_max3_f32 v{QN}, v{QN}, v{QN+4}, v{QN+5}")
    for sh in (8, 4, 2, 1):
        A("s_nop 1")
        A(f"v_max_f32_dpp v{QN}, v{QN}, v{QN} row_ror:{sh} row_mask:0xf bank_mask:0xf")
    srd(A, SRD_X, 4, WS_QN, 4096)
    A(f"s_lshl_b32 s35, s{sTB}, 4")
    A(f"s_add_u32 s35, s35, s{sCB}")
    A(f"s_lshl_b32 s35, s35, 2")
    A(f"s_add_u32 s35, s35, s{sW}")
    A(f"s_lshl_b32 s35, s35, 2")
    A(f"v_mov_b32 v{T}, 0")
    A(f"buffer_store_dword v{QN}, v{T}, s[{SRD_X}:{SRD_X+3}], s35 offen")
    DONE = f"L_{name}_done"
    ISV = f"L_{name}_isv"
    NRM = f"L_{name}_nrm"
    A(f"s_cmp_ge_u32 s{sCB}, 4")
    A(f"s_cbranch_scc1 {DONE}")
    srd(A, SRD_O, 4, WS_KV, 256 * 1024)
    NS = MR + 8
    for tl in range(2):
        a = KVACC + tl * 4
        A(f"v_mov_b32 v{NS + tl}, 0")
        for r in range(4):
            A(f"v_fma_f32 v{a + r}, -v{MR + tl}, v{CS + 16 + r}, v{a + r}")
            A(f"v_mul_f32 v{a + r}, v{MR + 2 + tl}, v{a + r}")
            A(f"v_fmac_f32 v{NS + tl}, v{a + r}, v{a + r}")
        A(f"v_cvt_pk_bf16_f32 v{a}, v{a}, v{a+1}")
        A(f"v_cvt_pk_bf16_f32 v{a+1}, v{a+2}, v{a+3}")
    A(f"s_lshl_b32 s33, s33, 12")
    A(f"s_cmp_ge_u32 s{sCB}, 2")
    A(f"s_cbranch_scc1 {ISV}")
    A(f"s_lshl_b32 s34, s{sCB}, 10")
    A(f"s_add_u32 s33, s33, s34")
    for tl in range(2):
        A(f"buffer_store_dwordx2 {V(KVACC + tl * 4, 2)}, v{vQ}, s[{SRD_O}:{SRD_O+3}], s33 offen offset:{tl * 256}")
    A(f"s_branch {NRM}")
    A.label(ISV)
    A(f"s_and_b32 s34, s{sCB}, 1")
    A(f"s_lshl_b32 s34, s34, 8")
    A(f"s_add_u32 s33, s33, s34")
    A(f"s_add_u32 s33, s33, 2048")
    A(f"v_bfe_u32 v{T}, v0, 2, 1")
    A(f"v_lshlrev_b32 v{T+1}, 9, v{T}")
    A(f"v_lshrrev_b32 v{T}, 4, v0")
    A(f"v_lshl_add_u32 v{T+1}, v{T}, 6, v{T+1}")
    A(f"v_bfe_u32 v{T}, v0, 3, 1")
    A(f"v_lshl_add_u32 v{T+1}, v{T}, 3, v{T+1}")
    A(f"v_and_b32 v{T}, 3, v0")
    A(f"v_lshl_add_u32 v{T+1}, v{T}, 1, v{T+1}")
    for tl in range(2):
        a = KVACC + tl * 4
        for r in range(4):
            op = "buffer_store_short" if r % 2 == 0 else "buffer_store_short_d16_hi"
            A(f"{op} v{a + r // 2}, v{T+1}, s[{SRD_O}:{SRD_O+3}], s33 offen offset:{tl * 1024 + r * 16}")
    A.label(NRM)
    for tl in range(2):
        reduce_over_g(A, NS + tl, T + 2)
    A(f"v_max_f32 v{NS}, v{NS}, v{NS+1}")
    A("s_nop 1")
    for sh in (8, 4, 2, 1):
        A(f"v_max_f32_dpp v{NS}, v{NS}, v{NS} row_ror:{sh} row_mask:0xf bank_mask:0xf")
        A("s_nop 1")
    srd(A, SRD_X, 4, WS_NRM, 1024)
    A(f"s_lshl_b32 s33, s{sCB}, 6")
    A(f"s_lshl_b32 s34, s{sTB}, 2")
    A(f"s_add_u32 s33, s33, s34")
    A(f"s_add_u32 s33, s33, s{sW}")
    A(f"s_lshl_b32 s33, s33, 2")
    A(f"v_mov_b32 v{T}, 0")
    A(f"buffer_store_dword v{NS}, v{T}, s[{SRD_X}:{SRD_X+3}], s33 offen")
    A.label(DONE)
    wbar_job()
    return finish(A, name, opts, END, NV1)
```

```python
from gen_common import *

XL, WL, RL = 0, 32768, 98304
K1_LDS = RL + 8192


def reduce_over_g(A, reg, tmp, op="v_add_f32"):
    for sw in ("16", "32"):
        A(f"v_mov_b32 v{tmp}, v{reg}")
        A("s_nop 1")
        A(f"v_permlane{sw}_swap_b32 v{reg}, v{tmp}")
        A(f"{op} v{reg}, v{reg}, v{tmp}")


def gen_k1n(A, name="k1_lnkv_kernel", opts=None):
    opts = opts or {}
    kernel_begin(A, name)
    END = f"L_{name}_end"
    sW, sTF, sKV = 24, 25, 26
    SRD_X, SRD_W, SRD_O, SRD_N = 8, 12, 16, 20
    vt = 2
    T = 16
    WF = 48
    SUM, GR = 112, 116
    ONES = 120
    D = 124
    WROW = 132
    NV = 140

    A("s_cmp_ge_u32 s2, 256")
    A(f"s_cbranch_scc1 {END}")
    stamp(A, opts, 0)
    A(f"s_load_dwordx2 s[4:5], s[0:1], {KA_WS}")
    A(f"s_load_dwordx4 s[40:43], s[0:1], {KA_X}")
    A(f"s_load_dwordx4 s[48:51], s[0:1], {KA_WK}")
    A(f"s_load_dwordx2 s[52:53], s[0:1], {KA_WO}")
    A(f"v_lshrrev_b32 v{vt}, 6, v0")
    A("v_and_b32 v0, 63, v0")
    A(f"s_lshr_b32 s{sTF}, s2, 1")
    A(f"v_readfirstlane_b32 s{sW}, v{vt}")
    A(f"s_and_b32 s{sKV}, s2, 1")
    A(f"v_lshrrev_b32 v{vt}, 5, v0")
    A(f"v_and_b32 v{vt+1}, 31, v0")
    A("s_waitcnt lgkmcnt(0)")
    xstamp(A, opts, "karg")
    srd(A, SRD_X, 40, 0, 2048 * 2048)
    A(f"s_lshl_b32 s33, s{sTF}, 15")
    A(f"s_lshl_b32 s34, s{sW}, 9")
    A(f"s_add_u32 s33, s33, s34")
    A(f"s_lshl_b32 s35, s{sW}, 13")
    for m in range(8):
        A(f"v_add_u32 v{vt+2}, {2 * m}, v{vt}")
        A(f"v_xor_b32 v{vt+3}, v{vt+2}, v{vt+1}")
        A(f"v_lshlrev_b32 v{vt+3}, 4, v{vt+3}")
        A(f"v_lshl_add_u32 v{vt+3}, v{vt+2}, 11, v{vt+3}")
        A(f"s_add_u32 m0, s35, {XL + m * 1024}")
        A("s_nop 0")
        A(f"buffer_load_dwordx4 v{vt+3}, s[{SRD_X}:{SRD_X+3}], s33 offen lds")
    A(f"s_cmp_eq_u32 s{sKV}, 0")
    A("s_cselect_b32 s46, s48, s50")
    A("s_cselect_b32 s47, s49, s51")
    srd(A, SRD_W, 46, 0, 1024 * 64)
    A(f"v_bfe_u32 v{vt+2}, v0, 1, 1")
    A(f"v_lshrrev_b32 v{vt+3}, 5, v0")
    A(f"v_xor_b32 v{vt+2}, v{vt+2}, v{vt+3}")
    A(f"v_and_b32 v{vt+3}, 1, v0")
    A(f"v_lshl_or_b32 v{vt+2}, v{vt+2}, 1, v{vt+3}")
    A(f"v_lshrrev_b32 v{vt+3}, 2, v0")
    A(f"v_lshlrev_b32 v{vt+3}, 6, v{vt+3}")
    A(f"v_lshl_add_u32 v{vt+4}, v{vt+2}, 4, v{vt+3}")
    A(f"s_lshl_b32 s34, s{sW}, 14")
    for m in range(16):
        if m % 4 == 0:
            A(f"s_add_u32 m0, s34, {WL + m * 1024}")
            A(f"s_add_u32 s36, s34, {m * 1024}")
        A(f"buffer_load_dwordx4 v{vt+4}, s[{SRD_W}:{SRD_W+3}], s36 offen offset:{(m % 4) * 1024} lds")
    srd(A, SRD_N, 52, 0, 1024 * 2048)
    A(f"s_lshl_b32 s54, s2, 2")
    A(f"s_add_u32 s54, s54, s{sW}")
    A(f"s_lshl_b32 s33, s54, 11")
    A(f"v_lshlrev_b32 v{vt+2}, 5, v0")
    A(f"buffer_load_dwordx4 {V(WROW, 4)}, v{vt+2}, s[{SRD_N}:{SRD_N+3}], s33 offen")
    A(f"buffer_load_dwordx4 {V(WROW + 4, 4)}, v{vt+2}, s[{SRD_N}:{SRD_N+3}], s33 offen offset:16")
    A(f"v_lshlrev_b32 v{vt+2}, 7, v0")
    A(f"v_add_u32 v{vt+2}, s33, v{vt+2}")
    A("s_mov_b64 exec, 0xffff")
    A(f"global_load_dword v{vt+10}, v{vt+2}, s[42:43]")
    A("s_mov_b64 exec, -1")
    xstamp(A, opts, "issued")
    for i in range(4):
        A(f"v_mov_b32 v{ONES + i}, 0x3f803f80")
    for i in range(0, 8, 2):
        A(f"v_mov_b64 v[{SUM + i}:{SUM + i + 1}], 0")
        A(f"v_mov_b64 v[{D + i}:{D + i + 1}], 0")
    A(f"v_and_b32 v{vt}, 15, v0")
    A(f"v_lshrrev_b32 v{vt+1}, 4, v0")
    A(f"v_xor_b32 v{vt+2}, v{vt}, v{vt+1}")
    A(f"v_lshlrev_b32 v{vt+2}, 4, v{vt+2}")
    A(f"v_lshl_add_u32 v{vt+2}, v{vt}, 9, v{vt+2}")
    A(f"v_add_u32 v{vt+2}, s35, v{vt+2}")
    A("s_waitcnt vmcnt(19)")
    xstamp(A, opts, "xin")
    for s in range(8):
        A(f"v_xor_b32 v{vt+3}, {s << 6}, v{vt+2}")
        A(f"ds_read_b128 {V(T + 4 * s, 4)}, v{vt+3}")
    for s in range(8):
        A(f"s_waitcnt lgkmcnt({7 - s})")
        A(mfma16(V(SUM, 4), V(ONES, 4), V(T + 4 * s, 4)))
        A(mfma16(V(GR, 4), V(T + 4 * s, 4), V(T + 4 * s, 4)))
    A(f"v_and_b32 v{vt+3}, 3, v0")
    A(f"v_bfe_u32 v{vt+4}, v0, 2, 2")
    A(f"v_cmp_eq_u32 s[34:35], v{vt+4}, v{vt+1}")
    A(f"v_cmp_eq_u32 s[36:37], 1, v{vt+3}")
    A(f"v_cmp_eq_u32 s[38:39], 2, v{vt+3}")
    A(f"v_cmp_eq_u32 s[56:57], 3, v{vt+3}")
    A("s_nop 3")
    A(f"v_cndmask_b32 v{vt+5}, v{GR}, v{GR+1}, s[36:37]")
    A(f"v_cndmask_b32 v{vt+5}, v{vt+5}, v{GR+2}, s[38:39]")
    A(f"v_cndmask_b32 v{vt+5}, v{vt+5}, v{GR+3}, s[56:57]")
    A(f"v_cndmask_b32 v{vt+5}, 0, v{vt+5}, s[34:35]")
    reduce_over_g(A, vt + 5, vt + 6)
    A(f"v_mov_b32 v{vt+4}, v{SUM}")
    A(f"s_lshl_b32 s33, s{sW}, 7")
    A(f"s_add_u32 s33, s33, {RL}")
    A(f"v_lshlrev_b32 v{vt+6}, 3, v{vt}")
    A(f"v_add_u32 v{vt+7}, s33, v{vt+6}")
    A(f"ds_write_b64 v{vt+7}, {V(vt + 4, 2)}")
    A("s_waitcnt lgkmcnt(0)")
    A("s_barrier")
    A(f"v_add_u32 v{vt+7}, {RL}, v{vt+6}")
    for w in range(4):
        A(f"ds_read_b64 {V(SUM + 2 * w, 2)}, v{vt+7} offset:{w * 128}")
    A("s_waitcnt lgkmcnt(0)")
    for x in range(2):
        A(f"v_add_f32 v{SUM + x}, v{SUM + x}, v{SUM + 2 + x}")
        A(f"v_add_f32 v{SUM + 4 + x}, v{SUM + 4 + x}, v{SUM + 6 + x}")
        A(f"v_add_f32 v{SUM + x}, v{SUM + x}, v{SUM + 4 + x}")
    MEAN, RS, NMR = SUM + 2, SUM + 3, SUM + 4
    A(f"v_mul_f32 v{MEAN}, {f32hex(1.0 / 1024)}, v{SUM}")
    A(f"v_mul_f32 v{vt+4}, {f32hex(1.0 / 1024)}, v{SUM+1}")
    A(f"v_fma_f32 v{vt+4}, -v{MEAN}, v{MEAN}, v{vt+4}")
    A(f"v_max_f32 v{vt+4}, 0, v{vt+4}")
    A(f"v_add_f32 v{vt+4}, {f32hex(EPS)}, v{vt+4}")
    A(f"v_rsq_f32 v{RS}, v{vt+4}")
    A("s_nop 0")
    A(f"v_mul_f32 v{NMR}, v{MEAN}, v{RS}")
    A("s_waitcnt vmcnt(3)")
    A(f"v_lshrrev_b32 v{vt+4}, 4, v0")
    A(f"v_bfe_u32 v{vt+5}, v0, 2, 2")
    A(f"v_lshl_add_u32 v{vt+5}, v{vt+4}, 3, v{vt+5}")
    A(f"v_lshlrev_b32 v{vt+5}, 6, v{vt+5}")
    A(f"v_and_b32 v{vt+6}, 3, v0")
    A(f"v_lshl_add_u32 v{vt+5}, v{vt+6}, 3, v{vt+5}")
    A(f"v_and_b32 v{vt+4}, 1, v{vt+4}")
    A(f"v_lshl_add_u32 v{vt+5}, v{vt+4}, 5, v{vt+5}")
    A(f"s_lshl_b32 s33, s{sW}, 14")
    A(f"s_add_u32 s33, s33, {WL}")
    A(f"v_add_u32 v{vt+5}, s33, v{vt+5}")
    A(f"v_xor_b32 v{vt+6}, 32, v{vt+5}")
    for s in range(8):
        for F in range(2):
            for i in range(2):
                A(f"ds_read_b64_tr_b16 {V(WF + (F * 8 + s) * 4 + 2 * i, 2)}, v{vt + 5 + F} offset:{(32 * s + 4 * i) * 64}")
    for q in range(32):
        r = T + q
        A(f"v_lshlrev_b32 v{vt+8}, 16, v{r}")
        A(f"v_and_b32 v{vt+9}, 0xffff0000, v{r}")
        A(f"v_fma_f32 v{vt+8}, v{vt+8}, v{RS}, -v{NMR}")
        A(f"v_fma_f32 v{vt+9}, v{vt+9}, v{RS}, -v{NMR}")
        A(f"v_cvt_pk_bf16_f32 v{r}, v{vt+8}, v{vt+9}")
    A("s_waitcnt lgkmcnt(0)")
    for s in range(8):
        for F in range(2):
            A(mfma16(V(D + 4 * F, 4), V(WF + (F * 8 + s) * 4, 4), V(T + 4 * s, 4)))
    xstamp(A, opts, "mm")
    NOX = f"L_{name}_nox"
    A(f"s_cmp_lg_u32 s{sKV}, 0")
    A(f"s_cbranch_scc1 {NOX}")
    srd(A, SRD_O, 4, WS_XN, 4 * MB)
    A(f"s_lshr_b32 s33, s{sTF}, 1")
    A(f"s_lshl_b32 s33, s33, 16")
    A(f"s_lshl_b32 s34, s{sW}, 14")
    A(f"s_add_u32 s33, s33, s34")
    A(f"s_and_b32 s34, s{sTF}, 1")
    A(f"s_lshl_b32 s34, s34, 8")
    A(f"s_add_u32 s33, s33, s34")
    A(f"v_lshrrev_b32 v{vt+4}, 5, v0")
    A(f"v_lshlrev_b32 v{vt+4}, 10, v{vt+4}")
    A(f"v_bfe_u32 v{vt+5}, v0, 4, 1")
    A(f"v_lshl_add_u32 v{vt+4}, v{vt+5}, 9, v{vt+4}")
    A(f"v_lshl_add_u32 v{vt+4}, v{vt}, 4, v{vt+4}")
    for s in range(8):
        if s % 2 == 0:
            A(f"s_add_u32 s35, s33, {s * 2048}")
        A(f"buffer_store_dwordx4 {V(T + 4 * s, 4)}, v{vt+4}, s[{SRD_O}:{SRD_O+3}], s35 offen offset:{(s % 2) * 2048}")
    srd(A, SRD_O, 4, WS_XM, 8192)
    A(f"s_lshl_b32 s33, s{sTF}, 6")
    A(f"v_lshlrev_b32 v{vt+4}, 2, v{vt}")
    A(f"buffer_store_dword v{MEAN}, v{vt+4}, s[{SRD_O}:{SRD_O+3}], s33 offen")
    A.label(NOX)
    A(f"s_lshl_b32 s33, s{sW}, 11")
    A(f"s_add_u32 s33, s33, {XL}")
    A(f"v_lshlrev_b32 v{vt+4}, 4, v0")
    A(f"v_add_u32 v{vt+5}, s33, v{vt+4}")
    A("s_nop 4")
    for F in range(2):
        A(f"ds_write_b128 v{vt+5}, {V(D + 4 * F, 4)} offset:{F * 1024}")
    A("s_waitcnt lgkmcnt(0)")
    A("s_barrier")
    WB = f"L_{name}_wbar"
    A(f"s_cmp_lg_u32 s{sW}, 0")
    A(f"s_cbranch_scc1 {WB}")
    for w in range(1, 4):
        for F in range(2):
            A(f"ds_read_b128 {V(WF + (w - 1) * 8 + 4 * F, 4)}, v{vt+4} offset:{XL + w * 2048 + F * 1024}")
    A("s_waitcnt lgkmcnt(0)")
    for i in range(8):
        A(f"v_add_f32 v{D + i}, v{D + i}, v{WF + i}")
        A(f"v_add_f32 v{WF + 8 + i}, v{WF + 8 + i}, v{WF + 16 + i}")
        A(f"v_add_f32 v{D + i}, v{D + i}, v{WF + 8 + i}")
    NS = WF
    A(f"v_mul_f32 v{NS}, v{D}, v{D}")
    for i in range(1, 8):
        A(f"v_fmac_f32 v{NS}, v{D + i}, v{D + i}")
    for F in range(2):
        a = D + 4 * F
        A(f"v_cvt_pk_bf16_f32 v{a}, v{a}, v{a+1}")
        A(f"v_cvt_pk_bf16_f32 v{a+1}, v{a+2}, v{a+3}")
    srd(A, SRD_O, 4, WS_KV, 256 * 1024)
    A(f"s_lshr_b32 s33, s{sTF}, 1")
    A(f"s_lshl_b32 s33, s33, 12")
    A(f"s_and_b32 s34, s{sTF}, 1")
    ISV, NRM = f"L_{name}_isv", f"L_{name}_nrm"
    A(f"s_cmp_lg_u32 s{sKV}, 0")
    A(f"s_cbranch_scc1 {ISV}")
    A(f"s_lshl_b32 s34, s34, 8")
    A(f"s_add_u32 s33, s33, s34")
    A(f"v_bfe_u32 v{vt+4}, v0, 4, 1")
    A(f"v_lshlrev_b32 v{vt+4}, 9, v{vt+4}")
    A(f"v_lshrrev_b32 v{vt+5}, 5, v0")
    A(f"v_lshl_add_u32 v{vt+4}, v{vt+5}, 3, v{vt+4}")
    A(f"v_lshl_add_u32 v{vt+4}, v{vt}, 4, v{vt+4}")
    for F in range(2):
        A(f"buffer_store_dwordx2 {V(D + 4 * F, 2)}, v{vt+4}, s[{SRD_O}:{SRD_O+3}], s33 offen offset:{F * 1024}")
    A(f"s_branch {NRM}")
    A.label(ISV)
    A(f"s_lshl_b32 s34, s34, 10")
    A(f"s_add_u32 s33, s33, s34")
    A(f"s_add_u32 s33, s33, 2048")
    A(f"v_bfe_u32 v{vt+4}, v0, 2, 1")
    A(f"v_lshlrev_b32 v{vt+5}, 9, v{vt+4}")
    A(f"v_lshrrev_b32 v{vt+4}, 4, v0")
    A(f"v_lshl_add_u32 v{vt+5}, v{vt+4}, 6, v{vt+5}")
    A(f"v_bfe_u32 v{vt+4}, v0, 3, 1")
    A(f"v_lshl_add_u32 v{vt+5}, v{vt+4}, 3, v{vt+5}")
    A(f"v_and_b32 v{vt+4}, 3, v0")
    A(f"v_lshl_add_u32 v{vt+5}, v{vt+4}, 1, v{vt+5}")
    for F in range(2):
        for r in range(4):
            op = "buffer_store_short" if r % 2 == 0 else "buffer_store_short_d16_hi"
            A(f"{op} v{D + 4 * F + r // 2}, v{vt+5}, s[{SRD_O}:{SRD_O+3}], s33 offen offset:{F * 256 + r * 16}")
    A.label(NRM)
    reduce_over_g(A, NS, vt + 6)
    for sh in (8, 4, 2, 1):
        A("s_nop 1")
        A(f"v_max_f32_dpp v{NS}, v{NS}, v{NS} row_ror:{sh} row_mask:0xf bank_mask:0xf")
    srd(A, SRD_N, 4, WS_NRM, 1024)
    A(f"s_lshl_b32 s33, s{sKV}, 7")
    A(f"s_add_u32 s33, s33, s{sTF}")
    A(f"s_lshl_b32 s33, s33, 2")
    A(f"v_mov_b32 v{vt+4}, 0")
    A(f"buffer_store_dword v{NS}, v{vt+4}, s[{SRD_N}:{SRD_N+3}], s33 offen")
    A.label(WB)
    A("s_waitcnt vmcnt(0)")
    A(f"v_mov_b32 v{vt}, 0")
    for i in range(8):
        A(f"v_dot2c_f32_bf16 v{vt}, v{WROW + i}, v{ONES}")
    A("s_nop 2")
    for sh in (8, 4, 2, 1):
        A(f"v_add_f32_dpp v{vt}, v{vt}, v{vt} row_ror:{sh} row_mask:0xf bank_mask:0xf")
        A("s_nop 1")
    reduce_over_g(A, vt, vt + 1)
    A(f"v_mul_f32 v{vt}, {f32hex(1.0 / 1024)}, v{vt}")
    A(f"v_cvt_pk_bf16_f32 v{vt+1}, v{vt}, v{vt}")
    A(f"v_lshlrev_b32 v{vt+2}, 16, v{vt+1}")
    A(f"v_sub_f32 v{vt+2}, v{vt}, v{vt+2}")
    A(f"v_cvt_pk_bf16_f32 v{vt+2}, v{vt+2}, v{vt+2}")
    A("s_lshr_b32 s33, s54, 5"); A("s_lshl_b32 s33, s33, 7")
    A("s_bfe_u32 s34, s54, 0x10004"); A("s_lshl_b32 s34, s34, 5"); A("s_add_u32 s33, s33, s34")
    A("s_bfe_u32 s34, s54, 0x10002"); A("s_lshl_b32 s34, s34, 4"); A("s_add_u32 s33, s33, s34")
    A("s_bfe_u32 s34, s54, 0x10003"); A("s_lshl_b32 s34, s34, 3"); A("s_add_u32 s33, s33, s34")
    A("s_and_b32 s34, s54, 3"); A("s_lshl_b32 s34, s34, 1"); A("s_add_u32 s33, s33, s34")
    srd(A, SRD_N, 4, WS_WB, 4096)
    A(f"v_mov_b32 v{vt+3}, 0")
    A(f"buffer_store_short v{vt+1}, v{vt+3}, s[{SRD_N}:{SRD_N+3}], s33 offen")
    A(f"buffer_store_short v{vt+2}, v{vt+3}, s[{SRD_N}:{SRD_N+3}], s33 offen offset:64")
    code_prefetch(A, opts, name, opts.get("next"), opts.get("next_bytes", 8192), sW, vt + 4, 46)
    xstamp(A, opts, "stored")
    if opts.get("prof"):
        A("s_waitcnt vmcnt(0)")
        stamp(A, opts, 3)
        prof_store(A, opts, 4, opts.get("kidx", 0))
    A.label(END)
    A("s_endpgm")
    return kernel_desc(name, NV, 0, 80)
```

```python
from gen_common import *

QSCALE = (32 ** -0.5) * 1.4426950408889634
T_BOUND = 80.0
V_BOUND2 = 2.0 ** 60


def wave_max(A, reg, tmp):
    for sh in (8, 4, 2, 1):
        A("s_nop 1")
        A(f"v_max_f32_dpp v{reg}, v{reg}, v{reg} row_ror:{sh} row_mask:0xf bank_mask:0xf")
    for sw in ("16", "32"):
        A(f"v_mov_b32 v{tmp}, v{reg}")
        A("s_nop 1")
        A(f"v_permlane{sw}_swap_b32 v{reg}, v{tmp}")
        A(f"v_max_f32 v{reg}, v{reg}, v{tmp}")


def n_prefetch(opts):
    return 0 if opts.get("no_pf") else 4


PK = 156
vPS, vPD = 184, 185


def side_setup(A, opts, sW, vt):
    A(f"s_lshl_b32 s33, s2, 2")
    A(f"s_and_b32 s34, s{sW}, 3")
    A(f"s_add_u32 s33, s33, s34")
    A(f"s_mul_i32 s34, s33, {56 * 128}")
    A(f"v_lshlrev_b32 v{vt}, 7, v0")
    A(f"v_add_u32 v155, s34, v{vt}")
    A("s_mov_b32 s92, 3584")
    srd(A, 48, 88, 0, 3584 * 2048)
    srd(A, 52, 4, WS_WD, 3584 * 2048)
    A("s_mov_b32 s93, s33")
    A(f"v_lshrrev_b32 v{vt}, 3, v0")
    A(f"v_lshlrev_b32 v{vt}, 11, v{vt}")
    A(f"v_and_b32 v{vt+1}, 7, v0")
    A(f"v_bfe_u32 v{vt+2}, v0, 4, 2")
    A(f"v_lshlrev_b32 v{vt+2}, 1, v{vt+2}")
    A(f"v_xor_b32 v{vt+1}, v{vt+1}, v{vt+2}")
    A(f"v_lshl_add_u32 v{vPS}, v{vt+1}, 4, v{vt}")
    A(f"v_lshlrev_b32 v{vPD}, 4, v0")


def pack_loads(A, opts, lo, hi):
    for i in range(lo, hi):
        if opts.get("x_nopackld"): continue
        A(f"s_add_u32 s34, s93, {1024 * i}")
        A("s_mul_i32 s35, s34, 9363")
        A("s_lshr_b32 s35, s35, 22")
        A("s_mul_i32 s36, s35, 448")
        A("s_sub_u32 s34, s34, s36")
        A("s_lshl_b32 s34, s34, 14")
        A("s_lshl_b32 s35, s35, 7")
        A("s_add_u32 s35, s35, s34")
        A(f"buffer_load_dwordx4 v[{PK + 4*i}:{PK + 4*i + 3}], v{vPS}, s[48:51], s35 offen")


def prefetch_step(opts, name):
    if opts.get("x_nogather"): return []
    return [["s_mov_b64 exec, 0xfffffff", "global_load_dword v154, v155, s[84:85]", "s_mov_b64 exec, -1"],
            ["v_add_u32 v155, s92, v155", "s_sub_u32 s92, 0, s92",
             "s_cmp_gt_i32 s92, 0",
             "s_cselect_b32 s84, s86, s84", "s_cselect_b32 s85, s87, s85"]]


def l2_prefetch(A, opts, sW, vt, part):
    if opts.get("no_pf"):
        A("s_nop 0")
        return
    A("s_lshr_b32 s33, s2, 3")
    A("s_lshl_b32 s33, s33, 2")
    A(f"s_and_b32 s34, s{sW}, 3")
    A(f"s_add_u32 s33, s33, s34")
    A("s_lshl_b32 s34, s33, 13")
    if part:
        A("s_add_u32 s34, s34, 0x100000")
    A(f"v_lshlrev_b32 v{vt}, 7, v0")
    A(f"v_add_u32 v{vt+1}, s34, v{vt}")
    A(f"global_load_dword v154, v{vt+1}, s[80:81]")
    if part:
        A("s_lshl_b32 s34, s33, 12")
        A("s_and_b32 s35, s2, 7")
        A("s_lshl_b32 s35, s35, 19")
        A("s_add_u32 s34, s34, s35")
        A(f"v_add_u32 v{vt+1}, s34, v{vt}")
        A("s_mov_b32 exec_lo, -1"); A("s_mov_b32 exec_hi, 0")
        A(f"global_load_dword v154, v{vt+1}, s[98:99]")
        A("s_mov_b64 exec, -1")


def once_jobs(A, opts, name, tag, sW, vt):
    L = lambda x: f"L_{name}_{x}{tag}"
    A("s_cmp_ge_u32 s44, 2")
    A(f"s_cbranch_scc1 {L('j')}")
    A.label(L('go'))
    ng = opts.get("x_nogather")

    def stores(lo, hi):
        for i in range(lo, hi):
            if opts.get("x_nopackst"): continue
            A(f"s_add_u32 s35, s93, {1024 * i}")
            A("s_lshl_b32 s35, s35, 10")
            A(f"buffer_store_dwordx4 v[{PK + 4*i}:{PK + 4*i + 3}], v{vPD}, s[52:55], s35 offen {opts.get('packflag', 'sc1')}")

    def outline():
        A.label(L('j'))
        plan = {8: (None, None, (0, 2), None), 7: (None, None, (2, 4), None), 6: (None, None, (4, 5), None),
                5: (6, (0, 2), (5, 6), None), 4: (7, (2, 4), (6, 7), None), 3: (5, (4, 6), None, 0), 2: (4 if opts.get('no_pf') else 5, (6, 7), None, 1)}
        for k in (8, 7, 6, 5, 4, 3, 2):
            wait, st, ld, pf = plan[k]
            if k > 2:
                A(f"s_cmp_lg_u32 s44, {k}")
                A(f"s_cbranch_scc1 {L('n' + str(k))}")
            if wait is not None:
                A(f"s_waitcnt vmcnt({0 if ng else wait})")
            if st: stores(*st)
            if ld: pack_loads(A, opts, *ld)
            if pf is not None: l2_prefetch(A, opts, sW, vt, pf)
            A(f"s_branch {L('go')}")
            if k > 2:
                A.label(L('n' + str(k)))
    return outline


def reduce_over_g(A, reg, tmp, op="v_add_f32"):
    for sw in ("16", "32"):
        A(f"v_mov_b32 v{tmp}, v{reg}")
        A("s_nop 1")
        A(f"v_permlane{sw}_swap_b32 v{reg}, v{tmp}")
        A(f"{op} v{reg}, v{reg}, v{tmp}")


def phase_a(A, opts, name, sW, SCR, hook, hook2, hook0):
    sTF, sKV, sROW = 31, 32, 38
    SRD_X, SRD_W, SRD_O, SRD_N = 8, 12, 16, 20
    XL, WL = 0, 32768
    vt = 2
    T = 16
    WF = 32
    SUM, GR = 96, 100
    ONES = 112
    D = 116
    WROW = 124
    A(f"s_lshr_b32 s{sTF}, s2, 1")
    A(f"s_and_b32 s{sKV}, s2, 1")
    srd(A, SRD_X, 98, 0, 2048 * 2048)
    A(f"v_lshrrev_b32 v{vt}, 4, v0")
    A(f"v_and_b32 v{vt+1}, 15, v0")
    A(f"s_lshl_b32 s33, s{sTF}, 15")
    A(f"s_lshl_b32 s34, s{sW}, 8")
    A(f"s_add_u32 s33, s33, s34")
    A(f"s_lshl_b32 s35, s{sW}, 12")
    for m in range(4):
        A(f"v_add_u32 v{vt+2}, {4 * m}, v{vt}")
        A(f"v_xor_b32 v{vt+3}, v{vt+2}, v{vt+1}")
        A(f"v_lshlrev_b32 v{vt+3}, 4, v{vt+3}")
        A(f"v_lshl_add_u32 v{vt+3}, v{vt+2}, 11, v{vt+3}")
        A(f"s_add_u32 m0, s35, {XL + m * 1024}")
        A("s_nop 0")
        A(f"buffer_load_dwordx4 v{vt+3}, s[{SRD_X}:{SRD_X+3}], s33 offen lds")
    A(f"s_cmp_eq_u32 s{sKV}, 0")
    A("s_cselect_b32 s6, s40, s42")
    A("s_cselect_b32 s7, s41, s43")
    srd(A, SRD_W, 6, 0, 1024 * 64)
    A(f"v_bfe_u32 v{vt+2}, v0, 1, 1")
    A(f"v_lshrrev_b32 v{vt+3}, 5, v0")
    A(f"v_xor_b32 v{vt+2}, v{vt+2}, v{vt+3}")
    A(f"v_and_b32 v{vt+3}, 1, v0")
    A(f"v_lshl_or_b32 v{vt+2}, v{vt+2}, 1, v{vt+3}")
    A(f"v_lshrrev_b32 v{vt+3}, 2, v0")
    A(f"v_lshlrev_b32 v{vt+3}, 6, v{vt+3}")
    A(f"v_lshl_add_u32 v{vt+4}, v{vt+2}, 4, v{vt+3}")
    A(f"s_lshl_b32 s34, s{sW}, 13")
    A(f"s_mov_b32 s39, s34")

    def w_fill(lo, hi):
        for m in range(lo, hi):
            if m % 4 == 0:
                A(f"s_add_u32 m0, s39, {WL + m * 1024}")
                A(f"s_add_u32 s36, s39, {m * 1024}")
            A(f"buffer_load_dwordx4 v15, s[{SRD_W}:{SRD_W+3}], s36 offen offset:{(m % 4) * 1024} lds")
    A(f"v_mov_b32 v15, v{vt+4}")
    w_fill(0, 4)

    def late_fills():
        w_fill(4, 8)
        srd(A, SRD_N, 80, 0, 1024 * 2048)
        A(f"s_lshl_b32 s{sROW}, s2, 2")
        A(f"s_and_b32 s33, s{sW}, 3")
        A(f"s_add_u32 s{sROW}, s{sROW}, s33")
        A(f"s_lshl_b32 s33, s{sROW}, 11")
        A(f"s_cmp_ge_u32 s{sW}, 4")
        A(f"s_cselect_b32 s33, s33, 0x7ff00000")
        A(f"v_lshlrev_b32 v{vt+2}, 5, v0")
        A(f"buffer_load_dwordx4 {V(WROW, 4)}, v{vt+2}, s[{SRD_N}:{SRD_N+3}], s33 offen")
        A(f"buffer_load_dwordx4 {V(WROW + 4, 4)}, v{vt+2}, s[{SRD_N}:{SRD_N+3}], s33 offen offset:16")
        srd(A, SRD_N, 60, 0, 1024 * 2048)
        A(f"v_lshlrev_b32 v{vt+2}, 7, v0")
        A("s_mov_b64 exec, 0xffff")
        A(f"buffer_load_dword v{vt+10}, v{vt+2}, s[{SRD_N}:{SRD_N+3}], s33 offen")
        A("s_mov_b64 exec, -1")

    xstamp(A, opts, "aissued")
    hook0()
    for i in range(4):
        A(f"v_mov_b32 v{ONES + i}, 0x3f803f80")
    for i in range(0, 8, 2):
        A(f"v_mov_b64 v[{SUM + i}:{SUM + i + 1}], 0")
        A(f"v_mov_b64 v[{D + i}:{D + i + 1}], 0")
    A(f"v_and_b32 v{vt}, 15, v0")
    A(f"v_lshrrev_b32 v{vt+1}, 4, v0")
    A(f"v_xor_b32 v{vt+2}, v{vt}, v{vt+1}")
    A(f"v_lshlrev_b32 v{vt+2}, 4, v{vt+2}")
    A(f"v_lshl_add_u32 v{vt+2}, v{vt}, 8, v{vt+2}")
    A(f"v_add_u32 v{vt+2}, s35, v{vt+2}")
    A("s_waitcnt vmcnt(4)")
    xstamp(A, opts, "axin")
    hook()
    for s in range(4):
        A(f"v_xor_b32 v{vt+3}, {s << 6}, v{vt+2}")
        A(f"ds_read_b128 {V(T + 4 * s, 4)}, v{vt+3}")
    for s in range(4):
        A(f"s_waitcnt lgkmcnt({3 - s})")
        A(mfma16(V(SUM, 4), V(ONES, 4), V(T + 4 * s, 4)))
        A(mfma16(V(GR, 4), V(T + 4 * s, 4), V(T + 4 * s, 4)))
    late_fills()
    A(f"v_and_b32 v{vt+3}, 3, v0")
    A(f"v_bfe_u32 v{vt+4}, v0, 2, 2")
    A(f"v_cmp_eq_u32 s[34:35], v{vt+4}, v{vt+1}")
    A(f"v_cmp_eq_u32 s[36:37], 1, v{vt+3}")
    A(f"v_cmp_eq_u32 s[42:43], 2, v{vt+3}")
    A(f"v_cmp_eq_u32 s[96:97], 3, v{vt+3}")
    A("s_nop 3")
    A(f"v_cndmask_b32 v{vt+5}, v{GR}, v{GR+1}, s[36:37]")
    A(f"v_cndmask_b32 v{vt+5}, v{vt+5}, v{GR+2}, s[42:43]")
    A(f"v_cndmask_b32 v{vt+5}, v{vt+5}, v{GR+3}, s[96:97]")
    A(f"v_cndmask_b32 v{vt+5}, 0, v{vt+5}, s[34:35]")
    reduce_over_g(A, vt + 5, vt + 6)
    A(f"v_mov_b32 v{vt+4}, v{SUM}")
    A(f"s_lshl_b32 s33, s{sW}, 7")
    A(f"s_add_u32 s33, s33, {SCR}")
    A(f"v_lshlrev_b32 v{vt+6}, 3, v{vt}")
    A(f"v_add_u32 v{vt+7}, s33, v{vt+6}")
    A(f"ds_write_b64 v{vt+7}, {V(vt + 4, 2)}")
    A("s_waitcnt lgkmcnt(0)")
    A("s_barrier")
    A(f"v_add_u32 v{vt+7}, {SCR}, v{vt+6}")
    for w in range(8):
        A(f"ds_read_b64 {V(SUM + 2 * w, 2)}, v{vt+7} offset:{w * 128}")
    A(f"v_lshrrev_b32 v{vt+4}, 4, v0")
    A(f"v_bfe_u32 v{vt+5}, v0, 2, 2")
    A(f"v_lshl_add_u32 v{vt+5}, v{vt+4}, 3, v{vt+5}")
    A(f"v_lshlrev_b32 v{vt+5}, 6, v{vt+5}")
    A(f"v_and_b32 v{vt+6}, 3, v0")
    A(f"v_lshl_add_u32 v{vt+5}, v{vt+6}, 3, v{vt+5}")
    A(f"v_and_b32 v{vt+4}, 1, v{vt+4}")
    A(f"v_lshl_add_u32 v{vt+5}, v{vt+4}, 5, v{vt+5}")
    A(f"s_lshl_b32 s33, s{sW}, 13")
    A(f"s_add_u32 s33, s33, {WL}")
    A(f"v_add_u32 v{vt+5}, s33, v{vt+5}")
    A(f"v_xor_b32 v{vt+6}, 32, v{vt+5}")
    A(f"v_mov_b32 v{WROW + 8}, v{vt+5}")
    A("s_waitcnt lgkmcnt(0)")
    for wd in (8, 4, 2):
        for x in range(wd):
            A(f"v_add_f32 v{SUM + x}, v{SUM + x}, v{SUM + wd + x}")
    MEAN, RS, NMR = SUM + 2, SUM + 3, SUM + 4
    A(f"v_mul_f32 v{MEAN}, {f32hex(1.0 / 1024)}, v{SUM}")
    A(f"v_mul_f32 v{vt+4}, {f32hex(1.0 / 1024)}, v{SUM+1}")
    A(f"v_fma_f32 v{vt+4}, -v{MEAN}, v{MEAN}, v{vt+4}")
    A(f"v_max_f32 v{vt+4}, 0, v{vt+4}")
    A(f"v_add_f32 v{vt+4}, {f32hex(EPS)}, v{vt+4}")
    A(f"v_rsq_f32 v{RS}, v{vt+4}")
    A("s_nop 0")
    A(f"v_mul_f32 v{NMR}, v{MEAN}, v{RS}")
    for q in range(16):
        r = T + q
        A(f"v_lshlrev_b32 v{vt+8}, 16, v{r}")
        A(f"v_and_b32 v{vt+9}, 0xffff0000, v{r}")
        A(f"v_fma_f32 v{vt+8}, v{vt+8}, v{RS}, -v{NMR}")
        A(f"v_fma_f32 v{vt+9}, v{vt+9}, v{RS}, -v{NMR}")
        A(f"v_cvt_pk_bf16_f32 v{r}, v{vt+8}, v{vt+9}")
    A(f"s_lshl_b32 s33, s{sTF}, 7")
    A(f"s_or_b32 s34, s{sKV}, s{sW}")
    A(f"s_cmp_eq_u32 s34, 0")
    A(f"s_cselect_b32 s33, s33, 0x7ff00000")
    srd(A, SRD_O, 4, WS_XM, 16384)
    A(f"v_lshlrev_b32 v{vt+4}, 3, v{vt}")
    A(f"buffer_store_dwordx2 {V(MEAN, 2)}, v{vt+4}, s[{SRD_O}:{SRD_O+3}], s33 offen sc1")
    A(f"v_xor_b32 v11, 32, v{WROW + 8}")
    xstamp(A, opts, "anorm")
    A("s_waitcnt vmcnt(4)")
    xstamp(A, opts, "awin")
    for s in range(4):
        for F in range(2):
            for i in range(2):
                A(f"ds_read_b64_tr_b16 {V(WF + (F * 4 + s) * 4 + 2 * i, 2)}, v{(WROW + 8, 11)[F]} offset:{(32 * s + 4 * i) * 64}")
    A("s_waitcnt lgkmcnt(0)")
    for s in range(4):
        for F in range(2):
            A(mfma16(V(D + 4 * F, 4), V(WF + (F * 4 + s) * 4, 4), V(T + 4 * s, 4)))
    A(f"s_lshl_b32 s33, s{sW}, 11")
    A(f"s_add_u32 s33, s33, {XL}")
    A(f"v_lshlrev_b32 v{vt+4}, 4, v0")
    A(f"v_add_u32 v{vt+5}, s33, v{vt+4}")
    A("s_nop 4")
    for F in range(2):
        A(f"ds_write_b128 v{vt+5}, {V(D + 4 * F, 4)} offset:{F * 1024}")
    A("s_waitcnt lgkmcnt(0)")
    A("s_barrier")
    xstamp(A, opts, "abar2")
    hook2()
    xstamp(A, opts, "afill")
    WB, ADONE = f"L_{name}_wbar", f"L_{name}_adone"
    A(f"s_cmp_lg_u32 s{sW}, 0")
    A(f"s_cbranch_scc1 {WB}")
    for w in range(1, 8):
        for F in range(2):
            A(f"ds_read_b128 {V(WF + (w - 1) * 8 + 4 * F, 4)}, v{vt+4} offset:{XL + w * 2048 + F * 1024}")
    for w in range(1, 8):
        A(f"s_waitcnt lgkmcnt({2 * (7 - w)})")
        for i in range(8):
            A(f"v_add_f32 v{D + i}, v{D + i}, v{WF + (w - 1) * 8 + i}")
    NS = WF
    A(f"v_mul_f32 v{NS}, v{D}, v{D}")
    for i in range(1, 8):
        A(f"v_fmac_f32 v{NS}, v{D + i}, v{D + i}")
    for F in range(2):
        a = D + 4 * F
        A(f"v_cvt_pk_bf16_f32 v{a}, v{a}, v{a+1}")
        A(f"v_cvt_pk_bf16_f32 v{a+1}, v{a+2}, v{a+3}")
    srd(A, SRD_O, 4, WS_KV, 256 * 1024)
    A(f"s_lshr_b32 s33, s{sTF}, 1")
    A(f"s_lshl_b32 s33, s33, 12")
    A(f"s_and_b32 s34, s{sTF}, 1")
    ISV, NRM = f"L_{name}_isv", f"L_{name}_nrm"
    A(f"s_cmp_lg_u32 s{sKV}, 0")
    A(f"s_cbranch_scc1 {ISV}")
    A(f"s_lshl_b32 s34, s34, 8")
    A(f"s_add_u32 s33, s33, s34")
    A(f"v_bfe_u32 v{vt+4}, v0, 4, 1")
    A(f"v_lshlrev_b32 v{vt+4}, 9, v{vt+4}")
    A(f"v_lshrrev_b32 v{vt+5}, 5, v0")
    A(f"v_lshl_add_u32 v{vt+4}, v{vt+5}, 3, v{vt+4}")
    A(f"v_lshl_add_u32 v{vt+4}, v{vt}, 4, v{vt+4}")
    for F in range(2):
        A(f"buffer_store_dwordx2 {V(D + 4 * F, 2)}, v{vt+4}, s[{SRD_O}:{SRD_O+3}], s33 offen offset:{F * 1024} sc1")
    A(f"s_branch {NRM}")
    A.label(ISV)
    A(f"s_lshl_b32 s34, s34, 10")
    A(f"s_add_u32 s33, s33, s34")
    A(f"s_add_u32 s33, s33, 2048")
    A(f"v_bfe_u32 v{vt+4}, v0, 2, 1")
    A(f"v_lshlrev_b32 v{vt+5}, 9, v{vt+4}")
    A(f"v_lshrrev_b32 v{vt+4}, 4, v0")
    A(f"v_lshl_add_u32 v{vt+5}, v{vt+4}, 6, v{vt+5}")
    A(f"v_bfe_u32 v{vt+4}, v0, 3, 1")
    A(f"v_lshl_add_u32 v{vt+5}, v{vt+4}, 3, v{vt+5}")
    A(f"v_and_b32 v{vt+4}, 3, v0")
    A(f"v_lshl_add_u32 v{vt+5}, v{vt+4}, 1, v{vt+5}")
    for F in range(2):
        for r in range(4):
            op = "buffer_store_short" if r % 2 == 0 else "buffer_store_short_d16_hi"
            A(f"{op} v{D + 4 * F + r // 2}, v{vt+5}, s[{SRD_O}:{SRD_O+3}], s33 offen offset:{F * 256 + r * 16} sc1")
    A.label(NRM)
    reduce_over_g(A, NS, vt + 6)
    for sh in (8, 4, 2, 1):
        A("s_nop 1")
        A(f"v_max_f32_dpp v{NS}, v{NS}, v{NS} row_ror:{sh} row_mask:0xf bank_mask:0xf")
    srd(A, SRD_N, 4, WS_NRM, 1024)
    A(f"s_lshl_b32 s33, s{sKV}, 7")
    A(f"s_add_u32 s33, s33, s{sTF}")
    A(f"s_lshl_b32 s33, s33, 2")
    A(f"v_mov_b32 v{vt+4}, 0")
    A(f"buffer_store_dword v{NS}, v{vt+4}, s[{SRD_N}:{SRD_N+3}], s33 offen sc1")
    A(f"s_branch {ADONE}")
    A.label(WB)
    A(f"s_cmp_lt_u32 s{sW}, 4")
    A(f"s_cbranch_scc1 {ADONE}")
    A("s_waitcnt vmcnt(0)")
    A(f"v_mov_b32 v{vt}, 0")
    for i in range(8):
        A(f"v_dot2c_f32_bf16 v{vt}, v{WROW + i}, v{ONES}")
    A("s_nop 2")
    for sh in (8, 4, 2, 1):
        A(f"v_add_f32_dpp v{vt}, v{vt}, v{vt} row_ror:{sh} row_mask:0xf bank_mask:0xf")
        A("s_nop 1")
    reduce_over_g(A, vt, vt + 1)
    A(f"v_mul_f32 v{vt}, {f32hex(1.0 / 1024)}, v{vt}")
    A(f"v_cvt_pk_bf16_f32 v{vt+1}, v{vt}, v{vt}")
    A(f"v_lshlrev_b32 v{vt+2}, 16, v{vt+1}")
    A(f"v_sub_f32 v{vt+2}, v{vt}, v{vt+2}")
    A(f"v_cvt_pk_bf16_f32 v{vt+2}, v{vt+2}, v{vt+2}")
    r_ = f"s{sROW}"
    A(f"s_lshr_b32 s33, {r_}, 5"); A("s_lshl_b32 s33, s33, 7")
    A(f"s_bfe_u32 s34, {r_}, 0x10004"); A("s_lshl_b32 s34, s34, 5"); A("s_add_u32 s33, s33, s34")
    A(f"s_bfe_u32 s34, {r_}, 0x10002"); A("s_lshl_b32 s34, s34, 4"); A("s_add_u32 s33, s33, s34")
    A(f"s_bfe_u32 s34, {r_}, 0x10003"); A("s_lshl_b32 s34, s34, 3"); A("s_add_u32 s33, s33, s34")
    A(f"s_and_b32 s34, {r_}, 3"); A("s_lshl_b32 s34, s34, 1"); A("s_add_u32 s33, s33, s34")
    srd(A, SRD_N, 4, WS_WB, 4096)
    A(f"v_mov_b32 v{vt+3}, 0")
    A(f"buffer_store_short v{vt+1}, v{vt+3}, s[{SRD_N}:{SRD_N+3}], s33 offen")
    A(f"buffer_store_short v{vt+2}, v{vt+3}, s[{SRD_N}:{SRD_N+3}], s33 offen offset:64")
    A.label(ADONE)


def poll(A, name, tag, srd_, voff, soff, nlanes, vtmp, sNONCE, wide=False):
    L, G = f"L_{name}_poll{tag}", f"L_{name}_got{tag}"
    A("s_mov_b32 s37, 0x8000")
    A.label(L)
    if wide:
        A(f"buffer_load_dwordx4 {V(vtmp, 4)}, v{voff}, s[{srd_}:{srd_+3}], {soff} offen sc1")
        A("s_waitcnt vmcnt(0)")
        A(f"v_xor_b32 v{vtmp}, s{sNONCE}, v{vtmp}")
        for i in range(1, 4):
            A(f"v_xor_b32 v{vtmp+i}, s{sNONCE}, v{vtmp+i}")
        A(f"v_or3_b32 v{vtmp}, v{vtmp}, v{vtmp+1}, v{vtmp+2}")
        A(f"v_or_b32 v{vtmp}, v{vtmp}, v{vtmp+3}")
        A(f"v_cmp_ne_u32 vcc, 0, v{vtmp}")
    else:
        A(f"s_mov_b64 exec, {hex((1 << nlanes) - 1)}")
        A(f"buffer_load_dword v{vtmp}, v{voff}, s[{srd_}:{srd_+3}], {soff} offen sc1")
        A("s_waitcnt vmcnt(0)")
        A(f"v_cmp_ne_u32 vcc, s{sNONCE}, v{vtmp}")
        A("s_mov_b64 exec, -1")
    A("s_sub_u32 s37, s37, 1")
    A("s_cmp_eq_u32 s37, 0")
    A(f"s_cbranch_scc1 {G}")
    A("s_nop 3")
    A(f"s_cbranch_vccnz {L}")
    A.label(G)


def gen_k2(A, name="k2_attn_kernel", opts=None):
    opts = opts or {}
    kernel_begin(A, name)
    END = f"L_{name}_end"
    sW, sTB, sHG, sH = 24, 25, 26, 27
    sCoff, sM0, sHalf = 28, 29, 30
    CH = 32768
    RMASK = 4 * CH - 1
    SRD_KV, SRD_Q, SRD_O, SRD_N = 8, 12, 16, 20
    vL, vLn, vD, vt = 1, 2, 3, 4
    Q = [12, 20]
    Sx = [28, 44]
    P = [60, 68]
    O = [76, 92]
    L = [108, 112]
    KB = [116, 124]
    VB = [132, 140]
    SEL = 148
    MX = [152, 153]
    NV = 188
    NRM_LDS = 4 * CH
    QX = NRM_LDS + 4352

    A("s_cmp_ge_u32 s2, 256")
    A(f"s_cbranch_scc1 {END}")
    stamp(A, opts, 0)
    A(f"s_load_dwordx2 s[4:5], s[0:1], {KA_WS}")
    if True:
        A(f"s_load_dwordx2 s[80:81], s[0:1], {KA_WO}")
        A(f"s_load_dwordx4 s[84:87], s[0:1], {KA_WG}")
        A(f"s_load_dwordx2 s[88:89], s[0:1], {KA_WD}")
        A(f"s_load_dwordx2 s[98:99], s[0:1], {KA_X}")
        A(f"s_load_dwordx2 s[60:61], s[0:1], {KA_WQ}")
        A(f"s_load_dwordx4 s[40:43], s[0:1], {KA_WK}")
        A(f"s_load_dwordx2 s[100:101], s[0:1], {KA_DBG}")
    A(f"v_lshrrev_b32 v{vt}, 6, v0")
    A("v_and_b32 v0, 63, v0")
    A(f"s_and_b32 s{sTB}, s2, 7")
    A(f"s_lshl_b32 s{sTB}, s{sTB}, 2")
    A(f"s_bfe_u32 s33, s2, 0x20003")
    A(f"s_add_u32 s{sTB}, s{sTB}, s33")
    A(f"v_readfirstlane_b32 s{sW}, v{vt}")
    A(f"s_lshr_b32 s{sHG}, s2, 5")
    A(f"v_lshlrev_b32 v{vL}, 4, v0")
    A(f"s_and_b32 s33, s{sW}, 3")
    A(f"s_lshr_b32 s{sHalf}, s{sW}, 2")
    A(f"s_lshl_b32 s{sH}, s{sHG}, 2")
    A(f"s_add_u32 s{sH}, s{sH}, s33")
    A(f"s_lshl_b32 s{sM0}, s33, 12")
    A("s_waitcnt lgkmcnt(0)")
    xstamp(A, opts, "karg")
    sNONCE = 94
    A(f"v_mov_b32 v13, {WS_NONCE}")
    A(f"global_load_dword v14, v13, s[4:5] sc1")

    def publish_nonce():
        NN = f"L_{name}_nononce"
        A("s_cmp_lg_u32 s2, 0")
        A(f"s_cbranch_scc1 {NN}")
        A(f"s_cmp_lg_u32 s{sW}, 0")
        A(f"s_cbranch_scc1 {NN}")
        A("v_add_u32 v14, 1, v14")
        A("v_max_u32 v14, 1, v14")
        A("global_store_dword v13, v14, s[4:5] sc1")
        A("v_mov_b32 v13, 0")
        A("global_store_dword v13, v14, s[100:101] sc1")
        A.label(NN)
    A(f"s_add_u32 s46, s4, {WS_F3}")
    A("s_addc_u32 s47, s5, 0")
    A(f"s_mul_i32 s33, s2, {6 * 128}")
    A("v_lshlrev_b32 v12, 7, v0")
    A("v_add_u32 v12, s33, v12")
    A("v_mov_b32 v11, 0")
    A("s_mov_b64 exec, 63")
    A("global_store_dword v12, v11, s[46:47]")
    A("s_mov_b64 exec, -1")
    SRD_F = 20
    QL, QS = CH, 24576
    QACC, QWF, QXF = Sx[0], Sx[1], O[0]
    QCS, QSEL, QST = 156, 172, 176
    vXd, vWd0, vWd1 = 134, 135, 136
    vXr = [[137 + 4 * h + k for k in range(4)] for h in range(2)]
    vWr = [[145 + 4 * h + k for k in range(4)] for h in range(2)]
    sXo, sWo, sXraw, sMX, sMW, sRot = 62, 63, 90, 91, 47, 95
    sKV0 = 93
    SRD_WQ = 56
    srd(A, SRD_WQ, 60, 0, 1024 * 2048)
    A(f"v_lshrrev_b32 v{vt}, 3, v0")
    A(f"s_lshl_b32 s33, s{sW}, 3")
    A(f"v_add_u32 v{vt}, s33, v{vt}")
    A(f"v_lshrrev_b32 v{vt+1}, 1, v{vt}")
    A(f"v_and_b32 v{vt+1}, 7, v{vt+1}")
    A(f"v_and_b32 v{vt+2}, 7, v0")
    A(f"v_xor_b32 v{vt+1}, v{vt+1}, v{vt+2}")
    A(f"v_lshlrev_b32 v{vt}, 11, v{vt}")
    A(f"v_lshl_add_u32 v{vXd}, v{vt+1}, 4, v{vt}")
    A(f"s_lshl_b32 s33, s{sTB}, 17")
    A(f"v_add_u32 v{vXd}, s33, v{vXd}")
    A(f"s_lshl_b32 s{sMX}, s{sW}, 10")
    A(f"s_add_u32 s{sMW}, s{sMX}, {QL + 8192}")
    A(f"s_add_u32 s{sMX}, s{sMX}, {QL}")
    A(f"v_bfe_u32 v{vt+1}, v0, 4, 1")
    A(f"v_lshlrev_b32 v{vt+1}, 2, v{vt+1}")
    A(f"v_xor_b32 v{vt+1}, v{vt+1}, v{vt+2}")
    A(f"v_lshrrev_b32 v{vt}, 3, v0")
    A(f"s_lshl_b32 s33, s{sW}, 3")
    A(f"v_add_u32 v{vt}, s33, v{vt}")
    A(f"v_lshlrev_b32 v{vt}, 11, v{vt}")
    A(f"v_lshl_add_u32 v{vt}, v{vt+1}, 4, v{vt}")
    A(f"s_lshl_b32 s33, s{sHG}, 8")
    A(f"v_add_u32 v{vWd0}, s33, v{vt}")
    A(f"v_add_u32 v{vWd1}, 128, v{vWd0}")
    sSt, sCn = 90, 45
    if opts.get("qrot", 1):
        A(f"s_and_b32 s{sSt}, s{sTB}, 15")
    else:
        A(f"s_mov_b32 s{sSt}, 0")
    A(f"s_mov_b32 s{sCn}, 0")
    A(f"s_lshl_b32 s{sXo}, s{sSt}, 7")
    A(f"s_lshl_b32 s{sWo}, s{sSt}, 17")

    def q_dma(slot):
        return [[f"s_add_u32 m0, s{sMX}, {slot * QS}", "s_nop 0",
                 f"buffer_load_dwordx4 v{vXd}, s[{SRD_Q}:{SRD_Q+3}], s{sXo} offen lds",
                 f"s_add_u32 m0, s{sMW}, {slot * QS}",
                 f"s_add_u32 s{sSt}, s{sSt}, 1", f"s_and_b32 s{sSt}, s{sSt}, 15", f"s_add_u32 s{sCn}, s{sCn}, 1"],
                [f"buffer_load_dwordx4 v{vWd0}, s[{SRD_WQ}:{SRD_WQ+3}], s{sWo} offen lds",
                 f"s_add_u32 m0, s{sMW}, {slot * QS + 8192}", "s_nop 0"],
                [f"buffer_load_dwordx4 v{vWd1}, s[{SRD_WQ}:{SRD_WQ+3}], s{sWo} offen lds",
                 f"s_lshl_b32 s{sXo}, s{sSt}, 7", f"s_lshl_b32 s{sWo}, s{sSt}, 17", f"s_cmp_lt_u32 s{sCn}, 16",
                 f"s_cselect_b32 s{sXo}, s{sXo}, 0x7ff00000", f"s_cselect_b32 s{sWo}, s{sWo}, 0x7ff00000"]]

    def first_fills():
        srd(A, SRD_F, 100, 0, 256)
        A("v_mov_b32 v13, 0")
        A(f"buffer_load_dword v14, v13, s[{SRD_F}:{SRD_F+3}], 0 offen sc1")
        srd(A, SRD_Q, 98, 0, 2048 * 2048)
        for sl in range(2):
            for g in q_dma(sl):
                for l in g: A(l)

    def early_setup():
        A(f"s_and_b32 s33, s{sW}, 3")
        A(f"s_add_u32 s33, s33, s{sHalf}")
        A(f"s_and_b32 s{sRot}, s33, 3")
        A(f"v_and_b32 v{vt}, 31, v0")
        A(f"v_lshrrev_b32 v{vt+1}, 1, v{vt}")
        A(f"v_and_b32 v{vt+1}, 7, v{vt+1}")
        A(f"v_lshrrev_b32 v{vt+2}, 5, v0")
        A(f"v_xor_b32 v{vt+1}, v{vt+1}, v{vt+2}")
        A(f"v_lshlrev_b32 v{vt+1}, 4, v{vt+1}")
        A(f"v_lshl_add_u32 v{vt+1}, v{vt}, 7, v{vt+1}")
        A(f"s_lshl_b32 s33, s{sHalf}, 12")
        A(f"s_add_u32 s33, s33, {QL}")
        A(f"v_add_u32 v{vt+3}, s33, v{vt+1}")
        A(f"v_bfe_u32 v{vt+1}, v0, 2, 2")
        A(f"v_lshl_add_u32 v{vt+2}, v{vt+2}, 3, v{vt+1}")
        A(f"v_lshlrev_b32 v{vt+2}, 7, v{vt+2}")
        A(f"v_bfe_u32 v{vt}, v0, 4, 1")
        A(f"s_and_b32 s33, s{sW}, 1")
        A(f"s_lshl_b32 s33, s33, 1")
        A(f"v_or_b32 v{vt}, s33, v{vt}")
        A(f"v_lshrrev_b32 v{vt+1}, 1, v{vt+1}")
        A(f"v_lshlrev_b32 v{vt+1}, 1, v{vt+1}")
        A(f"v_xor_b32 v{vt}, v{vt}, v{vt+1}")
        A(f"v_lshl_add_u32 v{vt+2}, v{vt}, 5, v{vt+2}")
        A(f"v_and_b32 v{vt}, 3, v0")
        A(f"v_lshl_add_u32 v{vt+2}, v{vt}, 3, v{vt+2}")
        A(f"s_bfe_u32 s33, s{sW}, 0x10001")
        A(f"s_lshl_b32 s33, s33, 13")
        A(f"s_add_u32 s33, s33, {QL + 8192}")
        A(f"v_add_u32 v{vt+2}, s33, v{vt+2}")
        for k in range(4):
            A(f"s_add_u32 s33, s{sRot}, {k}")
            A("s_and_b32 s33, s33, 3")
            A("s_lshl_b32 s34, s33, 5")
            A(f"v_xor_b32 v{vXr[0][k]}, s34, v{vt+3}")
            A(f"v_add_u32 v{vXr[1][k]}, {2 * QS}, v{vXr[0][k]}")
            A("s_lshl_b32 s34, s33, 11")
            A(f"v_add_u32 v{vWr[0][k]}, s34, v{vt+2}")
            A(f"v_add_u32 v{vWr[1][k]}, {2 * QS}, v{vWr[0][k]}")
        for i in range(0, 4, 2):
            A(f"v_mov_b64 v[{QCS + i}:{QCS + i + 1}], 0")
        A(f"v_lshrrev_b32 v{vt}, 4, v0")
        A(f"v_lshrrev_b32 v{vt+1}, 2, v0")
        A(f"v_xor_b32 v{vt}, v{vt}, v{vt+1}")
        A(f"v_and_b32 v{vt}, 1, v{vt}")
        A(f"v_mov_b32 v{vt+1}, 0x3f803f80")
        A(f"v_cmp_eq_u32 vcc, 0, v{vt}")
        A("s_nop 1")
        A(f"v_cndmask_b32 v{QSEL}, 0, v{vt+1}, vcc")
        for i in range(1, 4):
            A(f"v_mov_b32 v{QSEL + i}, v{QSEL}")

    phase_a(A, opts, name, sW, NRM_LDS, publish_nonce, first_fills, early_setup)
    xstamp(A, opts, "adone")
    for i in range(0, 16, 2):
        A(f"v_mov_b64 v[{QACC + i}:{QACC + i + 1}], 0")
    GN = f"L_{name}_gn"
    A("s_waitcnt vmcnt(0)")
    A(f"v_readfirstlane_b32 s{sNONCE}, v14")
    A("s_mov_b32 s37, 0x8000")
    A(f"s_cmp_lg_u32 s{sNONCE}, 0")
    A(f"s_cbranch_scc1 {GN}x")
    srd(A, SRD_F, 100, 0, 256)
    A.label(GN)
    A(f"buffer_load_dword v14, v13, s[{SRD_F}:{SRD_F+3}], 0 offen sc1")
    A("s_waitcnt vmcnt(0)")
    A(f"v_readfirstlane_b32 s{sNONCE}, v14")
    A("s_sub_u32 s37, s37, 1")
    A("s_cmp_eq_u32 s37, 0")
    A(f"s_cbranch_scc1 {GN}x")
    A(f"s_cmp_eq_u32 s{sNONCE}, 0")
    A(f"s_cbranch_scc1 {GN}")
    A.label(GN + "x")
    srd(A, SRD_F, 4, WS_FA, 128 * 128 + 1024)
    NF = f"L_{name}_noflag"
    A(f"s_cmp_lg_u32 s{sW}, 0")
    A(f"s_cbranch_scc1 {NF}")
    A(f"v_mov_b32 v14, s{sNONCE}")
    A("s_lshl_b32 s33, s2, 2")
    A(f"s_add_u32 s33, s33, {128 * 128}")
    A(f"buffer_store_dword v14, v13, s[{SRD_F}:{SRD_F+3}], s33 offen sc1")
    A.label(NF)
    for sl in range(2, 4):
        for g in q_dma(sl):
            for l in g: A(l)
    A(f"v_add_u32 v{vD}, s{sM0}, v{vL}")
    srd(A, SRD_KV, 4, WS_KV, 256 * 1024)
    srd(A, SRD_O, 4, WS_O, 4 * MB)

    def kv_dma(slot):
        out = []
        for hf in range(2):
            if isinstance(slot, int):
                pre = [f"s_add_u32 m0, s{sM0}, {slot * CH + hf * 16384}"]
            else:
                pre = [f"s_add_u32 m0, s{sM0}, {slot}"] + (["s_add_u32 m0, m0, 16384"] if hf else [])
            pre.append(f"s_add_u32 s46, s{sCoff}, {hf * 131072}")
            out.append(pre + [f"buffer_load_dwordx4 v{vD}, s[{SRD_KV}:{SRD_KV+3}], s46 offen sc1 lds"])
            for i in range(1, 4):
                out.append([f"buffer_load_dwordx4 v{vD}, s[{SRD_KV}:{SRD_KV+3}], s46 offen offset:{i * 1024} sc1 lds"])
        out[-1].append(f"s_add_u32 s{sCoff}, s{sCoff}, 16384")
        return out

    def q_reads(par, slot):
        h, sl = slot // 2, slot % 2
        out = []
        for k in range(4):
            out.append(f"ds_read_b128 {V(QXF + par * 16 + 4 * k, 4)}, v{vXr[h][k]} offset:{sl * QS}")
            for i in range(2):
                out.append(f"ds_read_b64_tr_b16 {V(QWF + par * 16 + 4 * k + 2 * i, 2)}, v{vWr[h][k]} offset:{sl * QS + 4 * i * 128}")
        return out

    A("s_barrier")
    for l in q_reads(0, 0): A(l)
    xstamp(A, opts, "qstart")

    def kv0_and_norms(tag):
        NOD0 = f"L_{name}_nod0{tag}"
        srd(A, SRD_N, 4, WS_NRM, 1024)
        A(f"s_mov_b32 s{sCoff}, 0")
        A(f"s_cmp_lg_u32 s{sHalf}, 0")
        A(f"s_cbranch_scc1 {NOD0}")
        for g in kv_dma(0):
            for l in g: A(l)
        A.label(NOD0)
        A(f"buffer_load_dwordx4 {V(vt + 4, 4)}, v{vL}, s[{SRD_N}:{SRD_N+3}], 0 offen sc1")
        srd(A, SRD_N, 4, WS_XM, 16384)
        A(f"s_lshl_b32 s33, s{sTB}, 1")
        A(f"s_add_u32 s33, s33, s{sHalf}")
        A(f"s_lshl_b32 s33, s33, 8")
        A(f"v_and_b32 v178, 31, v0")
        A(f"v_lshlrev_b32 v178, 3, v178")
        A(f"buffer_load_dwordx2 {V(QST, 2)}, v178, s[{SRD_N}:{SRD_N+3}], s33 offen sc1")

    A(f"s_mov_b32 s{sKV0}, 0")
    QLOOP = f"L_{name}_qloop"
    A("s_mov_b32 s44, 4")
    A.loop_begin(QLOOP)
    for sl in range(4):
        par = sl % 2
        A("s_waitcnt vmcnt(6) lgkmcnt(0)")
        A("s_barrier")
        wf = lambda k: V(QWF + par * 16 + 4 * k, 4)
        xf = lambda k: V(QXF + par * 16 + 4 * k, 4)
        main = [mfma32(V(QACC, 16), wf(0), xf(0)), mfma16(V(QCS, 4), V(QSEL, 4), wf(0)), mfma32(V(QACC, 16), wf(1), xf(1)),
                mfma32(V(QACC, 16), wf(2), xf(2)), mfma16(V(QCS, 4), V(QSEL, 4), wf(2)), mfma32(V(QACC, 16), wf(3), xf(3))]
        vm = q_dma(sl)
        rd = q_reads(1 - par, (sl + 1) % 4)
        f = {-1: list(vm[0]), 0: list(vm[1]) + rd[0:4], 1: list(vm[2]) + rd[4:8], 2: rd[8:12]}
        for l in interleave(main, f): A(l)
    A("s_cmp_le_u32 s44, 3")
    A(f"s_cbranch_scc1 L_{name}_fb")
    A.label(f"L_{name}_fbback")
    A("s_sub_u32 s44, s44, 1")
    A("s_cmp_lg_u32 s44, 0")
    A(f"s_cbranch_scc1 {QLOOP}")
    A.loop_end()
    xstamp(A, opts, "qend")
    A("s_waitcnt lgkmcnt(0)")
    A(f"s_cmp_eq_u32 s{sKV0}, 1")
    A(f"s_cbranch_scc1 L_{name}_kv0done")
    A("s_waitcnt vmcnt(0)")
    A(f"s_mov_b32 s33, {128 * 128}")
    poll(A, name, "b2", SRD_F, vL, "s33", 64, vt + 4, sNONCE, wide=True)
    kv0_and_norms("late")
    A.label(f"L_{name}_kv0done")
    CSL = QX + 16384
    A(f"s_and_b32 s34, s{sW}, 3")
    A(f"s_lshl_b32 s35, s34, 8")
    A(f"s_add_u32 s35, s35, {CSL}")
    A(f"s_lshl_b32 s36, s{sHalf}, 7")
    A(f"s_add_u32 s36, s36, s35")
    A(f"v_and_b32 v{vt}, 31, v0")
    A(f"v_lshlrev_b32 v{vt}, 2, v{vt}")
    A(f"v_add_u32 v{vt}, s36, v{vt}")
    A(f"ds_write_b32 v{vt}, v{QCS}")
    A(f"v_lshrrev_b32 v{vt+1}, 5, v0")
    A(f"v_lshlrev_b32 v{vt+1}, 4, v{vt+1}")
    A(f"v_add_u32 v{vt+1}, s35, v{vt+1}")
    A("s_waitcnt lgkmcnt(0)")
    A("s_barrier")
    for X in range(2):
        for q in range(4):
            A(f"ds_read_b128 {V(QXF + X * 16 + 4 * q, 4)}, v{vt+1} offset:{X * 128 + q * 32}")
    A("s_waitcnt vmcnt(0)")
    A(f"v_mul_f32 v{QST+1}, {f32hex(QSCALE)}, v{QST+1}")
    A("s_waitcnt lgkmcnt(0)")
    for i in range(16):
        A(f"v_add_f32 v{QXF + i}, v{QXF + i}, v{QXF + 16 + i}")
    for i in range(16):
        A(f"v_fma_f32 v{QACC + i}, -v{QST}, v{QXF + i}, v{QACC + i}")
        A(f"v_mul_f32 v{QACC + i}, v{QST+1}, v{QACC + i}")
    A(f"v_mul_f32 v{vt}, v{QACC}, v{QACC}")
    for i in range(1, 16):
        A(f"v_fmac_f32 v{vt}, v{QACC + i}, v{QACC + i}")
    for jq in range(8):
        A(f"v_cvt_pk_bf16_f32 v{P[0] + jq}, v{QACC + 2 * jq}, v{QACC + 2 * jq + 1}")
    A(f"s_and_b32 s33, s{sW}, 3")
    A(f"s_lshl_b32 s33, s33, 12")
    A(f"s_add_u32 s34, s33, {QX}")
    A(f"v_add_u32 v186, s34, v{vL}")
    A(f"s_lshl_b32 s35, s{sHalf}, 11")
    A(f"v_add_u32 v{vt+3}, s35, v186")
    for m in range(2):
        A(f"ds_write_b128 v{vt+3}, {V(P[0] + 4 * m, 4)} offset:{m * 1024}")
    A(f"v_mov_b32 v{vt+1}, v{vt}")
    A("s_nop 1")
    A(f"v_permlane32_swap_b32 v{vt}, v{vt+1}")
    A(f"v_add_f32 v{vt}, v{vt}, v{vt+1}")
    wave_max(A, vt, vt + 1)
    A(f"v_mov_b32 v{vt+1}, {NRM_LDS}")
    A(f"s_lshl_b32 s33, s{sW}, 2")
    A(f"v_add_u32 v{vt+1}, s33, v{vt+1}")
    A(f"ds_write_b32 v{vt+1}, v{vt}")
    A(f"s_lshl_b32 s33, s{sHalf}, 14")
    A(f"v_add_u32 v{vL}, s33, v{vL}")
    A(f"v_lshrrev_b32 v{vt}, 4, v0")
    A(f"v_lshrrev_b32 v{vt+1}, 2, v0")
    A(f"v_xor_b32 v{vt}, v{vt}, v{vt+1}")
    A(f"v_and_b32 v{vt}, 1, v{vt}")
    A(f"v_mov_b32 v{vt+1}, 0x3f803f80")
    A(f"v_cmp_eq_u32 vcc, 0, v{vt}")
    A("s_nop 1")
    A(f"v_cndmask_b32 v{SEL}, 0, v{vt+1}, vcc")
    for i in range(1, 4):
        A(f"v_mov_b32 v{SEL + i}, v{SEL}")
    for X in range(2):
        for i in range(0, 16, 2): A(f"v_mov_b64 v[{O[X] + i}:{O[X] + i + 1}], 0")
        for i in range(0, 4, 2): A(f"v_mov_b64 v[{L[X] + i}:{L[X] + i + 1}], 0")
    for i in range(0, 8, 2):
        A(f"v_mov_b64 v[{P[1] + i}:{P[1] + i + 1}], 0")
        A(f"v_mov_b64 v[{VB[1] + i}:{VB[1] + i + 1}], 0")
    side_setup(A, opts, sW, vt)
    n = vt + 4
    xstamp(A, opts, "prewait")
    A("s_waitcnt vmcnt(0) lgkmcnt(0)")
    A(f"v_max_f32 v{n}, v{n}, v{n+1}")
    A(f"v_max3_f32 v{n}, v{n}, v{n+2}, v{n+3}")
    for sh in (8, 4, 2, 1):
        A("s_nop 1")
        A(f"v_max_f32_dpp v{n}, v{n}, v{n} row_ror:{sh} row_mask:0xf bank_mask:0xf")
    xstamp(A, opts, "w0")
    A("s_barrier")
    xstamp(A, opts, "bar0")
    for X in range(2):
        for m in range(2):
            A(f"ds_read_b128 {V(Q[X] + 4 * m, 4)}, v186 offset:{X * 2048 + m * 1024}")
    A(f"v_mov_b32 v{vt+1}, {NRM_LDS}")
    A(f"ds_read_b128 {V(KB[1], 4)}, v{vt+1}")
    A(f"ds_read_b128 {V(KB[1] + 4, 4)}, v{vt+1} offset:16")
    A(f"v_readlane_b32 s34, v{n}, 0")
    A(f"v_readlane_b32 s35, v{n}, 16")
    A(f"v_readlane_b32 s36, v{n}, 32")
    A(f"v_readlane_b32 s37, v{n}, 48")
    A(f"v_add_u32 v{vLn}, {CH}, v{vL}")
    for m in range(2):
        A(f"ds_read_b128 {V(KB[0] + 4 * m, 4)}, v{vL} offset:{m * 1024}")
    A("s_max_u32 s34, s34, s35")
    A("s_max_u32 s36, s36, s37")
    A("s_waitcnt lgkmcnt(0)")
    k1 = KB[1]
    A(f"v_max3_f32 v{k1}, v{k1}, v{k1+1}, v{k1+2}")
    A(f"v_max3_f32 v{k1}, v{k1}, v{k1+3}, v{k1+4}")
    A(f"v_max3_f32 v{k1}, v{k1}, v{k1+5}, v{k1+6}")
    A(f"v_max_f32 v{k1}, v{k1}, v{k1+7}")
    A(f"v_mul_f32 v{vt}, s34, v{k1}")
    A(f"v_mov_b32 v{vt+2}, s36")
    A(f"v_mov_b32 v{vt+1}, {f32hex(T_BOUND * T_BOUND / 1.05)}")
    A(f"v_cmp_le_f32 vcc, v{vt}, v{vt+1}")
    A(f"v_mov_b32 v{vt+1}, {f32hex(V_BOUND2)}")
    A(f"v_cmp_le_f32 s[36:37], v{vt+2}, v{vt+1}")
    A("s_nop 1")
    A("s_and_b64 vcc, vcc, s[36:37]")
    SLOW = f"L_{name}_slow"
    FIN = f"L_{name}_fin"
    if opts.get("force_slow"):
        A("s_mov_b64 vcc, 0")
    A("s_nop 4")
    A(f"s_cbranch_vccz {SLOW}")

    def k_reads(buf, base, off):
        return [f"ds_read_b128 {V(KB[buf] + 4 * m, 4)}, v{base} offset:{off + m * 1024}" for m in range(2)]

    def v_reads(buf, base, off):
        return [f"ds_read_b128 {V(VB[buf] + 4 * m, 4)}, v{base} offset:{off + 2048 + m * 1024}" for m in range(2)]

    def s_mfma(X, kb):
        return [mfma32(V(Sx[X], 16), V(KB[kb], 4), V(Q[X], 4), "0"),
                mfma32(V(Sx[X], 16), V(KB[kb] + 4, 4), V(Q[X] + 4, 4))]

    def pv_mfma(X, vb):
        return [mfma32(V(O[X], 16), V(VB[vb], 4), V(P[X], 4)),
                mfma16(V(L[X], 4), V(SEL, 4), V(P[X], 4)),
                mfma32(V(O[X], 16), V(VB[vb] + 4, 4), V(P[X] + 4, 4)),
                mfma16(V(L[X], 4), V(SEL, 4), V(P[X] + 4, 4))]

    def softmax_valu(X):
        out = []
        s, p = Sx[X], P[X]
        lag = opts.get("lag", 1)
        if opts.get("no_valu"): return ["s_nop 0"] * 24
        if opts.get("exp_const"):
            for j in range(8):
                out.append(f"v_exp_f32 v{s + 2*j}, v{SEL}")
                out.append(f"v_exp_f32 v{s + 2*j + 1}, v{SEL}")
                if j >= lag:
                    out.append(f"v_cvt_pk_bf16_f32 v{p + j - lag}, v{SEL}, v{SEL}")
            for jj in range(8 - lag, 8):
                out.append(f"v_cvt_pk_bf16_f32 v{p + jj}, v{SEL}, v{SEL}")
            return out
        for j in range(8):
            out.append(f"v_exp_f32 v{s + 2*j}, v{s + 2*j}")
            out.append(f"v_exp_f32 v{s + 2*j + 1}, v{s + 2*j + 1}")
            if j >= lag:
                jj = j - lag
                out.append(f"v_cvt_pk_bf16_f32 v{p + jj}, v{s + 2*jj}, v{s + 2*jj + 1}")
        for jj in range(8 - lag, 8):
            out.append(f"v_cvt_pk_bf16_f32 v{p + jj}, v{s + 2*jj}, v{s + 2*jj + 1}")
        return out

    def phase(valu, mf, lds, extra=None):
        valu = list(valu)
        out = []
        n = len(valu)
        pos = opts.get("mfpos", [1, 5, 10, 14, 18, 22])
        items = {}
        for k, m in enumerate(mf):
            items.setdefault(pos[k], []).append(m)
        for k, l in enumerate(lds):
            items.setdefault(opts.get("ldspos", [1, 3, 5, 7])[k], []).append(l)
        for k, e in enumerate(extra or []):
            items.setdefault(6 + 2 * k, []).extend(e if isinstance(e, list) else [e])
        for i, v in enumerate(valu):
            out += items.get(i, [])
            if v == "NOPSLOT":
                if not items.get(i): out.append("s_nop 0")
                continue
            out.append(v)
        return out

    for l in s_mfma(0, 0): A(l)
    A("s_nop 7")
    A("s_nop 3")
    stamp(A, opts, 1)
    xstamp(A, opts, "loopstart")
    A("s_mov_b32 s44, 8")
    A(f"s_mov_b32 s45, {3 * CH}")
    A(f"s_cmp_lg_u32 s{sHalf}, 0")
    A(f"s_cbranch_scc1 L_{name}_sstart")

    def fast_loop(role):
        if opts.get("prio") == role:
            A("s_setprio 1")
        LOOP = f"L_{name}_loop{role}"
        A.loop_begin(LOOP)
        for t in range(4):
            kb, vb = t % 2, t % 2
            if t < 2 and role == "p":
                A("s_cmp_eq_u32 s44, 8")
                A(f"s_cbranch_scc1 L_{name}_ramp{t}")
                A.label(f"L_{name}_rampback{t}")
            extra, extra2 = [], []
            if t == 3:
                if role == "p":
                    A("s_waitcnt vmcnt(8)")
                    A("s_barrier")
                    g = kv_dma("s45")
                    g[-1] = g[-1] + [f"s_add_u32 s45, s45, {CH}", f"s_and_b32 s45, s45, {RMASK}"]
                    extra, extra2 = g[:4], g[4:]
                else:
                    A("s_barrier")
                    extra = prefetch_step(opts, name)
                lds = k_reads(1 - kb, vLn, 0) + v_reads(vb, vL, t * 4096)
            else:
                lds = k_reads(1 - kb, vL, (t + 1) * 4096) + v_reads(vb, vL, t * 4096)
            mf = s_mfma(1, kb) + pv_mfma(1, 1 - vb)
            if opts.get("no_lds"): lds = []
            if opts.get("no_L"): mf = [m for m in mf if "16x16" not in m]
            if opts.get("no_mfma"): mf = []
            for l in phase(softmax_valu(0), mf, lds, extra): A(l)
            A("s_waitcnt lgkmcnt(0)")
            if t == 3:
                extra2 = extra2 + [[f"v_mov_b32 v{vL}, v{vLn}"], [f"v_add_u32 v{vLn}, {CH}, v{vLn}"], [f"v_and_b32 v{vLn}, {RMASK}, v{vLn}"]]
            mf = s_mfma(0, 1 - kb) + pv_mfma(0, vb)
            if opts.get("no_L"): mf = [m for m in mf if "16x16" not in m]
            if opts.get("no_mfma"): mf = []
            for l in phase(softmax_valu(1), mf, [], extra2): A(l)
        out = once_jobs(A, opts, name, "f", sW, vt) if role == "s" else None
        A("s_sub_u32 s44, s44, 1")
        A("s_cmp_lg_u32 s44, 0")
        A(f"s_cbranch_scc1 {LOOP}")
        A.loop_end()
        A("s_nop 1")
        for l in pv_mfma(1, 1): A(l)
        A(f"s_branch {FIN}")
        if role == "p":
            for t in range(2):
                A.label(f"L_{name}_ramp{t}")
                for g in kv_dma(t + 1):
                    for l in g: A(l)
                A(f"s_branch L_{name}_rampback{t}")
        else:
            out()

    fast_loop("p")
    A.label(f"L_{name}_fb")
    A("s_cmp_lg_u32 s44, 3")
    A(f"s_cbranch_scc1 L_{name}_fb2")
    A(f"s_mov_b32 s33, {128 * 128}")
    A(f"buffer_load_dwordx4 {V(vt + 4, 4)}, v{vL}, s[{SRD_F}:{SRD_F+3}], s33 offen sc1")
    A(f"s_branch L_{name}_fbback")
    A.label(f"L_{name}_fb2")
    A("s_cmp_lg_u32 s44, 2")
    A(f"s_cbranch_scc1 L_{name}_fbback")
    FB = vt + 4
    for i in range(4):
        A(f"v_xor_b32 v{FB + i}, s{sNONCE}, v{FB + i}")
    A(f"v_or3_b32 v{FB}, v{FB}, v{FB+1}, v{FB+2}")
    A(f"v_or_b32 v{FB}, v{FB}, v{FB+3}")
    A(f"v_cmp_ne_u32 vcc, 0, v{FB}")
    A("s_nop 4")
    A(f"s_cbranch_vccnz L_{name}_fbback")
    A(f"s_mov_b32 s{sKV0}, 1")
    kv0_and_norms("early")
    A(f"s_branch L_{name}_fbback")
    A.label(f"L_{name}_sstart")
    fast_loop("s")

    A.label(SLOW)
    A(f"s_cmp_lg_u32 s{sHalf}, 0")
    A(f"s_cbranch_scc1 L_{name}_s12")
    for c in (1, 2):
        for g in kv_dma(c):
            for l in g: A(l)
    A.label(f"L_{name}_s12")
    for X in range(2):
        A(f"v_mov_b32 v{MX[X]}, 0xff7fffff")
    A("s_mov_b32 s44, 8")
    A(f"s_mov_b32 s45, {3 * CH}")
    OUTER, INNER = f"L_{name}_so", f"L_{name}_si"
    A.loop_begin(OUTER)
    A(f"v_mov_b32 v{vt+6}, v{vL}")
    A("s_mov_b32 s46, 4")
    A.loop_begin(INNER)
    for l in k_reads(0, vt + 6, 0) + v_reads(0, vt + 6, 0): A(l)
    A("s_waitcnt lgkmcnt(0)")
    for X in range(2):
        s, p = Sx[X], P[X]
        for l in s_mfma(X, 0): A(l)
        A("s_nop 7"); A("s_nop 4")
        A(f"v_max_f32 v{vt}, v{s}, v{s+1}")
        for i in range(2, 16, 2):
            A(f"v_max3_f32 v{vt}, v{vt}, v{s+i}, v{s+i+1}")
        A(f"v_mov_b32 v{vt+1}, v{vt}")
        A("s_nop 1")
        A(f"v_permlane32_swap_b32 v{vt}, v{vt+1}")
        A(f"v_max3_f32 v{vt}, v{vt}, v{vt+1}, v{MX[X]}")
        A(f"v_sub_f32 v{vt+1}, v{MX[X]}, v{vt}")
        A(f"v_exp_f32 v{vt+1}, v{vt+1}")
        A(f"v_mov_b32 v{MX[X]}, v{vt}")
        for i in range(16):
            A(f"v_sub_f32 v{s+i}, v{s+i}, v{vt}")
        for i in range(16):
            A(f"v_exp_f32 v{s+i}, v{s+i}")
        for i in range(16):
            A(f"v_mul_f32 v{O[X]+i}, v{O[X]+i}, v{vt+1}")
        for i in range(4):
            A(f"v_mul_f32 v{L[X]+i}, v{L[X]+i}, v{vt+1}")
        for j in range(8):
            A(f"v_cvt_pk_bf16_f32 v{p+j}, v{s+2*j}, v{s+2*j+1}")
        A("s_nop 1")
        for l in pv_mfma(X, 0): A(l)
        A("s_nop 7"); A("s_nop 4")
    A(f"v_add_u32 v{vt+6}, 4096, v{vt+6}")
    A("s_sub_u32 s46, s46, 1")
    A("s_cmp_lg_u32 s46, 0")
    A(f"s_cbranch_scc1 {INNER}")
    A.loop_end()
    A(f"s_cmp_lg_u32 s{sHalf}, 0")
    A(f"s_cbranch_scc1 L_{name}_sside")
    A("s_waitcnt vmcnt(8)")
    A("s_barrier")
    for g in kv_dma("s45"):
        for l in g: A(l)
    A(f"s_add_u32 s45, s45, {CH}")
    A(f"s_and_b32 s45, s45, {RMASK}")
    A(f"s_branch L_{name}_snext")
    A.label(f"L_{name}_sside")
    A("s_barrier")
    for g in prefetch_step(opts, name):
        for l in g: A(l)
    out_s = once_jobs(A, opts, name, "s", sW, vt)
    A.label(f"L_{name}_snext")
    A(f"v_add_u32 v{vL}, {CH}, v{vL}")
    A(f"v_and_b32 v{vL}, {RMASK}, v{vL}")
    A("s_sub_u32 s44, s44, 1")
    A("s_cmp_lg_u32 s44, 0")
    A(f"s_cbranch_scc1 {OUTER}")
    A.loop_end()
    A(f"s_branch L_{name}_sdone")
    out_s()
    A.label(f"L_{name}_sdone")
    A(f"v_lshlrev_b32 v{vt}, 3, v0")
    A(f"s_lshl_b32 s33, s{sW}, 9")
    A(f"s_add_u32 s33, s33, {NRM_LDS + 64}")
    A(f"v_add_u32 v{vt+1}, s33, v{vt}")
    A(f"ds_write_b64 v{vt+1}, {V(MX[0], 2)}")
    A(f"s_xor_b32 s34, s{sW}, 4")
    A(f"s_lshl_b32 s34, s34, 9")
    A(f"s_add_u32 s34, s34, {NRM_LDS + 64}")
    A(f"v_add_u32 v{vt+1}, s34, v{vt}")
    A("s_waitcnt lgkmcnt(0)")
    A("s_barrier")
    A(f"ds_read_b64 {V(vt + 2, 2)}, v{vt+1}")
    A("s_waitcnt lgkmcnt(0)")
    for X in range(2):
        A(f"v_max_f32 v{vt+2+X}, v{vt+2+X}, v{MX[X]}")
        A(f"v_sub_f32 v{vt+2+X}, v{MX[X]}, v{vt+2+X}")
        A(f"v_exp_f32 v{vt+2+X}, v{vt+2+X}")
        A("s_nop 0")
        for i in range(16):
            A(f"v_mul_f32 v{O[X]+i}, v{O[X]+i}, v{vt+2+X}")
        A(f"v_mul_f32 v{L[X]}, v{L[X]}, v{vt+2+X}")

    A.label(FIN)
    stamp(A, opts, 2)
    xstamp(A, opts, "loopend")
    code_prefetch(A, opts, name, opts.get("next"), opts.get("next_bytes", 8192), sW, vt + 4, 46)
    A(f"v_lshlrev_b32 v{vt}, 4, v0")
    A(f"s_lshl_b32 s33, s{sW}, 12")
    A(f"v_add_u32 v{vt+1}, s33, v{vt}")
    A(f"s_xor_b32 s34, s{sW}, 4")
    A(f"s_lshl_b32 s35, s34, 12")
    A(f"v_add_u32 v{vt+2}, s35, v{vt}")
    A(f"v_lshlrev_b32 v{vt}, 2, v0")
    A(f"s_lshl_b32 s33, s{sW}, 8")
    A(f"s_add_u32 s33, s33, {QX}")
    A(f"v_add_u32 v{vt+3}, s33, v{vt}")
    A(f"s_lshl_b32 s34, s34, 8")
    A(f"s_add_u32 s34, s34, {QX}")
    A(f"v_add_u32 v{vt+4}, s34, v{vt}")
    A("s_nop 3")
    KEEPB = f"L_{name}_keepb"
    JOIN = f"L_{name}_join"
    A(f"s_cmp_lg_u32 s{sHalf}, 0")
    A(f"s_cbranch_scc1 {KEEPB}")
    for i in range(4):
        A(f"ds_write_b128 v{vt+1}, {V(O[1] + 4*i, 4)} offset:{i * 1024}")
    A(f"ds_write_b32 v{vt+3}, v{L[1]}")
    A(f"s_branch {JOIN}")
    A.label(KEEPB)
    for i in range(4):
        A(f"ds_write_b128 v{vt+1}, {V(O[0] + 4*i, 4)} offset:{i * 1024}")
    A(f"ds_write_b32 v{vt+3}, v{L[0]}")
    A("s_waitcnt lgkmcnt(0)")
    for i in range(0, 16, 2):
        A(f"v_mov_b64 v[{O[0]+i}:{O[0]+i+1}], v[{O[1]+i}:{O[1]+i+1}]")
    A(f"v_mov_b32 v{L[0]}, v{L[1]}")
    A.label(JOIN)
    A("s_waitcnt lgkmcnt(0)")
    A("s_barrier")
    xstamp(A, opts, "xbar")
    for i in range(4):
        A(f"ds_read_b128 {V(O[1] + 4*i, 4)}, v{vt+2} offset:{i * 1024}")
    A(f"ds_read_b32 v{L[1]}, v{vt+4}")
    A(f"v_bfe_u32 v{vt}, v0, 4, 1")
    A(f"v_lshlrev_b32 v{vt+1}, 11, v{vt}")
    A(f"v_lshrrev_b32 v{vt}, 5, v0")
    A(f"v_lshl_add_u32 v{vt+1}, v{vt}, 8, v{vt+1}")
    A(f"v_and_b32 v{vt}, 15, v0")
    A(f"v_lshl_add_u32 v{vt+1}, v{vt}, 4, v{vt+1}")
    A(f"s_lshr_b32 s33, s{sH}, 1")
    A(f"s_lshl_b32 s33, s33, 18")
    A(f"s_and_b32 s34, s{sH}, 1")
    A(f"s_lshl_b32 s34, s34, 10")
    A(f"s_add_u32 s33, s33, s34")
    A(f"s_lshl_b32 s34, s{sTB}, 13")
    A(f"s_add_u32 s33, s33, s34")
    A(f"s_lshl_b32 s34, s{sHalf}, 12")
    A(f"s_add_u32 s33, s33, s34")
    A("s_waitcnt lgkmcnt(0)")
    A(f"v_add_f32 v{L[0]}, v{L[0]}, v{L[1]}")
    A(f"v_rcp_f32 v{vt+2}, v{L[0]}")
    for i in range(16):
        A(f"v_add_f32 v{O[0]+i}, v{O[0]+i}, v{O[1]+i}")
    for i in range(16):
        A(f"v_mul_f32 v{O[0]+i}, v{O[0]+i}, v{vt+2}")
    for j in range(8):
        A(f"v_cvt_pk_bf16_f32 v{P[0]+j}, v{O[0]+2*j}, v{O[0]+2*j+1}")
    for c in range(2):
        A(f"buffer_store_dwordx4 {V(P[0] + 4*c, 4)}, v{vt+1}, s[{SRD_O}:{SRD_O+3}], s33 offen offset:{c * 512}")
    xstamp(A, opts, "stored")
    if opts.get("prof"):
        A("s_waitcnt vmcnt(0)")
        stamp(A, opts, 3)
        prof_store(A, opts, 4, opts.get("kidx", 0))
    A.label(END)
    A("s_endpgm")
    return kernel_desc(name, NV, 0, 102)
```

```python
from gen_common import *
import gen_gs, gen_k4, gen_k5b

K345_LDS = 57344 * 2


def add_flag(A, l0, flag):
    for i in range(l0, len(A.lines)):
        t = A.lines[i].strip()
        if t.startswith("buffer_store") and flag not in t:
            A.lines[i] = A.lines[i] + " " + flag


def gen_k345(A, name="k3_ffn_kernel", opts=None):
    opts = dict(opts or {})
    base = {k: v for k, v in opts.items() if k in ("prof", "kidx", "st", "no_cpf")}
    if not opts.get("st"):
        base["st"] = ["_none_"]
    kernel_begin(A, name)
    END = f"L_{name}_end"
    sW = 24
    A("s_cmp_ge_u32 s2, 256")
    A(f"s_cbranch_scc1 {END}")
    stamp(A, opts, 0)
    A(f"s_load_dwordx2 s[4:5], s[0:1], {KA_WS}")
    A(f"s_load_dwordx2 s[80:81], s[0:1], {KA_WO}")
    A(f"s_load_dwordx2 s[82:83], s[0:1], {KA_X}")
    A(f"s_load_dwordx4 s[84:87], s[0:1], {KA_WG}")
    A(f"s_load_dwordx2 s[88:89], s[0:1], {KA_OUT}")
    A("v_lshrrev_b32 v10, 6, v0")
    A("v_and_b32 v0, 63, v0")
    A("s_nop 0")
    A(f"v_readfirstlane_b32 s{sW}, v10")

    ATOM = opts.get("atomic", 0)

    def publish(tag, own_sgpr, region_own):
        xstamp(A, opts, f"h{tag}pre")
        A("s_waitcnt vmcnt(0)")
        xstamp(A, opts, f"h{tag}drain")
        A("s_barrier")
        SK = f"L_{name}_pub{tag}"
        A(f"s_cmp_lg_u32 s{sW}, 0")
        A(f"s_cbranch_scc1 {SK}")
        A(f"s_add_u32 s46, s4, {region_own}")
        A("s_addc_u32 s47, s5, 0")
        A("v_mov_b32 v13, 1")
        if ATOM:
            A("v_lshlrev_b32 v12, 7, v0")
            A(f"v_add_u32 v12, s{own_sgpr}, v12")
            A("s_mov_b64 exec, 15")
            A("global_atomic_add v12, v13, s[46:47] sc1")
            A("s_mov_b64 exec, -1")
        else:
            A(f"v_mov_b32 v12, s{own_sgpr}")
            A("global_store_dword v12, v13, s[46:47] sc1")
        A.label(SK)

    def await_(tag, region_poll, base_calc, nl=32):
        SK, L, G = f"L_{name}_h{tag}", f"L_{name}_p{tag}", f"L_{name}_g{tag}"
        A(f"s_cmp_lg_u32 s{sW}, 0")
        A(f"s_cbranch_scc1 {SK}")
        base_calc()
        A(f"s_add_u32 s46, s4, {region_poll}")
        A("s_addc_u32 s47, s5, 0")
        A("s_mov_b32 s37, 0x8000")
        if ATOM:
            A("s_bfe_u32 s34, s2, 0x20003")
            A("s_lshl_b32 s34, s34, 7")
            A("s_add_u32 s33, s33, s34")
            A("v_mov_b32 v12, s33")
            A.label(L)
            A("v_mov_b32 v14, 0")
            A("s_mov_b64 exec, 1")
            A("global_atomic_add v13, v12, v14, s[46:47] sc0 sc1")
            A("s_mov_b64 exec, -1")
            A("s_waitcnt vmcnt(0)")
            A("v_readfirstlane_b32 s34, v13")
            A("s_sub_u32 s37, s37, 1")
            A("s_cmp_eq_u32 s37, 0")
            A(f"s_cbranch_scc1 {G}")
            A(f"s_cmp_lt_u32 s34, {nl}")
            A(f"s_cbranch_scc1 {L}")
        else:
            A("v_lshlrev_b32 v12, 7, v0")
            A("v_add_u32 v12, s33, v12")
            A.label(L)
            A(f"s_mov_b32 exec_lo, {hex((1 << nl) - 1)}"); A("s_mov_b32 exec_hi, 0")
            A("global_load_dword v13, v12, s[46:47] sc1")
            A("s_waitcnt vmcnt(0)")
            A("v_cmp_ne_u32 vcc, 1, v13")
            A("s_mov_b64 exec, -1")
            A("s_sub_u32 s37, s37, 1")
            A("s_cmp_eq_u32 s37, 0")
            A(f"s_cbranch_scc1 {G}")
            A("s_nop 3")
            A(f"s_cbranch_vccnz {L}")
        A.label(G)
        A.label(SK)
        A("s_waitcnt vmcnt(0)")
        A("s_barrier")

    o3 = dict(dict(base, emb=1, next=f"L_{name}_k4", next_bytes=10240, no_l2w=1), **opts.get("k3", {}))
    l0 = len(A.lines)
    gen_gs.gen_k3(A, name + "_3", o3)
    add_flag(A, l0, "sc1")
    xstamp(A, opts, "k3end")
    if ATOM:
        A(f"s_lshr_b32 s90, s{gen_gs.sTB}, 1")
        A("s_lshl_b32 s90, s90, 9")
    else:
        A(f"s_lshl_b32 s90, s{gen_gs.sTB}, 4")
        A(f"s_add_u32 s90, s90, s{gen_gs.sCB}")
        A("s_lshl_b32 s90, s90, 7")

    A.label(f"L_{name}_k4")

    def h4(sTB4):
        await_("4", WS_F3, lambda: A(f"s_lshl_b32 s33, s{sTB4}, {9 if ATOM else 12}"))
        xstamp(A, opts, "got3")
    o4 = dict(dict(base, emb=1, lds_base=57344, publish=lambda: publish("4", 90, WS_F3), handoff=h4, next=f"L_{name}_k5", next_bytes=5120,
                   l2w_emb=1), **opts.get("k4", {}))
    l0 = len(A.lines)
    gen_k4.gen_k4(A, name + "_4", o4)
    add_flag(A, l0, "sc1")
    xstamp(A, opts, "k4end")
    if ATOM:
        A("s_lshl_b32 s91, s25, 1")
        A("s_lshr_b32 s33, s26, 4")
        A("s_add_u32 s91, s91, s33")
        A("s_lshl_b32 s91, s91, 9")
    else:
        A("s_lshl_b32 s91, s25, 5")
        A("s_add_u32 s91, s91, s26")
        A("s_lshl_b32 s91, s91, 7")

    A.label(f"L_{name}_k5")

    if opts.get("split", 1):
        def h5(sTB5, sKH5):
            def bc():
                A(f"s_lshr_b32 s33, s{sTB5}, 1")
                if ATOM:
                    A("s_lshl_b32 s33, s33, 1")
                    A(f"s_add_u32 s33, s33, s{sKH5}")
                    A("s_lshl_b32 s33, s33, 9")
                else:
                    A("s_lshl_b32 s33, s33, 12")
                    A(f"s_lshl_b32 s34, s{sKH5}, 11")
                    A("s_add_u32 s33, s33, s34")
            await_("5", WS_F4, bc, 16)
            xstamp(A, opts, "got4")
        A("s_mov_b64 s[42:43], s[88:89]")
        o5 = dict(base, publish=lambda: publish("5", 91, WS_F4), handoff=h5)
        gen_k5b.gen_k5b(A, name + "_5", o5)
    else:
        def h5():
            def bc():
                A(f"s_lshr_b32 s33, s{gen_gs.sTB}, 1")
                A("s_lshl_b32 s33, s33, 12")
            await_("5", WS_F4, bc)
            xstamp(A, opts, "got4")
        o5 = dict(base, emb=1, U=4, publish=lambda: publish("5", 91, WS_F4), handoff=h5, **opts.get("k5", {}))
        gen_gs.gen_k5(A, name + "_5", o5)
    if opts.get("prof"):
        A("s_waitcnt vmcnt(0)")
        stamp(A, opts, 3)
        prof_store(A, opts, 4, opts.get("kidx", 0))
    A.label(END)
    A("s_endpgm")
    return kernel_desc(name, 256, 176, 102)
```

```python
from gen_common import *
import math

C0 = -2.0 * math.sqrt(2.0 / math.pi) * math.log2(math.e)
C1 = C0 * 0.044715


def gen_k4(A, name="k4_gateup_kernel", opts=None):
    opts = opts or {}
    emb = opts.get("emb")
    LB = opts.get("lds_base", 0)
    END = f"L_{name}_end"
    if not emb:
        kernel_begin(A, name)
    vT0, vT1 = 1, 2
    vWo = 3
    vWa = 10
    vt = 12
    ACC = 32
    R = [0, 56]
    TS = 112
    SLOT = 28672
    sW, sTB, sJB = 24, 25, 26
    sToff, sWoff, sM0b = 27, 28, 31
    SRD_T, SRD_W, SRD_O, SRD_V = 8, 12, 16, 20

    def acc(wf, tl):
        return V(ACC + (wf * 4 + tl) * 4, 4)

    if emb:
        A("s_mov_b64 s[40:41], s[84:85]")
        A("s_mov_b64 s[42:43], s[86:87]")
        A(f"s_and_b32 s3, s2, 7")
    else:
        A(f"s_cmp_ge_u32 s2, 256")
        A(f"s_cbranch_scc1 {END}")
        stamp(A, opts, 0)
        A(f"s_load_dwordx2 s[4:5], s[0:1], {KA_WS}")
        A(f"s_load_dwordx4 s[40:43], s[0:1], {KA_WG}")
        A(f"v_lshrrev_b32 v{vt}, 6, v0")
        A(f"v_and_b32 v0, 63, v0")
        A(f"s_and_b32 s3, s2, 7")
        A(f"v_readfirstlane_b32 s{sW}, v{vt}")
    A(f"s_lshr_b32 s30, s2, 3")
    if opts.get("map", "4x8") == "4x8":
        A(f"s_and_b32 s{sTB}, s3, 1")
        A(f"s_lshl_b32 s{sTB}, s{sTB}, 2")
        A(f"s_and_b32 s33, s30, 3")
        A(f"s_add_u32 s{sTB}, s{sTB}, s33")
        A(f"s_lshr_b32 s{sJB}, s3, 1")
        A(f"s_lshl_b32 s{sJB}, s{sJB}, 3")
        A(f"s_lshr_b32 s33, s30, 2")
        A(f"s_add_u32 s{sJB}, s{sJB}, s33")
    else:
        A(f"s_lshr_b32 s{sTB}, s3, 1")
        A(f"s_lshl_b32 s{sTB}, s{sTB}, 1")
        A(f"s_and_b32 s33, s30, 1")
        A(f"s_add_u32 s{sTB}, s{sTB}, s33")
        A(f"s_and_b32 s{sJB}, s3, 1")
        A(f"s_lshl_b32 s{sJB}, s{sJB}, 4")
        A(f"s_lshr_b32 s33, s30, 1")
        A(f"s_add_u32 s{sJB}, s{sJB}, s33")
    A(f"s_lshl_b32 s33, s{sTB}, 2")
    A(f"s_add_u32 s33, s33, s{sW}")
    A(f"s_lshl_b32 s33, s33, 13")
    A(f"v_lshlrev_b32 v{vT0}, 4, v0")
    A(f"v_add_u32 v{vT0}, s33, v{vT0}")
    A(f"v_add_u32 v{vT1}, 0x1000, v{vT0}")
    A(f"s_waitcnt lgkmcnt(0)")
    xstamp(A, opts, "karg")
    srd(A, SRD_T, 4, WS_HC, 4 * MB)
    srd(A, SRD_V, 4, WS_VP, 2048 * 64)
    A(f"s_cmp_lt_u32 s{sW}, 2")
    A(f"s_cselect_b32 s6, s40, s42")
    A(f"s_cselect_b32 s7, s41, s43")
    srd(A, SRD_W, 6, 0, 1024 * 7168)
    srd(A, SRD_O, 4, WS_ACT, ACT_BYTES)

    def tr_reads(rbuf, vbase, slot, s2):
        out = []
        for F in range(7):
            for mat in range(2):
                wf = mat * 7 + F
                for i in range(2):
                    off = slot * SLOT + mat * 14336 + (32 * s2 + 16 * i) * 224 + F * 32
                    out.append(f"ds_read_b64_tr_b16 {Ac(R[rbuf] + wf * 4 + 2 * i, 2)}, v{vbase} offset:{off}")
        return out

    TRR = tr_reads

    def t_load(u, soff):
        out = []
        for tl in range(4):
            dst = Ac(TS + (u % 4) * 16 + tl * 4, 4)
            vo = vT0 if tl < 2 else vT1
            out.append(f"buffer_load_dwordx4 {dst}, v{vo}, s[{SRD_T}:{SRD_T+3}], {soff} offen offset:{(tl % 2) * 2048 + (u % 2) * 1024}")
        return out

    def w_dma(slot, soff):
        out = []
        for m in range(7):
            grp = []
            if m % 4 == 0:
                grp.append(f"s_add_u32 m0, s{sM0b}, {slot * SLOT + (m // 4) * 4096}")
                grp.append("s_nop 0")
            grp.append(f"buffer_load_dwordx4 v{vWo + m}, s[{SRD_W}:{SRD_W+3}], {soff} offen offset:{(m % 4) * 1024} lds")
            out.append(grp)
        return out

    if opts.get("k5s"):
        A(f"s_add_u32 s46, s4, {WS_FL}")
        A(f"s_addc_u32 s47, s5, 0")
        A(f"s_lshl_b32 s33, s2, 10")
        A(f"v_lshlrev_b32 v{ACC}, 7, v0")
        A(f"v_add_u32 v{ACC}, s33, v{ACC}")
        A(f"v_mov_b32 v{ACC+1}, 0")
        A("s_mov_b64 exec, 0xff")
        A(f"global_store_dword v{ACC}, v{ACC+1}, s[46:47]")
        A("s_mov_b64 exec, -1")

    def first_token_loads():
        A(f"s_lshl_b32 s33, s{sTB}, 2")
        A(f"s_add_u32 s33, s33, s{sW}")
        A(f"s_lshl_b32 s33, s33, 12")
        A(f"v_lshlrev_b32 v{ACC}, 4, v0")
        for i in range(4):
            A(f"buffer_load_dwordx4 {V(vt + 4 * i, 4)}, v{ACC}, s[{SRD_V}:{SRD_V+3}], s33 offen offset:{1024 * i}")
        A(f"s_mov_b32 s{sToff}, 0")
        for l in t_load(0, f"s{sToff}"):
            A(l)

    if not emb:
        first_token_loads()
    A(f"s_and_b32 s34, s{sJB}, 1")
    A(f"s_lshl_b32 s34, s34, 1")
    A(f"s_mul_i32 s35, s{sJB}, 224")
    A(f"s_and_b32 s36, s{sW}, 1")
    A(f"s_mul_i32 s36, s36, {32 * 7168}")
    A(f"s_add_u32 s35, s35, s36")
    A(f"s_movk_i32 s37, 4682")
    A(f"s_movk_i32 s38, 7168")
    A(f"s_mul_i32 s{sM0b}, s{sW}, 7168")
    if LB: A(f"s_add_u32 s{sM0b}, s{sM0b}, {LB}")
    A(f"s_mov_b32 s{sWoff}, 0")
    w0 = w_dma(0, f"s{sWoff}")
    t0 = ACC + 4
    for m in range(7):
        d = vWo + m
        A(f"v_add_u32 v{t0}, {64 * m}, v0")
        A(f"v_mul_u32_u24 v{t0+1}, s37, v{t0}")
        A(f"v_lshrrev_b32 v{t0+1}, 16, v{t0+1}")
        A(f"v_mul_u32_u24 v{t0+2}, 14, v{t0+1}")
        A(f"v_sub_u32 v{t0}, v{t0}, v{t0+2}")
        A(f"v_add_u32 v{t0}, s34, v{t0}")
        A(f"v_subrev_u32 v{t0+2}, 14, v{t0}")
        A(f"v_min_u32 v{t0}, v{t0}, v{t0+2}")
        A(f"v_mul_u32_u24 v{t0+1}, s38, v{t0+1}")
        A(f"v_lshl_add_u32 v{d}, v{t0}, 4, v{t0+1}")
        A(f"s_sub_u32 s39, s35, {(m % 4) * 1024}")
        A(f"v_add_u32 v{d}, s39, v{d}")
        if not emb:
            for l in w0[m]: A(l)

    NIT = 8

    def seq(tr, it):
        if it == -1:
            for t, n in ((("FL", 0), 1), (("VP", 0), 4), (("T", 0), 4), (("W", 0), 7), (("W", 1), 7), (("T", 1), 4)):
                for _ in range(n): tr.issue(t)
            return None
        ns = []
        for s in (2 * it, 2 * it + 1):
            ns.append(tr.wait_for(lambda t: t == ("T", 2 * s)))
            for _ in range(4): tr.issue(("T", 2 * s + 2))
            ns.append(tr.wait_for(lambda t: t == ("T", 2 * s + 1) or t == ("W", s + 1)))
            for _ in range(7): tr.issue(("W", s + 2))
            for _ in range(4): tr.issue(("T", 2 * s + 3))
        return ns

    waits = resolve_waits(seq, NIT)
    waits = [63 if w is None else w for w in waits]
    if emb:
        waits = [11, 4, 11, 4]
        opts["publish"]()
        for g in w0:
            for l in g: A(l)
        A(f"s_add_u32 s{sWoff}, s{sWoff}, {64 * 7168}")
        if not opts.get("w1late"):
            for g in w_dma(1, f"s{sWoff}"):
                for l in g: A(l)
            A(f"s_add_u32 s{sWoff}, s{sWoff}, {64 * 7168}")
        opts["handoff"](sTB)
        first_token_loads()
        if opts.get("w1late"):
            for g in w_dma(1, f"s{sWoff}"):
                for l in g: A(l)
            A(f"s_add_u32 s{sWoff}, s{sWoff}, {64 * 7168}")
        for l in t_load(1, f"s{sToff}"): A(l)
        A(f"s_mov_b32 s{sToff}, {STAGE_BYTES}")

    xstamp(A, opts, "issued")
    A(f"v_lshrrev_b32 v{ACC}, 2, v0")
    A(f"v_mul_u32_u24 v{vWa}, 224, v{ACC}")
    A(f"v_and_b32 v{ACC}, 3, v0")
    A(f"v_lshl_add_u32 v{vWa}, v{ACC}, 3, v{vWa}")
    if LB: A(f"v_add_u32 v{vWa}, {LB}, v{vWa}")
    if emb:
        for l in TRR(0, vWa, 0, 0): A(l)
    for i in range(0, 224, 2):
        A(f"v_mov_b64 v[{ACC + i}:{ACC + i + 1}], 0")
    cAB = 20
    cR = 28
    A(f"s_waitcnt vmcnt({(15 if opts.get('w1late') else 8) if emb else 11})")
    A(f"s_mov_b32 s45, {f32hex(1.0 / 1024)}")
    for tl in range(4):
        b = vt + 4 * tl
        A(f"v_add_f32 v{b}, v{b}, v{b+1}")
        A(f"v_add_f32 v{b+2}, v{b+2}, v{b+3}")
    for tl in range(4):
        b = vt + 4 * tl
        A(f"v_add_f32 v{b}, v{b}, v{b+2}")
    for pm in ("[1,0,3,2]", "[2,3,0,1]"):
        A("s_nop 1")
        for tl in range(4):
            b = vt + 4 * tl
            A(f"v_add_f32_dpp v{b}, v{b}, v{b} quad_perm:{pm} row_mask:0xf bank_mask:0xf")
    A(f"v_and_b32 v{vt+1}, 15, v0")
    A(f"v_lshlrev_b32 v{vt+1}, 4, v{vt+1}")
    A(f"v_mov_b32 v{vt+2}, {f32hex(EPS)}")
    for tl in range(4):
        A(f"ds_bpermute_b32 v{cR + tl}, v{vt+1}, v{vt + 4 * tl}")
    A(f"s_waitcnt lgkmcnt(0)")
    for tl in range(4):
        A(f"v_fma_f32 v{cR + tl}, v{cR + tl}, s45, v{vt+2}")
    for tl in range(4):
        A(f"v_rsq_f32 v{vt + 4 + tl}, v{cR + tl}")
    for tl in range(4):
        r = vt + 4 + tl
        A(f"v_mul_f32 v{cAB + 2 * tl}, {f32hex(C0)}, v{r}")
        A(f"v_mul_f32 v{cAB + 2 * tl + 1}, v{r}, v{r}")
        A(f"v_mul_f32 v{cAB + 2 * tl + 1}, v{cAB + 2 * tl + 1}, v{r}")
        A(f"v_mul_f32 v{cAB + 2 * tl + 1}, {f32hex(C1)}, v{cAB + 2 * tl + 1}")

    if emb:
        A(f"s_waitcnt vmcnt({11 if opts.get('w1late') else 4})")
    else:
        xstamp(A, opts, "prewait")
        A(f"s_waitcnt vmcnt(0)")
        xstamp(A, opts, "w0")
        A(f"s_barrier")
        rd0 = tr_reads(0, vWa, 0, 0)
        A(f"s_add_u32 s{sWoff}, s{sWoff}, {64 * 7168}")
        g1 = w_dma(1, f"s{sWoff}")
        for m in range(7):
            for l in g1[m]: A(l)
            for l in rd0[4 * m: 4 * m + 4]: A(l)
        A(f"s_add_u32 s{sWoff}, s{sWoff}, {64 * 7168}")
        for l in t_load(1, f"s{sToff}"): A(l)
        A(f"s_mov_b32 s{sToff}, {STAGE_BYTES}")

    def step_mfmas(rbuf, tslot):
        out = []
        order = opts.get("order", "snake")
        if order == "F":
            seq_ = [(mat * 7 + F, tl) for F in range(7) for mat in range(2) for tl in range(4)]
        elif order == "tl":
            seq_ = [(mat * 7 + F, tl) for tl in range(4) for F in range(7) for mat in range(2)]
        elif order == "2x2":
            seq_ = []
            for F in range(7):
                for tp in range(2):
                    a, b = F, 7 + F
                    seq_ += [(a, 2 * tp), (a, 2 * tp + 1), (b, 2 * tp + 1), (b, 2 * tp)]
        elif order == "snake":
            seq_ = []
            for k, wf in enumerate([mat * 7 + F for F in range(7) for mat in range(2)]):
                seq_ += [(wf, tl) for tl in (range(4) if k % 2 == 0 else range(3, -1, -1))]
        for wf, tl in seq_:
            out.append(mfma16(acc(wf, tl), Ac(R[rbuf] + wf * 4, 4), Ac(TS + tslot * 16 + tl * 4, 4)))
        return out

    LOOP = f"L_{name}_loop"
    stamp(A, opts, 1)
    xstamp(A, opts, "k4loop")
    A(f"s_mov_b32 s44, {NIT}")
    A.loop_begin(LOOP)
    wi = 0
    for sp in range(2):
        u = 2 * sp
        A(f"s_waitcnt vmcnt({waits[wi]}) lgkmcnt(0)"); wi += 1
        f = {}
        P = opts.get("sched", {})
        spread(f, tr_reads(1, vWa, sp, 1), P.get("ra0", 0), P.get("ra1", 44))
        spread(f, t_load(u + 2, f"s{sToff}"), P.get("ta0", 2), P.get("ta1", 24))
        main = step_mfmas(0, u % 4)
        for l in interleave(main, f): A(l)
        A(f"s_waitcnt vmcnt({waits[wi]}) lgkmcnt(0)"); wi += 1
        A(f"s_barrier")
        f = {}
        spread(f, tr_reads(0, vWa, 1 - sp, 0), P.get("rb0", 0), P.get("rb1", 44))
        spread(f, w_dma(sp, f"s{sWoff}"), P.get("wb0", 0), P.get("wb1", 28))
        spread(f, t_load(u + 3, f"s{sToff}"), P.get("tb0", 30), P.get("tb1", 46))
        f.setdefault(48, []).append(f"s_add_u32 s{sWoff}, s{sWoff}, {64 * 7168}")
        f[48].append(f"s_add_u32 s{sToff}, s{sToff}, {STAGE_BYTES}")
        if sp == 1:
            f.setdefault(54, []).append(f"s_sub_u32 s44, s44, 1")
            f[54].append(f"s_cmp_lg_u32 s44, 0")
        main = step_mfmas(1, (u + 1) % 4)
        for l in interleave(main, f): A(l)
    A(f"s_cbranch_scc1 {LOOP}")
    A.loop_end()

    stamp(A, opts, 2)
    xstamp(A, opts, "k4loopend")
    A(f"s_waitcnt lgkmcnt(0)")
    if (not opts.get("no_l2w") and not emb) or opts.get("l2w_emb"):
        A(f"s_lshr_b32 s33, s2, 3")
        A(f"s_lshl_b32 s33, s33, 2")
        A(f"s_add_u32 s33, s33, s{sW}")
        if opts.get("k5s") or opts.get("l2w_emb"):
            A(f"s_lshr_b32 s34, s33, 3")
            A(f"s_mul_i32 s34, s34, {56 * 8192}")
            A(f"s_and_b32 s35, s2, 1")
            A(f"s_mul_i32 s35, s35, {28 * 8192}")
            A(f"s_add_u32 s34, s34, s35")
            A(f"s_and_b32 s33, s33, 7")
            A(f"s_lshl_b32 s33, s33, 12")
            mask = "0xffffffff"
        else:
            A(f"s_lshr_b32 s34, s33, 4")
            A(f"s_and_b32 s35, s2, 1")
            A(f"s_lshl_b32 s35, s35, 3")
            A(f"s_add_u32 s34, s34, s35")
            A(f"s_mul_i32 s34, s34, {56 * 8192}")
            A(f"s_and_b32 s33, s33, 15")
            A(f"s_lshl_b32 s33, s33, 11")
            mask = "0xffff"
        A(f"s_add_u32 s33, s33, s34")
        A(f"s_add_u32 s33, s33, {WS_WD}")
        A(f"v_lshlrev_b32 v12, 7, v0")
        A(f"v_add_u32 v12, s33, v12")
        A(f"s_mov_b32 exec_lo, {mask}"); A("s_mov_b32 exec_hi, 0")
        A(f"global_load_dword v13, v12, s[4:5]")
        A("s_mov_b64 exec, -1")
    code_prefetch(A, opts, name, opts.get("next"), opts.get("next_bytes", 8192), sW, 14, 46)
    A(f"s_and_b32 s34, s{sJB}, 1")
    A(f"s_mul_i32 s35, s{sJB}, 7")
    A(f"s_add_u32 s35, s35, s34")
    A(f"s_lshr_b32 s35, s35, 1")
    for P in range(4):
        if P < 3:
            A(f"s_add_u32 s36, s35, {P}")
        else:
            A(f"s_lshl_b32 s37, s34, 2")
            A(f"s_add_u32 s36, s35, 3")
            A(f"s_sub_u32 s36, s36, s37")
        A(f"s_lshr_b32 s37, s36, 1")
        A(f"s_lshl_b32 s37, s37, 18")
        A(f"s_and_b32 s36, s36, 1")
        A(f"s_lshl_b32 s36, s36, 10")
        A(f"s_add_u32 s{48 + P}, s36, s37")
    A(f"s_lshl_b32 s34, s34, 3")
    A(f"s_add_u32 s51, s51, s34")

    xstamp(A, opts, "epi1")
    TA, TB = 4, 6

    def glu(F, tl, h, T, dst):
        a = V(acc(F, tl).base + 2 * h, 2)
        u = V(acc(7 + F, tl).base + 2 * h, 2)
        AB = V(cAB + 2 * tl, 2)
        Rr = cR + tl
        Rp = V(Rr & ~1, 2)
        sel = "op_sel:[0,1,1] op_sel_hi:[1,1,1]" if Rr & 1 else "op_sel:[0,0,0] op_sel_hi:[1,0,0]"
        t = V(T, 2)
        return [
            f"v_pk_mul_f32 {t}, {a}, {a}",
            f"v_pk_fma_f32 {t}, {t}, {AB}, {AB} op_sel:[0,1,0] op_sel_hi:[1,1,0]",
            f"v_pk_mul_f32 {t}, {t}, {a}",
            f"v_exp_f32 v{T}, v{T}",
            f"v_exp_f32 v{T+1}, v{T+1}",
            f"v_pk_mul_f32 {a}, {a}, {u}",
            f"v_pk_fma_f32 {t}, {t}, {Rp}, {Rp} {sel}",
            f"v_rcp_f32 v{T}, v{T}",
            f"v_rcp_f32 v{T+1}, v{T+1}",
            "NOP",
            f"v_pk_mul_f32 {a}, {a}, {t}",
            f"v_cvt_pk_bf16_f32 v{dst}, v{a.base}, v{a.base+1}",
        ]

    for tl in range(4):
        vo = vT0 if tl < 2 else vT1
        for P in range(4):
            Fs = (2 * P, 2 * P + 1) if P < 3 else (6,)
            dbase = acc(7 + Fs[0], tl).base
            for n, F in enumerate(Fs):
                s0 = glu(F, tl, 0, TA, dbase + 2 * n)
                s1 = glu(F, tl, 1, TB, dbase + 2 * n + 1)
                for x, y in zip(s0, s1):
                    if x != "NOP": A(x)
                    if y != "NOP": A(y)
            if P < 3:
                A(f"buffer_store_dwordx4 {V(dbase, 4)}, v{vo}, s[{SRD_O}:{SRD_O+3}], s{48 + P} offen offset:{(tl % 2) * 2048}")
            else:
                A(f"buffer_store_dwordx2 {V(dbase, 2)}, v{vo}, s[{SRD_O}:{SRD_O+3}], s{48 + P} offen offset:{(tl % 2) * 2048}")
    xstamp(A, opts, "stored")
    if emb:
        return None
    if opts.get("prof"):
        A("s_waitcnt vmcnt(0)")
        stamp(A, opts, 3)
        prof_store(A, opts, 4, opts.get("kidx", 0))
    A.label(END)
    A("s_endpgm")
    return kernel_desc(name, 256, 176, 80)
```

```python
from gen_common import *

sW, sTB, sCB, sKH = 24, 25, 26, 27
sToff, sWoff, sM0b = 28, 29, 30
sTraw, sWraw, sTlim, sWlim = 56, 57, 58, 59
SRD_T, SRD_W, SRD_O, SRD_X = 8, 12, 16, 20
vT = [1, 2]
vW0, vW1 = 3, 4
vR = 6
vt = 10
ACC = 16
RB = [80, 144]
XTRA = 208
U, SLOT = 4, 16384


def acc(F, tl):
    return V(ACC + (tl * 8 + F) * 4, 4)


def wfrag(par, s2, F):
    return V(RB[par] + s2 * 32 + F * 4, 4)


def tslot(sl, s2, tl):
    return Ac(sl * 16 + s2 * 8 + tl * 4, 4)


def advance(off, raw, stride, limit):
    return [f"s_add_u32 s{raw}, s{raw}, {stride}", f"s_cmp_lt_u32 s{raw}, s{limit}", f"s_cselect_b32 s{off}, s{raw}, 0x7ff00000"]


def reduce_none():
    pass


def gen_k5b(A, name, opts):
    A("s_and_b32 s3, s2, 7")
    A("s_lshr_b32 s33, s2, 3")
    A(f"s_and_b32 s{sKH}, s3, 1")
    A(f"s_lshr_b32 s{sTB}, s3, 1")
    A(f"s_lshl_b32 s{sTB}, s{sTB}, 2")
    A("s_and_b32 s34, s33, 3")
    A(f"s_add_u32 s{sTB}, s{sTB}, s34")
    A(f"s_lshr_b32 s{sCB}, s33, 2")
    A(f"s_lshl_b32 s34, s{sTB}, 3")
    A(f"s_lshl_b32 s35, s{sW}, 1")
    A(f"s_add_u32 s34, s34, s35")
    A(f"s_add_u32 s60, s34, s{sKH}")
    A(f"s_lshl_b32 s34, s60, 11")
    A(f"v_lshlrev_b32 v{vt}, 4, v0")
    A(f"v_add_u32 v{vT[0]}, s34, v{vt}")
    A(f"v_xor_b32 v{vT[1]}, 2048, v{vT[0]}")
    A(f"s_mul_i32 s34, s{sCB}, {2 * 56 * 8192}")
    A(f"s_lshl_b32 s{sM0b}, s{sW}, 11")
    A(f"s_add_u32 s34, s34, s{sM0b}")
    A(f"v_add_u32 v{vW0}, s34, v{vt}")
    A(f"v_add_u32 v{vW1}, {56 * 8192}, v{vW0}")
    A(f"s_mul_i32 s{sTraw}, s{sKH}, {28 * STAGE_BYTES}")
    A(f"s_add_u32 s{sTlim}, s{sTraw}, {28 * STAGE_BYTES}")
    A(f"s_mul_i32 s{sWraw}, s{sKH}, {28 * 8192}")
    A(f"s_add_u32 s{sWlim}, s{sWraw}, {28 * 8192}")
    A(f"s_mov_b32 s{sToff}, s{sTraw}")
    A(f"s_mov_b32 s{sWoff}, s{sWraw}")
    A(f"v_lshrrev_b32 v{vt}, 4, v0")
    A(f"v_bfe_u32 v{vt+1}, v0, 2, 2")
    A(f"v_lshl_add_u32 v{vt+2}, v{vt}, 2, v{vt+1}")
    A(f"v_lshlrev_b32 v{vt+2}, 7, v{vt+2}")
    A(f"v_and_b32 v{vt+3}, 3, v0")
    A(f"v_lshl_add_u32 v{vt+2}, v{vt+3}, 3, v{vt+2}")
    A(f"v_lshrrev_b32 v{vt+1}, 1, v{vt+1}")
    A(f"v_and_b32 v{vt}, 1, v{vt}")
    A(f"v_lshl_or_b32 v{vt}, v{vt}, 1, v{vt+1}")
    A(f"v_lshl_or_b32 v{vR}, v{vt}, 5, v{vt+2}")
    for F in range(1, 4):
        A(f"v_xor_b32 v{vR+F}, {F << 5}, v{vR}")
    srd(A, SRD_T, 4, WS_ACT, ACT_BYTES)
    srd(A, SRD_W, 4, WS_WD, 3584 * 2048)

    def w_dma(slot):
        out = []
        for sub, vo in enumerate((vW0, vW1)):
            out.append([f"s_add_u32 m0, s{sM0b}, {slot * SLOT + sub * 8192}", "s_nop 0",
                        f"buffer_load_dwordx4 v{vo}, s[{SRD_W}:{SRD_W+3}], s{sWoff} offen lds"])
            out.append([f"buffer_load_dwordx4 v{vo}, s[{SRD_W}:{SRD_W+3}], s{sWoff} offen offset:1024 lds"])
        out[-1] = out[-1] + advance(sWoff, sWraw, 8192, sWlim)
        return out

    def t_loads(sl):
        out = [[f"buffer_load_dwordx4 {tslot(sl, s2, tl)}, v{vT[tl]}, s[{SRD_T}:{SRD_T+3}], s{sToff} offen offset:{s2 * 1024}"]
               for tl in range(2) for s2 in range(2)]
        out[-1] = out[-1] + advance(sToff, sTraw, STAGE_BYTES, sTlim)
        return out

    def tr_reads(par, slot):
        out = []
        for s2 in range(2):
            for F in range(8):
                for i in range(2):
                    off = slot * SLOT + (F // 4) * 8192 + (32 * s2 + 16 * i) * 128
                    out.append(f"ds_read_b64_tr_b16 {V(wfrag(par, s2, F).base + 2 * i, 2)}, v{vR + F % 4} offset:{off}")
        return out

    HR, MH = XTRA, XTRA + 16
    NIT = 7

    def seq(tr, it):
        if it == -1:
            for s in range(U - 1):
                for _ in range(4): tr.issue(("T", s))
            for _ in range(5): tr.issue(("Y", 0))
            return None
        ns = []
        for s in range(U * it, U * it + U):
            ns.append(tr.wait_for(lambda t: t == ("T", s) or t == ("W", s + 1)))
            for _ in range(4): tr.issue(("W", s + U))
            for _ in range(4): tr.issue(("T", s + U - 1))
        return ns

    waits = [63 if w is None else min(w, 63) for w in resolve_waits(seq, NIT)]

    opts["publish"]()
    for s in range(U):
        for g in w_dma(s):
            for l in g: A(l)
    opts["handoff"](sTB, sKH)
    for s in range(U - 1):
        for g in t_loads(s):
            for l in g: A(l)
    srd(A, SRD_X, 4, WS_HC, 4 * MB)
    A(f"s_lshl_b32 s34, s{sCB}, 19")
    A(f"s_add_u32 s35, s34, {STAGE_BYTES}")
    for c in range(4):
        A(f"buffer_load_dwordx4 {V(HR + 4 * c, 4)}, v{vT[0]}, s[{SRD_X}:{SRD_X+3}], s{34 + c // 2} offen offset:{(c % 2) * 1024}")
    srd(A, SRD_X, 4, WS_MH, 8192)
    A(f"v_and_b32 v{vt}, 15, v0")
    A(f"v_lshlrev_b32 v{vt}, 2, v{vt}")
    A(f"s_lshl_b32 s34, s60, 6")
    A(f"buffer_load_dword v{MH}, v{vt}, s[{SRD_X}:{SRD_X+3}], s34 offen")
    for i in range(0, 64, 2):
        A(f"v_mov_b64 v[{ACC + i}:{ACC + i + 1}], 0")
    for l in tr_reads(0, 0): A(l)
    xstamp(A, opts, "k5loop")
    LOOP = f"L_{name}_loop"
    A(f"s_mov_b32 s44, {NIT}")
    A.loop_begin(LOOP)
    for sl in range(U):
        par = sl % 2
        A(f"s_waitcnt vmcnt({waits[sl]}) lgkmcnt(0)")
        A("s_barrier")
        main = [mfma16(acc(F, tl), wfrag(par, s2, F), tslot(sl, s2, tl)) for s2 in range(2) for F in range(8) for tl in range(2)]
        n_m = len(main)
        vm = w_dma(sl) + t_loads((sl + U - 1) % U)
        reads = tr_reads(1 - par, (sl + 1) % U)
        f = {-1: list(vm[0])}
        spread(f, vm[1:], 0, 22)
        spread(f, reads, 0, n_m - 4)
        if sl == U - 1:
            f.setdefault(n_m - 1, [])
            f[n_m - 1] += ["s_sub_u32 s44, s44, 1", "s_cmp_lg_u32 s44, 0"]
        for l in interleave(main, f): A(l)
    A(f"s_cbranch_scc1 {LOOP}")
    A.loop_end()
    xstamp(A, opts, "k5loopend")

    A(f"s_lshl_b32 s34, s{sTB}, 3")
    A(f"s_add_u32 s34, s34, s{sCB}")
    A(f"s_lshl_b32 s34, s34, 1")
    A(f"s_add_u32 s35, s34, s{sKH}")
    A(f"s_lshl_b32 s35, s35, 2")
    A(f"s_add_u32 s35, s35, s{sW}")
    A(f"s_xor_b32 s36, s35, 4")
    srd(A, SRD_T, 4, WS_XB, 8 * MB)
    srd(A, SRD_W, 4, WS_FL, 1024 * 128)
    A(f"v_lshlrev_b32 v{vt}, 4, v0")
    A(f"s_lshl_b32 s37, s35, 13")
    A(f"s_add_u32 s38, s37, 4096")
    for F in range(8):
        A(f"buffer_store_dwordx4 {acc(F, 1)}, v{vt}, s[{SRD_T}:{SRD_T+3}], s{37 + F // 4} offen offset:{(F % 4) * 1024} sc1")
    T = vt + 1
    for F in range(8):
        h = HR + (F // 2) * 4 + (F % 2) * 2
        a = acc(F, 0).base
        for x in range(2):
            A(f"v_lshlrev_b32 v{T}, 16, v{h + x}")
            A(f"v_and_b32 v{T+1}, 0xffff0000, v{h + x}")
            A(f"v_add_f32 v{T}, v{T}, v{MH}")
            A(f"v_add_f32 v{T+1}, v{T+1}, v{MH}")
            A(f"v_add_f32 v{a + 2*x}, v{a + 2*x}, v{T}")
            A(f"v_add_f32 v{a + 2*x + 1}, v{a + 2*x + 1}, v{T+1}")
    vF = MH + 2
    A(f"v_mov_b32 v{vF}, 0")
    A(f"v_mov_b32 v{vF+1}, 1")
    A("s_lshl_b32 s35, s35, 7")
    A("s_lshl_b32 s39, s36, 7")
    A("s_waitcnt vmcnt(0)")
    A(f"buffer_store_dword v{vF+1}, v{vF}, s[{SRD_W}:{SRD_W+3}], s35 offen sc1")
    xstamp(A, opts, "sent")
    srd(A, SRD_O, 42, 0, 2048 * 2048)
    A(f"s_lshl_b32 s45, s{sW}, 12")
    vA, vO = RB[0], RB[0] + 4
    A(f"v_and_b32 v{T}, 15, v0")
    A(f"v_lshrrev_b32 v{T+1}, 1, v{T}")
    A(f"v_lshrrev_b32 v{T+2}, 5, v0")
    A(f"v_xor_b32 v{T+1}, v{T+1}, v{T+2}")
    A(f"v_lshlrev_b32 v{T+1}, 4, v{T+1}")
    A(f"v_lshl_add_u32 v{T+1}, v{T}, 7, v{T+1}")
    A(f"v_bfe_u32 v{T+2}, v0, 4, 1")
    A(f"v_lshl_add_u32 v{T+1}, v{T+2}, 3, v{T+1}")
    A(f"v_add_u32 v{vA}, s45, v{T+1}")
    for F in range(1, 4):
        A(f"v_xor_b32 v{vA+F}, {F << 5}, v{vA}")
    A(f"s_lshl_b32 s34, s60, 15")
    A(f"s_lshl_b32 s47, s{sCB}, 8")
    A(f"s_add_u32 s34, s34, s47")
    A(f"v_lshrrev_b32 v{T}, 3, v0")
    A(f"v_lshlrev_b32 v{T}, 11, v{T}")
    A(f"v_add_u32 v{T}, s34, v{T}")
    A(f"v_and_b32 v{T+1}, 7, v0")
    A(f"v_lshrrev_b32 v{T+2}, 4, v0")
    A(f"v_xor_b32 v{T+1}, v{T+1}, v{T+2}")
    A(f"v_lshl_add_u32 v{vO}, v{T+1}, 4, v{T}")
    A(f"v_xor_b32 v{T+1}, 4, v{T+1}")
    A(f"v_lshl_add_u32 v{vO+1}, v{T+1}, 4, v{T}")
    A(f"v_add_u32 v{vO+1}, 16384, v{vO+1}")
    POLL, GOT = f"L_{name}_poll", f"L_{name}_got"
    A("s_mov_b32 s44, 0x8000")
    A.label(POLL)
    A(f"v_mov_b32 v{T}, 0")
    A("s_mov_b64 exec, 1")
    A(f"buffer_atomic_or v{T}, v{vF}, s[{SRD_W}:{SRD_W+3}], s39 offen sc0 sc1")
    A("s_mov_b64 exec, -1")
    A("s_waitcnt vmcnt(0)")
    A(f"v_readfirstlane_b32 s34, v{T}")
    A("s_sub_u32 s44, s44, 1")
    A("s_cmp_eq_u32 s44, 0")
    A(f"s_cbranch_scc1 {GOT}")
    A("s_cmp_lg_u32 s34, 1")
    A(f"s_cbranch_scc1 {POLL}")
    A.label(GOT)
    xstamp(A, opts, "got5")
    RX = RB[1]
    A("s_lshl_b32 s37, s36, 13")
    A("s_add_u32 s38, s37, 4096")
    for F in range(8):
        A(f"buffer_load_dwordx4 {V(RX + 4 * F, 4)}, v{vt}, s[{SRD_T}:{SRD_T+3}], s{37 + F // 4} offen offset:{(F % 4) * 1024} sc1")
    A("s_barrier")
    for F in range(8):
        a = acc(F, 0).base
        A(f"s_waitcnt vmcnt({7 - F})")
        for r in range(4):
            A(f"v_add_f32 v{a + r}, v{a + r}, v{RX + 4 * F + r}")
        A(f"v_cvt_pk_bf16_f32 v{a}, v{a}, v{a+1}")
        A(f"v_cvt_pk_bf16_f32 v{a+1}, v{a+2}, v{a+3}")
        A(f"ds_write_b64 v{vA + F % 4}, {V(a, 2)} offset:{(F // 4) * 2048}")
    A(f"v_lshlrev_b32 v{T}, 4, v0")
    A(f"v_add_u32 v{T}, s45, v{T}")
    A("s_waitcnt lgkmcnt(0)")
    for m in range(4):
        A(f"ds_read_b128 {V(RB[0] + 8 + 4 * m, 4)}, v{T} offset:{m * 1024}")
    for m in range(4):
        A(f"s_waitcnt lgkmcnt({3 - m})")
        A(f"buffer_store_dwordx4 {V(RB[0] + 8 + 4 * m, 4)}, v{vO + m % 2}, s[{SRD_O}:{SRD_O+3}], 0 offen offset:{(m // 2) * 128}")
    xstamp(A, opts, "stored")
```

```python
import sys, json
sys.path.insert(0,'work')
from build import build
from gen_gs import *
from gen_k2 import gen_k2
from gen_k4 import gen_k4
import gen_g8
import gen_k1n, gen_k345
import gen_gs_v1
def make(prof=0, o=None):
    o = dict(o or {})
    for k, d in (("k1", {}), ("k5", {})):
        o[k] = dict(d, **(o.get(k) or {}))
    o["k4"] = dict({"stflag":"sc1"}, **(o.get("k4") or {}))
    if o.get("k5s", 0):
        o["k4"].setdefault("k5s", 1)
        if o["k4"].get("map") == "2x16": o["k3"] = dict({"m216":1}, **(o.get("k3") or {}))
    for k, nx, nb in (("k1","k2_attn_kernel",11264),("k2","k3_wo_kernel",5120),("k3","k4_gateup_kernel",10240),("k4","k5_down_kernel",3584)):
        o[k] = dict({"next":nx,"next_bytes":nb}, **(o.get(k) or {}))
    P = lambda i, extra=None: dict({"prof":prof,"kidx":i}, **(extra or {}))
    U5 = o.get("U5", 4)
    parts = [(gen_k1,"k1_qkv_kernel",P(0,o.get("k1"))),(gen_k2,"k2_attn_kernel",P(1,o.get("k2"))),(gen_k3,"k3_wo_kernel",P(2,o.get("k3"))),
             (gen_k4,"k4_gateup_kernel",P(3,o.get("k4"))),(gen_k5,"k5_down_kernel",P(4,dict({"U":U5},**(o.get("k5") or {}))))]
    U1 = (o.get("k1") or {}).get("U", 4); U3 = (o.get("k3") or {}).get("U", 4); U5 = (o.get("k5") or {}).get("U", U5)
    launches = [("k1_qkv_kernel",256,256,U1*8192+32768+U1*16384+256),("k2_attn_kernel",256,512,4*32768+4352),("k3_wo_kernel",256,256,U3*8192+4096+256+16384),
                ("k4_gateup_kernel",256,256,2*28672),("k5_down_kernel",256,256,U5*8192+16384)]
    launches[1] = ("k2_attn_kernel", 256, 512, 4*32768+4352+16384+3072)
    if o.get("k5s", 0):
        parts = [((gen_g8.gen_k5s if fn is gen_k5 else fn), n, op) for fn, n, op in parts]
        launches[4] = ("k5_down_kernel", 256, 512, gen_g8.K5_LDS)
    if o.get("v1"):
        parts = [((gen_gs_v1.gen_k3 if fn is gen_k3 and "3" in o["v1"] else gen_gs_v1.gen_k5 if fn is gen_k5 and "5" in o["v1"] else gen_gs_v1.gen_k1 if fn is gen_k1 and "1" in o["v1"] else fn), n, op) for fn, n, op in parts]
    parts = parts[1:]; launches = launches[1:]
    if o.get("m345", 1):
        p345 = dict({"prof":prof,"kidx":4}, **(o.get("k345") or {}))
        parts = [(parts[0][0], parts[0][1], dict(parts[0][2], next="k3_ffn_kernel", next_bytes=5120, kidx=3)), (gen_k345.gen_k345, "k3_ffn_kernel", p345)]
        launches = [launches[0], ("k3_ffn_kernel", 256, 256, gen_k345.K345_LDS)]
    return build(parts, launches)
if __name__ == "__main__":
    asm, probs = make(0)
    print("hazards:", len(probs)); print("\n".join(probs[:20]))
    open('sequential_preLN__grouped_kv_mqa__geglu_ffn__prompt.s','w').write(asm)
    asm, probs = make(1)
    open('all_prof.s','w').write(asm)
```

```python
from gen_common import *

sW, sTB, sCB = 24, 25, 26
sToff, sWoff, sM0b = 27, 28, 29
sRot, sTraw, sWraw, sTcnt, sWcnt = 55, 56, 57, 58, 59
SRD_T, SRD_W, SRD_O, SRD_X = 8, 12, 16, 20
vT0, vT1 = 1, 2
vW0, vW1 = 3, 4
vR = 6
vt = 10
ACC = 16
RB = [48, 80]
XTRA = 112
TRING = 160


def acc(F, tl):
    return V(ACC + (F * 2 + tl) * 4, 4)


def tslot(stage_slot, s2, tl):
    return Ac(stage_slot * 16 + s2 * 8 + tl * 4, 4)


def ids(A, opts=None):
    if not (opts and opts.get("emb")):
        A(f"v_lshrrev_b32 v{vt}, 6, v0")
        A(f"v_and_b32 v0, 63, v0")
    A(f"s_and_b32 s3, s2, 7")
    if not (opts and opts.get("emb")):
        A(f"v_readfirstlane_b32 s{sW}, v{vt}")
    A(f"s_lshr_b32 s30, s2, 3")
    A(f"s_lshr_b32 s{sTB}, s3, 1")
    A(f"s_lshl_b32 s{sTB}, s{sTB}, 2")
    A(f"s_and_b32 s33, s30, 3")
    A(f"s_add_u32 s{sTB}, s{sTB}, s33")
    A(f"s_and_b32 s{sCB}, s3, 1")
    A(f"s_lshl_b32 s{sCB}, s{sCB}, 3")
    A(f"s_lshr_b32 s33, s30, 2")
    A(f"s_add_u32 s{sCB}, s{sCB}, s33")
    if opts and opts.get("map") == "same":
        A(f"s_mov_b32 s{sTB}, 0"); A(f"s_mov_b32 s{sCB}, 0")
    if opts and opts.get("map") == "sametb":
        A(f"s_mov_b32 s{sTB}, 0")
    if opts and opts.get("map") == "samecb":
        A(f"s_mov_b32 s{sCB}, 0")
    if opts and opts.get("map") == "tokxcd":
        A(f"s_lshl_b32 s{sTB}, s3, 1"); A(f"s_and_b32 s33, s30, 1"); A(f"s_add_u32 s{sTB}, s{sTB}, s33")
        A(f"s_lshr_b32 s{sCB}, s30, 1")
    if opts and opts.get("map") == "cbx":
        A(f"s_xor_b32 s{sCB}, s{sCB}, 5")
    if opts and opts.get("map") == "rowmajor":
        A(f"s_lshr_b32 s{sTB}, s2, 4"); A(f"s_and_b32 s{sCB}, s2, 15")
    if opts and opts.get("map") == "m8x4":
        A(f"s_lshr_b32 s{sTB}, s3, 2"); A(f"s_lshl_b32 s{sTB}, s{sTB}, 3"); A(f"s_and_b32 s33, s30, 7"); A(f"s_add_u32 s{sTB}, s{sTB}, s33")
        A(f"s_and_b32 s{sCB}, s3, 3"); A(f"s_lshl_b32 s{sCB}, s{sCB}, 2"); A(f"s_lshr_b32 s33, s30, 3"); A(f"s_add_u32 s{sCB}, s{sCB}, s33")


def set_rot(A, opts, nstages):
    r = opts.get("rot")
    if r is None:
        return
    if r == "cb":
        A(f"s_and_b32 s{sRot}, s{sCB}, 15")
    elif r == "tb":
        A(f"s_and_b32 s{sRot}, s{sTB}, 15")
    elif r == "cbtb":
        A(f"s_add_u32 s{sRot}, s{sCB}, s{sTB}"); A(f"s_and_b32 s{sRot}, s{sRot}, 15")
    elif r == "cb7":
        A(f"s_and_b32 s{sRot}, s{sCB}, 7"); A(f"s_mul_i32 s{sRot}, s{sRot}, {opts.get('rotk', 1)}")
    elif r == "tb3":
        A(f"s_and_b32 s{sRot}, s{sTB}, 3"); A(f"s_mul_i32 s{sRot}, s{sRot}, {opts.get('rotk', 1)}")
    elif r == "idx":
        A(f"s_lshr_b32 s{sRot}, s2, 3"); A(f"s_mul_i32 s{sRot}, s{sRot}, {opts.get('rotk', 1)}"); A(f"s_lshr_b32 s{sRot}, s{sRot}, {opts.get('rotsh', 0)}")
    elif r == "ct":
        a, b = opts.get("rota", 2), opts.get("rotb", 4)
        A(f"s_and_b32 s33, s{sCB}, 7"); A(f"s_mul_i32 s33, s33, {a}")
        A(f"s_and_b32 s34, s{sTB}, 3"); A(f"s_mul_i32 s34, s34, {b}")
        A(f"s_add_u32 s{sRot}, s33, s34")
        for _ in range((7 * a + 3 * b) // nstages):
            A(f"s_cmp_ge_u32 s{sRot}, {nstages}"); A(f"s_cselect_b32 s33, {nstages}, 0"); A(f"s_sub_u32 s{sRot}, s{sRot}, s33")
    elif r == "zero":
        A(f"s_mov_b32 s{sRot}, 0")


def l2_sweep(A, opts, srd_t, tok_kind, srd_w, dummy):
    if not opts.get("sweep"):
        return 0
    A(f"s_lshr_b32 s33, s2, 3")
    A(f"s_lshl_b32 s33, s33, 2")
    A(f"s_add_u32 s33, s33, s{sW}")
    A(f"s_lshl_b32 s33, s33, 6")
    A(f"v_add_u32 v{vt}, s33, v0")
    A(f"s_and_b32 s34, s2, 7")
    A(f"v_lshrrev_b32 v{vt+1}, 3, v{vt}")
    A(f"v_lshlrev_b32 v{vt+1}, 11, v{vt+1}")
    A(f"v_and_b32 v{vt+2}, 7, v{vt}")
    A(f"v_lshl_add_u32 v{vt+1}, v{vt+2}, 7, v{vt+1}")
    A(f"s_and_b32 s35, s34, 1")
    A(f"s_lshl_b32 s35, s35, 10")
    A(f"buffer_load_dword v{dummy}, v{vt+1}, s[{srd_w}:{srd_w+3}], s35 offen")
    A(f"s_lshr_b32 s34, s34, 1")
    if tok_kind == "rows":
        A(f"v_lshlrev_b32 v{vt+1}, 7, v{vt}")
        A(f"s_lshl_b32 s35, s34, 20")
    else:
        A(f"v_lshrrev_b32 v{vt+1}, 9, v{vt}")
        A(f"v_lshlrev_b32 v{vt+1}, 18, v{vt+1}")
        A(f"v_and_b32 v{vt+2}, 511, v{vt}")
        A(f"v_lshl_add_u32 v{vt+1}, v{vt+2}, 7, v{vt+1}")
        A(f"s_lshl_b32 s35, s34, 16")
    A(f"buffer_load_dword v{dummy}, v{vt+1}, s[{srd_t}:{srd_t+3}], s35 offen")
    return 2


def tf_voffsets(A):
    A(f"s_lshl_b32 s33, s{sTB}, 2")
    A(f"s_add_u32 s33, s33, s{sW}")
    A(f"s_lshl_b32 s33, s33, 12")
    A(f"v_lshlrev_b32 v{vT0}, 4, v0")
    A(f"v_add_u32 v{vT0}, s33, v{vT0}")


def w_setup(A, perm, rowstride, rotf=False, packed=False):
    A(f"v_lshrrev_b32 v{vt}, 3, v0")
    A(f"s_lshl_b32 s33, s{sW}, 4")
    A(f"v_add_u32 v{vt}, s33, v{vt}")
    A(f"s_mov_b32 s34, {rowstride}")
    A(f"v_mul_lo_u32 v{vt}, v{vt}, s34")
    A(f"s_lshl_b32 s33, s{sCB}, 7")
    A(f"v_add_u32 v{vt}, s33, v{vt}")
    A(f"v_and_b32 v{vt+1}, 7, v0")
    if perm in "AB":
        A(f"v_bfe_u32 v{vt+2}, v0, 4, 2")
        A(f"v_lshlrev_b32 v{vt+2}, 1, v{vt+2}")
        A(f"v_xor_b32 v{vt+1}, v{vt+1}, v{vt+2}")
        A(f"v_lshl_add_u32 v{vW0}, v{vt+1}, 4, v{vt}")
        A(f"v_add_u32 v{vW1}, {8 * rowstride - 1024}, v{vW0}")
    else:
        A(f"v_bfe_u32 v{vt+2}, v0, 4, 1")
        A(f"v_lshlrev_b32 v{vt+2}, 1, v{vt+2}")
        A(f"v_xor_b32 v{vt+1}, v{vt+1}, v{vt+2}")
        A(f"v_lshl_add_u32 v{vW0}, v{vt+1}, 4, v{vt}")
        A(f"v_xor_b32 v{vt+1}, 4, v{vt+1}")
        A(f"v_lshl_add_u32 v{vW1}, v{vt+1}, 4, v{vt}")
        A(f"v_add_u32 v{vW1}, {8 * rowstride - 1024}, v{vW1}")
    A(f"s_lshl_b32 s{sM0b}, s{sW}, 11")
    if packed:
        A(f"s_mul_i32 s33, s{sCB}, {56 * 8192}")
        A(f"s_add_u32 s33, s33, s{sM0b}")
        A(f"v_lshlrev_b32 v{vW0}, 4, v0")
        A(f"v_add_u32 v{vW0}, s33, v{vW0}")
        A(f"v_mov_b32 v{vW1}, v{vW0}")
    A(f"v_lshrrev_b32 v{vt}, 4, v0")
    A(f"v_bfe_u32 v{vt+1}, v0, 2, 2")
    if perm == "A":
        A(f"v_lshl_add_u32 v{vt+2}, v{vt}, 2, v{vt+1}")
    elif perm == "B":
        A(f"v_lshrrev_b32 v{vt+2}, 1, v{vt}")
        A(f"v_lshlrev_b32 v{vt+2}, 4, v{vt+2}")
        A(f"v_and_b32 v{vt+3}, 1, v{vt}")
        A(f"v_lshl_add_u32 v{vt+2}, v{vt+3}, 2, v{vt+2}")
        A(f"v_add_u32 v{vt+2}, v{vt+2}, v{vt+1}")
    else:
        A(f"v_lshl_add_u32 v{vt+2}, v{vt}, 3, v{vt+1}")
    A(f"v_lshlrev_b32 v{vt+2}, 7, v{vt+2}")
    A(f"v_and_b32 v{vt+3}, 3, v0")
    A(f"v_lshl_add_u32 v{vt+2}, v{vt+3}, 3, v{vt+2}")
    A(f"v_lshrrev_b32 v{vt+1}, 1, v{vt+1}")
    A(f"v_and_b32 v{vt}, 1, v{vt}")
    A(f"v_lshl_or_b32 v{vt}, v{vt}, 1, v{vt+1}")
    if not rotf:
        A(f"v_lshl_or_b32 v{vR}, v{vt}, 5, v{vt+2}")
        for F in range(1, 4):
            A(f"v_xor_b32 v{vR+F}, {F << 5}, v{vR}")
    else:
        A(f"v_lshl_or_b32 v{vt}, v{vt}, 5, v{vt+2}")
        for F in range(4):
            A(f"s_add_u32 s33, s{sW}, {F}")
            A(f"s_and_b32 s33, s33, 3")
            A(f"s_lshl_b32 s33, s33, 5")
            A(f"v_xor_b32 v{vR+F}, s33, v{vt}")


def wfrag(par, s2, F):
    return V(RB[par] + s2 * 16 + F * 4, 4)


def gs_main(A, name, opts, nstages, U, perm, rowstride, t_loads, step_extra=None, stage_reads=None,
            after_first_loads=None, iter_end=None, pre_reads=None, extra_after=0, tlds=None):
    di = {"A": 16, "B": 8, "N": 4}[perm]
    tstride = opts["tstride"]
    assert U % 2 == 0

    def w_dma(slot):
        return [[f"s_add_u32 m0, s{sM0b}, {slot * 8192}", "s_nop 0",
                 f"buffer_load_dwordx4 v{vW0}, s[{SRD_W}:{SRD_W+3}], s{sWoff} offen lds"],
                [f"buffer_load_dwordx4 v{vW1}, s[{SRD_W}:{SRD_W+3}], s{sWoff} offen offset:1024 lds"]]

    def tr_reads(par, slot):
        out = []
        for s2 in range(2):
            for F in range(4):
                for i in range(2):
                    off = slot * 8192 + (32 * s2 + di * i) * 128
                    out.append(f"ds_read_b64_tr_b16 {V(wfrag(par, s2, F).base + 2 * i, 2)}, v{vR+F} offset:{off}")
        return out

    NIT = nstages // U
    assert NIT * U == nstages
    ROT = opts.get("rot") is not None
    wstride = 64 * rowstride

    def advance(raw, cnt, off, stride):
        if not ROT:
            return [f"s_add_u32 s{off}, s{off}, {stride}"]
        return [f"s_add_u32 s{raw}, s{raw}, {stride}",
                f"s_cmp_eq_u32 s{raw}, {nstages * stride}",
                f"s_cselect_b32 s{raw}, 0, s{raw}",
                f"s_add_u32 s{cnt}, s{cnt}, 1",
                f"s_cmp_lt_u32 s{cnt}, {nstages}",
                f"s_cselect_b32 s{off}, s{raw}, 0x7ff00000"]

    handoff = opts.get("handoff")

    def seq(tr, it):
        if it == -1 and handoff:
            for s in range(U - 1):
                for _ in range(4): tr.issue(("T", s))
            for _ in range(extra_after): tr.issue(("Y", 0))
            return None
        if it == -1:
            for s in range(U):
                for _ in range(2): tr.issue(("W", s))
                if tlds:
                    for _ in range(4): tr.issue(("W", s))
                elif s >= 1:
                    for _ in range(4): tr.issue(("T", s - 1))
            for _ in range(extra_after): tr.issue(("Y", 0))
            return None
        ns = []
        for s in range(U * it, U * it + U):
            ns.append(tr.wait_for(lambda t: t == ("T", s) or t == ("W", s + 1)))
            for _ in range(2): tr.issue(("W", s + U))
            for _ in range(4): tr.issue(("W", s + U) if tlds else ("T", s + U - 1))
        return ns

    waits = [63 if w is None else min(w, 63) for w in resolve_waits(seq, NIT)]

    if ROT:
        A(f"s_mul_i32 s{sToff}, s{sRot}, {tstride}")
        A(f"s_mul_i32 s{sWoff}, s{sRot}, {wstride}")
        A(f"s_mov_b32 s{sTraw}, s{sToff}")
        A(f"s_mov_b32 s{sWraw}, s{sWoff}")
        A(f"s_mov_b32 s{sTcnt}, 0")
        A(f"s_mov_b32 s{sWcnt}, 0")
    else:
        A(f"s_mov_b32 s{sToff}, 0")
        A(f"s_mov_b32 s{sWoff}, 0")
    if handoff:
        opts["publish"]()
        for s in range(U):
            for g in w_dma(s):
                for l in g: A(l)
            for l in advance(sWraw, sWcnt, sWoff, wstride): A(l)
        handoff()
        for s in range(U - 1):
            for l in t_loads(s, f"s{sToff}"): A(l)
            for l in advance(sTraw, sTcnt, sToff, tstride): A(l)
    for s in range(0 if not handoff else U, U):
        for g in w_dma(s):
            for l in g: A(l)
        for l in advance(sWraw, sWcnt, sWoff, wstride): A(l)
        if tlds:
            for g in tlds["dma"](s):
                for l in g: A(l)
            for l in advance(sTraw, sTcnt, sToff, tstride): A(l)
        elif s >= 1:
            for l in t_loads(s - 1, f"s{sToff}"): A(l)
            for l in advance(sTraw, sTcnt, sToff, tstride): A(l)
    xstamp(A, opts, "issued")
    if after_first_loads:
        after_first_loads()
    for i in range(0, 32, 2):
        A(f"v_mov_b64 v[{ACC + i}:{ACC + i + 1}], 0")
    n_after = (U - 1) * 6 + (0 if opts.get("y_after_wait") else extra_after)
    xstamp(A, opts, "prewait")
    if not handoff:
        A(f"s_waitcnt vmcnt({min(n_after, 63)})")
        A(f"s_barrier")
    for l in tr_reads(0, 0): A(l)
    if tlds:
        for l in tlds["reads"](0, 0): A(l)
    if pre_reads:
        pre_reads()

    stamp(A, opts, 1)
    xstamp(A, opts, "loopstart")
    LOOP = f"L_{name}_loop"
    A(f"s_mov_b32 s44, {NIT}")
    A.loop_begin(LOOP)
    for sl in range(U):
        par = sl % 2
        A(f"s_waitcnt vmcnt({waits[sl]}) lgkmcnt(0)")
        A("s_barrier")
        main = []
        for s2 in range(2):
            for F in range(4):
                for tl in range(2):
                    main.append(mfma16(acc(F, tl), wfrag(par, s2, F), tlds["frag"](par, s2, tl) if tlds else tslot(sl, s2, tl)))
            if step_extra:
                main += step_extra(par, s2, sl)
        n_m = len(main)
        nsl = (sl + 1) % U
        reads = tr_reads(1 - par, nsl)
        if opts.get("x_halfrd"): reads = reads[::2]
        if tlds:
            reads = tlds["reads"](1 - par, nsl) + reads
        if stage_reads:
            reads = stage_reads(1 - par, sl) + reads
        g = w_dma(sl)
        vm = [g[0], g[1] + advance(sWraw, sWcnt, sWoff, wstride)]
        if tlds:
            d = tlds["dma"](sl)
            d[-1] = d[-1] + advance(sTraw, sTcnt, sToff, tstride)
            vm += d
        else:
            ld = [[x] for x in t_loads((sl + U - 1) % U, f"s{sToff}")]
            ld[-1] = ld[-1] + advance(sTraw, sTcnt, sToff, tstride)
            vm += ld
        f = {}
        f[-1] = list(vm[0])
        spread(f, vm[1:], 0, min(n_m - 2, 2 * (len(vm) - 1)))
        spread(f, reads, 0, n_m - opts.get("rd_margin", 4))
        if sl == U - 1:
            f.setdefault(n_m - 1, [])
            if iter_end:
                f[n_m - 1].extend(iter_end())
            f[n_m - 1].append("s_sub_u32 s44, s44, 1")
            f[n_m - 1].append("s_cmp_lg_u32 s44, 0")
        for l in interleave(main, f): A(l)
    A(f"s_cbranch_scc1 {LOOP}")
    A.loop_end()
    stamp(A, opts, 2)
    xstamp(A, opts, "loopend")
    code_prefetch(A, opts, name, opts.get("next"), opts.get("next_bytes", 8192), sW, vt + 4, 46)


def tf_tloads(sl, soff):
    out = []
    for tl in range(2):
        for s2 in range(2):
            out.append(f"buffer_load_dwordx4 {tslot(sl, s2, tl)}, v{vT0}, s[{SRD_T}:{SRD_T+3}], {soff} offen offset:{tl * 2048 + s2 * 1024}")
    return out


def finish(A, name, opts, END, nv, na=0):
    xstamp(A, opts, "stored")
    if opts.get("emb"):
        return None
    if opts.get("prof"):
        A("s_waitcnt vmcnt(0)")
        stamp(A, opts, 3)
        prof_store(A, opts, 4, opts.get("kidx", 0))
    A.label(END)
    A("s_endpgm")
    return kernel_desc(name, nv, na, 80)


def gen_k5(A, name="k5_down_kernel", opts=None):
    opts = dict(opts or {})
    U = opts.get("U", 8)
    opts["tstride"] = STAGE_BYTES
    opts.setdefault("rot", "zero")
    END = f"L_{name}_end"
    if opts.get("emb"):
        A("s_mov_b64 s[42:43], s[88:89]")
    else:
        kernel_begin(A, name)
        A("s_cmp_ge_u32 s2, 256")
        A(f"s_cbranch_scc1 {END}")
        stamp(A, opts, 0)
        A(f"s_load_dwordx2 s[4:5], s[0:1], {KA_WS}")
        A(f"s_load_dwordx4 s[40:43], s[0:1], {KA_WD}")
    ids(A, opts)
    set_rot(A, opts, 56)
    tf_voffsets(A)
    w_setup(A, "A", 2048, packed=True)
    A("s_waitcnt lgkmcnt(0)")
    xstamp(A, opts, "karg")
    srd(A, SRD_T, 4, WS_ACT, ACT_BYTES)
    srd(A, SRD_W, 4, WS_WD, 3584 * 2048)
    srd(A, SRD_X, 4, WS_HC, 4 * MB)
    srd(A, SRD_O, 42, 0, 2048 * 2048)
    HR = XTRA
    MH = XTRA + 16

    def pre_extra():
        A(f"s_lshl_b32 s33, s{sCB}, 18")
        for tl in range(2):
            for P in range(2):
                A(f"buffer_load_dwordx4 {V(HR + (tl * 2 + P) * 4, 4)}, v{vT0}, s[{SRD_X}:{SRD_X+3}], s33 offen offset:{tl * 2048 + P * 1024}")
        srd(A, SRD_X, 4, WS_MH, 8192)
        row_token_addr(A, vt, 2)
        for tl in range(2):
            A(f"buffer_load_dword v{MH + tl}, v{vt}, s[{SRD_X}:{SRD_X+3}], 0 offen offset:{tl * 64}")

    gs_main(A, name, opts, 56, U, "A", 128, tf_tloads, after_first_loads=pre_extra, extra_after=6)

    A("s_waitcnt vmcnt(0) lgkmcnt(0)")
    A(f"s_lshl_b32 s36, s{sW}, 12")
    A(f"s_add_u32 s36, s36, {U * 8192}")
    vA, vO = RB[0], RB[0] + 4
    dlayout_lds_addr(A, vA, 36)
    rowtile_voffsets(A, vO, 7)
    T = vt
    for tl in range(2):
        for F in range(4):
            h = HR + (tl * 2 + F // 2) * 4 + (F % 2) * 2
            a = acc(F, tl).base
            for x in range(2):
                A(f"v_lshlrev_b32 v{T}, 16, v{h + x}")
                A(f"v_and_b32 v{T+1}, 0xffff0000, v{h + x}")
                A(f"v_add_f32 v{T}, v{T}, v{MH + tl}")
                A(f"v_add_f32 v{T+1}, v{T+1}, v{MH + tl}")
                A(f"v_add_f32 v{a + 2*x}, v{a + 2*x}, v{T}")
                A(f"v_add_f32 v{a + 2*x + 1}, v{a + 2*x + 1}, v{T+1}")
            A(f"v_cvt_pk_bf16_f32 v{a}, v{a}, v{a+1}")
            A(f"v_cvt_pk_bf16_f32 v{a+1}, v{a+2}, v{a+3}")
            A(f"ds_write_b64 v{vA + F}, {V(a, 2)} offset:{tl * 2048}")
    A(f"v_lshlrev_b32 v{T}, 4, v0")
    A(f"v_add_u32 v{T}, s36, v{T}")
    A("s_waitcnt lgkmcnt(0)")
    for m in range(4):
        A(f"ds_read_b128 {V(RB[1] + 4 * m, 4)}, v{T} offset:{m * 1024}")
    for m in range(4):
        A(f"s_waitcnt lgkmcnt({3 - m})")
        A(f"buffer_store_dwordx4 {V(RB[1] + 4 * m, 4)}, v{vO + m}, s[{SRD_O}:{SRD_O+3}], 0 offen")
    return finish(A, name, opts, END, TRING, U * 16)


def rowtile_voffsets(A, dst, colbytes_sgpr_shift, rowstride_shift=11):
    A(f"s_lshl_b32 s33, s{sTB}, 2")
    A(f"s_add_u32 s33, s33, s{sW}")
    A(f"s_lshl_b32 s33, s33, 16")
    if colbytes_sgpr_shift is not None:
        A(f"s_lshl_b32 s34, s{sCB}, {colbytes_sgpr_shift}")
        A(f"s_add_u32 s33, s33, s34")
    A(f"v_lshrrev_b32 v{vt}, 3, v0")
    A(f"v_lshlrev_b32 v{vt}, 11, v{vt}")
    A(f"v_add_u32 v{vt}, s33, v{vt}")
    A(f"v_and_b32 v{vt+1}, 7, v0")
    A(f"v_lshrrev_b32 v{vt+2}, 4, v0")
    A(f"v_xor_b32 v{vt+1}, v{vt+1}, v{vt+2}")
    A(f"v_lshl_add_u32 v{dst}, v{vt+1}, 4, v{vt}")
    A(f"v_xor_b32 v{vt+1}, 4, v{vt+1}")
    A(f"v_lshl_add_u32 v{dst+1}, v{vt+1}, 4, v{vt}")
    A(f"v_add_u32 v{dst+2}, {2 * 16384}, v{dst}")
    A(f"v_add_u32 v{dst+3}, {3 * 16384}, v{dst+1}")
    A(f"v_add_u32 v{dst+1}, 16384, v{dst+1}")


def dlayout_lds_addr(A, dst, base_sgpr):
    A(f"v_and_b32 v{vt}, 15, v0")
    A(f"v_lshrrev_b32 v{vt+1}, 1, v{vt}")
    A(f"v_lshrrev_b32 v{vt+2}, 5, v0")
    A(f"v_xor_b32 v{vt+1}, v{vt+1}, v{vt+2}")
    A(f"v_lshlrev_b32 v{vt+1}, 4, v{vt+1}")
    A(f"v_lshl_add_u32 v{vt+1}, v{vt}, 7, v{vt+1}")
    A(f"v_bfe_u32 v{vt+2}, v0, 4, 1")
    A(f"v_lshl_add_u32 v{vt+1}, v{vt+2}, 3, v{vt+1}")
    A(f"v_add_u32 v{dst}, s{base_sgpr}, v{vt+1}")
    for F in range(1, 4):
        A(f"v_xor_b32 v{dst+F}, {F << 5}, v{dst}")


def reduce_over_g(A, reg, tmp):
    A(f"v_mov_b32 v{tmp}, v{reg}")
    A("s_nop 1")
    A(f"v_permlane16_swap_b32 v{reg}, v{tmp}")
    A(f"v_add_f32 v{reg}, v{reg}, v{tmp}")
    A(f"v_mov_b32 v{tmp}, v{reg}")
    A("s_nop 1")
    A(f"v_permlane32_swap_b32 v{reg}, v{tmp}")
    A(f"v_add_f32 v{reg}, v{reg}, v{tmp}")


def row_token_addr(A, dst, shift):
    A(f"v_and_b32 v{dst}, 15, v0")
    A(f"s_lshl_b32 s33, s{sTB}, 2")
    A(f"s_add_u32 s33, s33, s{sW}")
    A(f"s_lshl_b32 s33, s33, 5")
    A(f"v_add_u32 v{dst}, s33, v{dst}")
    A(f"v_lshlrev_b32 v{dst}, {shift}, v{dst}")


def gen_k3(A, name="k3_wo_kernel", opts=None):
    opts = dict(opts or {})
    U = opts.get("U", 4)
    opts["tstride"] = STAGE_BYTES
    opts.setdefault("map", "tokxcd")
    opts["y_after_wait"] = opts.get("late2", 0)
    END = f"L_{name}_end"
    if opts.get("emb"):
        A("s_waitcnt lgkmcnt(0)")
        A("s_mov_b64 s[40:41], s[80:81]")
        A("s_mov_b64 s[42:43], s[82:83]")
        A("s_mov_b64 s[48:49], s[84:85]")
        A("s_mov_b64 s[50:51], s[86:87]")
    else:
        kernel_begin(A, name)
        A("s_cmp_ge_u32 s2, 256")
        A(f"s_cbranch_scc1 {END}")
        stamp(A, opts, 0)
        A(f"s_load_dwordx2 s[4:5], s[0:1], {KA_WS}")
        A(f"s_load_dwordx2 s[40:41], s[0:1], {KA_WO}")
        A(f"s_load_dwordx2 s[42:43], s[0:1], {KA_X}")
        A(f"s_load_dwordx4 s[48:51], s[0:1], {KA_WG}")
    ids(A, opts)
    set_rot(A, opts, 16)
    tf_voffsets(A)
    w_setup(A, "B", 2048)
    MACC, WBF, XM, vWB, vX = XTRA, XTRA + 8, XTRA + 24, XTRA + 26, XTRA + 28
    XR = TRING
    WBL = U * 8192
    A("s_waitcnt lgkmcnt(0)")
    xstamp(A, opts, "karg")
    srd(A, SRD_T, 4, WS_O, 4 * MB)
    srd(A, SRD_W, 40, 0, 1024 * 2048)
    srd(A, SRD_X, 42, 0, 2048 * 2048)
    l2_sweep(A, opts, SRD_T, "tf", SRD_W, XTRA + 36)
    srd(A, SRD_O, 4, WS_WB, 4096)
    A(f"v_lshlrev_b32 v{vt}, 4, v0")
    A(f"s_lshl_b32 s33, s{sW}, 10")
    A(f"s_add_u32 m0, s33, {WBL}")
    A("s_nop 0")
    if opts.get("rot") is not None:
        A(f"s_lshl_b32 s34, s{sRot}, 8")
        A(f"v_add_u32 v{vt}, s33, v{vt}")
        A(f"v_add_u32 v{vt}, s34, v{vt}")
        A(f"v_and_b32 v{vt}, 4095, v{vt}")
        A(f"buffer_load_dwordx4 v{vt}, s[{SRD_O}:{SRD_O+3}], 0 offen lds")
    else:
        A(f"buffer_load_dwordx4 v{vt}, s[{SRD_O}:{SRD_O+3}], s33 offen lds")
    A(f"v_and_b32 v{vt}, 1, v0")
    A(f"v_lshlrev_b32 v{vt}, 6, v{vt}")
    A(f"v_lshrrev_b32 v{vt+1}, 4, v0")
    A(f"v_lshl_add_u32 v{vWB}, v{vt+1}, 4, v{vt}")
    A(f"v_add_u32 v{vWB}, {WBL}, v{vWB}")

    XL = WBL + 4096 + 256

    def late_loads():
        rowtile_voffsets(A, vX, 7)
        A(f"s_lshl_b32 s37, s{sW}, 12")
        A(f"s_add_u32 s37, s37, {XL}")
        for m in range(4):
            A(f"s_add_u32 m0, s37, {m * 1024}")
            A("s_nop 0")
            A(f"buffer_load_dwordx4 v{vX + m}, s[{SRD_X}:{SRD_X+3}], 0 offen lds")
        if not opts.get("no_l2w"):
            A(f"s_lshr_b32 s33, s2, 3")
            A(f"s_lshl_b32 s33, s33, 2")
            A(f"s_add_u32 s33, s33, s{sW}")
            if opts.get("m216"):
                A(f"s_and_b32 s35, s33, 1")
                A(f"s_mul_i32 s35, s35, 1792")
                A(f"s_lshr_b32 s33, s33, 1")
                A(f"s_mul_i32 s33, s33, 7168")
                A(f"s_add_u32 s33, s33, s35")
                A(f"s_and_b32 s34, s2, 1")
                A(f"s_mul_i32 s34, s34, 3584")
            else:
                A(f"s_mul_i32 s33, s33, 7168")
                A(f"s_bfe_u32 s34, s2, 0x20001")
                A(f"s_mul_i32 s34, s34, 1792")
            A(f"s_add_u32 s33, s33, s34")
            A(f"v_lshlrev_b32 v{vt}, 7, v0")
            A(f"v_add_u32 v{vt}, s33, v{vt}")
            A("s_mov_b64 exec, 0x3fff")
            A(f"global_load_dword v{XTRA + 40}, v{vt}, s[48:49]")
            A(f"global_load_dword v{XTRA + 40}, v{vt}, s[50:51]")
            A("s_mov_b64 exec, -1")
        srd(A, SRD_X, 4, WS_XM, 16384)
        row_token_addr(A, vt, 3)
        for tl in range(2):
            A(f"buffer_load_dword v{XM + tl}, v{vt}, s[{SRD_X}:{SRD_X+3}], 0 offen offset:{tl * 128}")

    def wb_reads(par, imm):
        return [f"ds_read_b128 {V(WBF + par * 8 + s2 * 4, 4)}, v{vWB} offset:{imm + s2 * 128}" for s2 in range(2)]

    def pre_reads():
        for l in wb_reads(0, 0): A(l)
        if opts.get("late2", 0): late_loads()

    def step_extra(par, s2, sl):
        if opts.get("x_nowb"): return []
        return [mfma16(V(MACC + tl * 4, 4), V(WBF + par * 8 + s2 * 4, 4), tslot(sl, s2, tl)) for tl in range(2)]

    def stage_reads(par, sl):
        if opts.get("x_nowb"): return []
        return wb_reads(par, (sl + 1) * 256)

    def iter_end():
        return [f"v_add_u32 v{vWB}, {U * 256}, v{vWB}"]

    def after_first():
        if not opts.get("late2", 0): late_loads()
        for i in range(8):
            A(f"v_mov_b32 v{MACC + i}, 0")

    gs_main(A, name, opts, 16, U, "B", 2048, tf_tloads, step_extra=step_extra, stage_reads=stage_reads,
            iter_end=iter_end, pre_reads=pre_reads, after_first_loads=after_first,
            extra_after=6 if opts.get("no_l2w") else 8)

    A("s_waitcnt vmcnt(0) lgkmcnt(0)")
    dlayout_lds_addr(A, vX, 37)
    for tl in range(2):
        for F in range(4):
            A(f"ds_read_b64 {V(XR + (tl * 4 + F) * 2, 2)}, v{vX + F} offset:{tl * 2048}")
    srd(A, SRD_O, 4, WS_MH, 8192)
    srd(A, SRD_T, 4, WS_HC, 4 * MB)
    srd(A, SRD_X, 4, WS_VP, 2048 * 64)
    A(f"s_lshl_b32 s34, s{sCB}, 18")
    vVP, vMH = XTRA + 32, XTRA + 33
    row_token_addr(A, vVP, 6)
    A(f"v_lshrrev_b32 v{vMH}, 4, v{vVP}")
    A(f"s_cmp_eq_u32 s{sCB}, 0")
    A(f"s_cselect_b32 s36, 0, 0x7ff00000")
    A(f"s_lshl_b32 s35, s{sCB}, 2")
    T = vt
    A("s_waitcnt lgkmcnt(0)")
    CP = RB[1]
    for tl in range(2):
        m = XM + tl
        A(f"v_add_f32 v{m}, v{m}, v{MACC + tl * 4}")
        A(f"v_add_f32 v{m}, v{m}, v{MACC + tl * 4 + 1}")
        ss = T + 3
        A(f"v_mov_b32 v{ss}, 0")
        for F in range(4):
            a = acc(F, tl).base
            x = XR + (tl * 4 + F) * 2
            dc = CP + tl * 8 + (F // 2) * 4 + (F % 2) * 2
            for q in range(2):
                A(f"v_lshlrev_b32 v{T}, 16, v{x + q}")
                A(f"v_and_b32 v{T+1}, 0xffff0000, v{x + q}")
                A(f"v_add_f32 v{a + 2*q}, v{a + 2*q}, v{T}")
                A(f"v_add_f32 v{a + 2*q + 1}, v{a + 2*q + 1}, v{T+1}")
                A(f"v_sub_f32 v{a + 2*q}, v{a + 2*q}, v{m}")
                A(f"v_sub_f32 v{a + 2*q + 1}, v{a + 2*q + 1}, v{m}")
                A(f"v_fmac_f32 v{ss}, v{a + 2*q}, v{a + 2*q}")
                A(f"v_fmac_f32 v{ss}, v{a + 2*q + 1}, v{a + 2*q + 1}")
                A(f"v_cvt_pk_bf16_f32 v{dc + q}, v{a + 2*q}, v{a + 2*q + 1}")
        for P in range(2):
            A(f"buffer_store_dwordx4 {V(CP + tl * 8 + P * 4, 4)}, v{vT0}, s[{SRD_T}:{SRD_T+3}], s34 offen offset:{tl * 2048 + P * 1024}")
        reduce_over_g(A, ss, T + 4)
        A("s_mov_b64 exec, 0xffff")
        A(f"buffer_store_dword v{ss}, v{vVP}, s[{SRD_X}:{SRD_X+3}], s35 offen offset:{tl * 16 * 64}")
        A(f"buffer_store_dword v{m}, v{vMH}, s[{SRD_O}:{SRD_O+3}], s36 offen offset:{tl * 64}")
        A("s_mov_b64 exec, -1")
        A("s_nop 1")
    return finish(A, name, opts, END, TRING + 16, U * 16)


QSCALE = (32 ** -0.5) * 1.4426950408889634


def gen_k1(A, name="k1_qkv_kernel", opts=None):
    opts = dict(opts or {})
    U = opts.get("U", 4)
    opts["tstride"] = 128
    opts.setdefault("rot", "zero")
    kernel_begin(A, name)
    END = f"L_{name}_end"
    A("s_cmp_ge_u32 s2, 256")
    A(f"s_cbranch_scc1 {END}")
    stamp(A, opts, 0)
    A(f"s_load_dwordx2 s[4:5], s[0:1], {KA_WS}")
    A(f"s_load_dwordx4 s[40:43], s[0:1], {KA_X}")
    A(f"s_load_dwordx4 s[48:51], s[0:1], {KA_WK}")
    A(f"s_load_dwordx2 s[52:53], s[0:1], {KA_WO}")
    ids(A, opts)
    set_rot(A, opts, 16)
    KVL = U * 8192
    QOFF = [61, 62, 63, 39]
    KVACC, CS, ONES, ST, vKV = XTRA, XTRA + 8, XTRA + 28, XTRA + 32, XTRA + 36
    KVF = TRING
    SUMA, SQA = TRING + 16, TRING + 24
    TB = TRING + 32
    WROW = TRING + 64
    vXm, vXr = TRING + 72, TRING + 76
    NV1 = TRING + 80
    XL = KVL + 32768
    A(f"s_lshl_b32 s33, s{sTB}, 2")
    A(f"s_add_u32 s33, s33, s{sW}")
    A(f"s_lshl_b32 s33, s33, 16")
    A(f"v_lshrrev_b32 v{vt}, 3, v0")
    A(f"v_lshlrev_b32 v{vt}, 11, v{vt}")
    A(f"v_add_u32 v{vt}, s33, v{vt}")
    A(f"v_and_b32 v{vt+1}, 7, v0")
    A(f"v_lshrrev_b32 v{vt+2}, 4, v0")
    A(f"v_xor_b32 v{vt+1}, v{vt+1}, v{vt+2}")
    A(f"v_lshl_add_u32 v{vXm}, v{vt+1}, 4, v{vt}")
    A(f"v_xor_b32 v{vt+1}, 4, v{vt+1}")
    A(f"v_lshl_add_u32 v{vXm+1}, v{vt+1}, 4, v{vt}")
    A(f"v_add_u32 v{vXm+2}, {2 * (16384 - 1024)}, v{vXm}")
    A(f"v_add_u32 v{vXm+3}, {3 * (16384 - 1024)}, v{vXm+1}")
    A(f"v_add_u32 v{vXm+1}, {16384 - 1024}, v{vXm+1}")
    A(f"s_lshl_b32 s60, s{sW}, 12")
    A(f"s_add_u32 s60, s60, {XL}")
    A(f"v_and_b32 v{vt}, 15, v0")
    A(f"v_lshrrev_b32 v{vt+1}, 1, v{vt}")
    A(f"v_lshrrev_b32 v{vt+2}, 4, v0")
    A(f"v_xor_b32 v{vt+1}, v{vt+1}, v{vt+2}")
    A(f"v_lshlrev_b32 v{vt+1}, 4, v{vt+1}")
    A(f"v_lshl_add_u32 v{vXr}, v{vt}, 7, v{vt+1}")
    A(f"v_add_u32 v{vXr}, s60, v{vXr}")
    A(f"v_xor_b32 v{vXr+1}, 64, v{vXr}")

    def x_dma(slot):
        out = [[f"s_add_u32 m0, s60, {slot * 16384}", "s_nop 0",
                f"buffer_load_dwordx4 v{vXm}, s[{SRD_T}:{SRD_T+3}], s{sToff} offen lds"]]
        for m in range(1, 4):
            out.append([f"buffer_load_dwordx4 v{vXm+m}, s[{SRD_T}:{SRD_T+3}], s{sToff} offen offset:{m * 1024} lds"])
        return out

    def x_frag(par, s2, tl):
        return V(TB + par * 16 + s2 * 8 + tl * 4, 4)

    def x_reads(par, slot):
        return [f"ds_read_b128 {x_frag(par, s2, tl)}, v{vXr + s2} offset:{slot * 16384 + tl * 2048}" for s2 in range(2) for tl in range(2)]

    tlds = dict(dma=x_dma, reads=x_reads, frag=x_frag)
    w_setup(A, "N", 2048, rotf=True)
    A("s_waitcnt lgkmcnt(0)")
    xstamp(A, opts, "karg")
    srd(A, SRD_T, 40, 0, 2048 * 2048)
    srd(A, SRD_W, 42, 0, 1024 * 2048)
    l2_sweep(A, opts, SRD_T, "rows", SRD_W, XTRA + 38)
    SKIPKV = f"L_{name}_skipkv"
    A(f"s_cmp_ge_u32 s{sCB}, 4")
    A(f"s_cbranch_scc1 {SKIPKV}")
    A(f"s_cmp_lt_u32 s{sCB}, 2")
    A("s_cselect_b32 s46, s48, s50")
    A("s_cselect_b32 s47, s49, s51")
    srd(A, SRD_X, 46, 0, 1024 * 64)
    A(f"v_lshrrev_b32 v{vt}, 1, v0")
    A(f"v_and_b32 v{vt+1}, 0x13, v{vt}")
    A(f"v_bfe_u32 v{vt+2}, v{vt}, 2, 1")
    A(f"v_lshl_or_b32 v{vt+1}, v{vt+2}, 3, v{vt+1}")
    A(f"v_bfe_u32 v{vt+2}, v{vt}, 3, 1")
    A(f"v_lshl_or_b32 v{vt+1}, v{vt+2}, 2, v{vt+1}")
    A(f"v_lshlrev_b32 v{vt+1}, 6, v{vt+1}")
    A(f"v_and_b32 v{vt+2}, 1, v0")
    A(f"v_lshl_add_u32 v{vt+1}, v{vt+2}, 4, v{vt+1}")
    A(f"s_and_b32 s33, s{sCB}, 1")
    A(f"s_lshl_b32 s33, s33, 5")
    A(f"v_add_u32 v{vt+1}, s33, v{vt+1}")
    A(f"s_lshl_b32 s34, s{sW}, 13")
    A(f"s_add_u32 s34, s34, {KVL}")
    A(f"s_lshl_b32 s35, s{sW}, 3")
    A(f"s_lshl_b32 s37, s{sRot}, 1")
    A(f"s_add_u32 s35, s35, s37")
    for m in range(8):
        A(f"s_add_u32 m0, s34, {m * 1024}")
        A(f"s_add_u32 s36, s35, {m}")
        A(f"s_and_b32 s36, s36, 31")
        A(f"s_lshl_b32 s36, s36, 11")
        A(f"buffer_load_dwordx4 v{vt+1}, s[{SRD_X}:{SRD_X+3}], s36 offen lds")
    A.label(SKIPKV)
    A(f"v_lshrrev_b32 v{vt}, 4, v0")
    A(f"v_lshrrev_b32 v{vt+1}, 1, v{vt}")
    A(f"v_lshlrev_b32 v{vt+1}, 4, v{vt+1}")
    A(f"v_and_b32 v{vt}, 1, v{vt}")
    A(f"v_lshl_add_u32 v{vt+1}, v{vt}, 2, v{vt+1}")
    A(f"v_bfe_u32 v{vt}, v0, 2, 2")
    A(f"v_add_u32 v{vt+1}, v{vt+1}, v{vt}")
    A(f"v_lshlrev_b32 v{vt+1}, 5, v{vt+1}")
    A(f"v_and_b32 v{vt}, 3, v0")
    A(f"v_lshl_add_u32 v{vKV}, v{vt}, 3, v{vt+1}")
    A(f"v_add_u32 v{vKV}, {KVL}, v{vKV}")

    def after_first():
        srd(A, SRD_X, 52, 0, 1024 * 2048)
        A(f"s_lshl_b32 s54, s2, 2")
        A(f"s_add_u32 s54, s54, s{sW}")
        A(f"s_lshl_b32 s33, s54, 11")
        A(f"v_lshlrev_b32 v{vt}, 5, v0")
        A(f"buffer_load_dwordx4 {V(WROW, 4)}, v{vt}, s[{SRD_X}:{SRD_X+3}], s33 offen")
        A(f"buffer_load_dwordx4 {V(WROW + 4, 4)}, v{vt}, s[{SRD_X}:{SRD_X+3}], s33 offen offset:16")
        for i in range(8 + 20):
            A(f"v_mov_b32 v{KVACC + i}, 0")
        for i in range(4):
            A(f"v_mov_b32 v{ONES + i}, 0x3f803f80")
        for i in range(16):
            A(f"v_mov_b32 v{SUMA + i}, 0")

    def wbar_job():
        A(f"v_mov_b32 v{vt}, 0")
        for i in range(8):
            A(f"v_dot2c_f32_bf16 v{vt}, v{WROW + i}, v{ONES}")
        A("s_nop 2")
        for sh in (8, 4, 2, 1):
            A(f"v_add_f32_dpp v{vt}, v{vt}, v{vt} row_ror:{sh} row_mask:0xf bank_mask:0xf")
            A("s_nop 1")
        reduce_over_g(A, vt, vt + 1)
        A(f"v_mul_f32 v{vt}, {f32hex(1.0 / 1024)}, v{vt}")
        A(f"v_cvt_pk_bf16_f32 v{vt+1}, v{vt}, v{vt}")
        A(f"v_lshlrev_b32 v{vt+2}, 16, v{vt+1}")
        A(f"v_sub_f32 v{vt+2}, v{vt}, v{vt+2}")
        A(f"v_cvt_pk_bf16_f32 v{vt+2}, v{vt+2}, v{vt+2}")
        A("s_lshr_b32 s33, s54, 5"); A("s_lshl_b32 s33, s33, 7")
        A("s_bfe_u32 s34, s54, 0x10004"); A("s_lshl_b32 s34, s34, 5"); A("s_add_u32 s33, s33, s34")
        A("s_bfe_u32 s34, s54, 0x10002"); A("s_lshl_b32 s34, s34, 4"); A("s_add_u32 s33, s33, s34")
        A("s_bfe_u32 s34, s54, 0x10003"); A("s_lshl_b32 s34, s34, 3"); A("s_add_u32 s33, s33, s34")
        A("s_and_b32 s34, s54, 3"); A("s_lshl_b32 s34, s34, 1"); A("s_add_u32 s33, s33, s34")
        srd(A, SRD_X, 4, WS_WB, 4096)
        A(f"v_mov_b32 v{vt+3}, 0")
        A(f"buffer_store_short v{vt+1}, v{vt+3}, s[{SRD_X}:{SRD_X+3}], s33 offen")
        A(f"buffer_store_short v{vt+2}, v{vt+3}, s[{SRD_X}:{SRD_X+3}], s33 offen offset:64")

    def kv_reads(par, imm):
        return [f"ds_read_b64_tr_b16 {V(KVF + par * 8 + s2 * 4 + 2 * i, 2)}, v{vKV} offset:{imm + s2 * 1024 + i * 256}"
                for s2 in range(2) for i in range(2)]

    def pre_reads():
        for l in kv_reads(0, 0): A(l)

    def stage_reads(par, sl):
        return kv_reads(par, (sl + 1) * 2048)

    def step_extra(par, s2, sl):
        xm = []
        kvf = V(KVF + par * 8 + s2 * 4, 4)
        for tl in range(2):
            xm.append(mfma16(V(KVACC + tl * 4, 4), kvf, x_frag(par, s2, tl)))
        xm.append(mfma16(V(CS, 4), wfrag(par, s2, 0), V(ONES, 4)))
        xm.append(mfma16(V(CS + 16, 4), kvf, V(ONES, 4)))
        for tl in range(2):
            xm.append(mfma16(V(SUMA + tl * 4, 4), V(ONES, 4), x_frag(par, s2, tl)))
            xm.append(mfma16(V(SQA + tl * 4, 4), x_frag(par, s2, tl), x_frag(par, s2, tl)))
        return xm

    def iter_end():
        return [f"v_add_u32 v{vKV}, {U * 2048}, v{vKV}"]

    gs_main(A, name, opts, 16, U, "N", 2048, None, step_extra=step_extra, stage_reads=stage_reads,
            iter_end=iter_end, pre_reads=pre_reads, after_first_loads=after_first, extra_after=2, tlds=tlds)

    A("s_waitcnt vmcnt(0) lgkmcnt(0)")
    T = vt
    CSL = XL + U * 16384
    A(f"v_lshrrev_b32 v{T}, 4, v0")
    A(f"v_lshlrev_b32 v{T}, 4, v{T}")
    A(f"s_lshl_b32 s33, s{sW}, 6")
    A(f"s_add_u32 s33, s33, {CSL}")
    A(f"v_add_u32 v{T+1}, s33, v{T}")
    A(f"ds_write_b128 v{T+1}, {V(CS, 4)}")
    A("s_waitcnt lgkmcnt(0)")
    A("s_barrier")
    for F in range(4):
        A(f"s_add_u32 s33, s{sW}, {F}")
        A(f"s_and_b32 s33, s33, 3")
        A(f"s_lshl_b32 s33, s33, 6")
        A(f"s_add_u32 s33, s33, {CSL}")
        A(f"v_add_u32 v{T+1}, s33, v{T}")
        A(f"ds_read_b128 {V(CS + 4 * F, 4)}, v{T+1}")
    MR = RB[0]
    A(f"v_and_b32 v{T}, 3, v0")
    A(f"v_bfe_u32 v{T+1}, v0, 2, 2")
    A(f"v_lshrrev_b32 v{T+2}, 4, v0")
    A(f"v_cmp_eq_u32 s[34:35], v{T+1}, v{T+2}")
    A(f"v_cmp_eq_u32 s[36:37], 1, v{T}")
    A(f"v_cmp_eq_u32 s[38:39], 2, v{T}")
    A(f"v_cmp_eq_u32 s[46:47], 3, v{T}")
    for tl in range(2):
        q = SQA + tl * 4
        A(f"v_cndmask_b32 v{ST + 2 + tl}, v{q}, v{q+1}, s[36:37]")
        A(f"v_cndmask_b32 v{ST + 2 + tl}, v{ST + 2 + tl}, v{q+2}, s[38:39]")
        A(f"v_cndmask_b32 v{ST + 2 + tl}, v{ST + 2 + tl}, v{q+3}, s[46:47]")
        A(f"v_cndmask_b32 v{ST + 2 + tl}, 0, v{ST + 2 + tl}, s[34:35]")
        A(f"v_mov_b32 v{ST + tl}, v{SUMA + tl * 4}")
    for tl in range(2):
        reduce_over_g(A, ST + 2 + tl, T)
        A(f"v_mul_f32 v{MR + tl}, {f32hex(1.0 / 1024)}, v{ST + tl}")
        A(f"v_mul_f32 v{T}, {f32hex(1.0 / 1024)}, v{ST + 2 + tl}")
        A(f"v_fma_f32 v{T}, -v{MR + tl}, v{MR + tl}, v{T}")
        A(f"v_add_f32 v{T}, {f32hex(EPS)}, v{T}")
        A(f"v_rsq_f32 v{MR + 2 + tl}, v{T}")
    srd(A, SRD_X, 4, WS_XM, 8192)
    row_token_addr(A, T, 2)
    for tl in range(2):
        A(f"buffer_store_dword v{MR + tl}, v{T}, s[{SRD_X}:{SRD_X+3}], 0 offen offset:{tl * 64}")
    srd(A, SRD_O, 4, WS_Q, 4 * MB)
    vQ = MR + 4
    A(f"v_lshrrev_b32 v{T}, 5, v0")
    A(f"v_lshlrev_b32 v{vQ}, 9, v{T}")
    A(f"v_bfe_u32 v{T}, v0, 4, 1")
    A(f"v_lshl_add_u32 v{vQ}, v{T}, 3, v{vQ}")
    A(f"v_and_b32 v{T}, 15, v0")
    A(f"v_lshl_add_u32 v{vQ}, v{T}, 4, v{vQ}")
    A(f"s_lshl_b32 s33, s{sTB}, 2")
    A(f"s_add_u32 s33, s33, s{sW}")
    A(f"s_lshl_b32 s34, s{sCB}, 7")
    A(f"s_add_u32 s34, s34, s33")
    A(f"s_lshl_b32 s34, s34, 11")
    for F in range(4):
        A(f"s_add_u32 s35, s{sW}, {F}")
        A(f"s_and_b32 s35, s35, 3")
        A(f"s_lshr_b32 s36, s35, 1")
        A(f"s_lshl_b32 s36, s36, 17")
        A(f"s_and_b32 s35, s35, 1")
        A(f"s_lshl_b32 s35, s35, 10")
        A(f"s_add_u32 s35, s35, s36")
        A(f"s_add_u32 s{QOFF[F]}, s34, s35")
    SC = MR + 6
    for tl in range(2):
        A(f"v_mul_f32 v{SC + tl}, {f32hex(QSCALE)}, v{MR + 2 + tl}")
    QN = MR + 10
    A("s_waitcnt lgkmcnt(0)")
    for tl in range(2):
        for F in range(4):
            a = acc(F, tl).base
            n = QN + tl * 4 + F
            for r in range(4):
                A(f"v_fma_f32 v{a + r}, -v{MR + tl}, v{CS + F * 4 + r}, v{a + r}")
                A(f"v_mul_f32 v{a + r}, v{SC + tl}, v{a + r}")
            A(f"v_mul_f32 v{n}, v{a}, v{a}")
            for r in range(1, 4):
                A(f"v_fmac_f32 v{n}, v{a + r}, v{a + r}")
            A(f"v_cvt_pk_bf16_f32 v{a}, v{a}, v{a+1}")
            A(f"v_cvt_pk_bf16_f32 v{a+1}, v{a+2}, v{a+3}")
            A(f"buffer_store_dwordx2 {V(a, 2)}, v{vQ}, s[{SRD_O}:{SRD_O+3}], s{QOFF[F]} offen offset:{tl * 256}")
    A(f"s_and_b32 s35, s{sW}, 1")
    A(f"s_cmp_eq_u32 s35, 1")
    A(f"s_cselect_b64 s[36:37], -1, 0")
    for tl in range(2):
        n = QN + tl * 4
        A(f"v_cndmask_b32 v{T}, v{n+1}, v{n+3}, s[36:37]")
        A(f"v_cndmask_b32 v{T+1}, v{n+3}, v{n+1}, s[36:37]")
        A(f"v_add_f32 v{n}, v{n}, v{T}")
        A(f"v_add_f32 v{n+1}, v{n+2}, v{T+1}")
    for tl in range(2):
        for x in range(2):
            reduce_over_g(A, QN + tl * 4 + x, T)
    A(f"v_max_f32 v{QN}, v{QN}, v{QN+1}")
    A(f"v_max3_f32 v{QN}, v{QN}, v{QN+4}, v{QN+5}")
    for sh in (8, 4, 2, 1):
        A("s_nop 1")
        A(f"v_max_f32_dpp v{QN}, v{QN}, v{QN} row_ror:{sh} row_mask:0xf bank_mask:0xf")
    srd(A, SRD_X, 4, WS_QN, 4096)
    A(f"s_lshl_b32 s35, s{sTB}, 4")
    A(f"s_add_u32 s35, s35, s{sCB}")
    A(f"s_lshl_b32 s35, s35, 2")
    A(f"s_add_u32 s35, s35, s{sW}")
    A(f"s_lshl_b32 s35, s35, 2")
    A(f"v_mov_b32 v{T}, 0")
    A(f"buffer_store_dword v{QN}, v{T}, s[{SRD_X}:{SRD_X+3}], s35 offen")
    DONE = f"L_{name}_done"
    ISV = f"L_{name}_isv"
    NRM = f"L_{name}_nrm"
    A(f"s_cmp_ge_u32 s{sCB}, 4")
    A(f"s_cbranch_scc1 {DONE}")
    srd(A, SRD_O, 4, WS_KV, 256 * 1024)
    NS = MR + 8
    for tl in range(2):
        a = KVACC + tl * 4
        A(f"v_mov_b32 v{NS + tl}, 0")
        for r in range(4):
            A(f"v_fma_f32 v{a + r}, -v{MR + tl}, v{CS + 16 + r}, v{a + r}")
            A(f"v_mul_f32 v{a + r}, v{MR + 2 + tl}, v{a + r}")
            A(f"v_fmac_f32 v{NS + tl}, v{a + r}, v{a + r}")
        A(f"v_cvt_pk_bf16_f32 v{a}, v{a}, v{a+1}")
        A(f"v_cvt_pk_bf16_f32 v{a+1}, v{a+2}, v{a+3}")
    A(f"s_lshl_b32 s33, s33, 12")
    A(f"s_cmp_ge_u32 s{sCB}, 2")
    A(f"s_cbranch_scc1 {ISV}")
    A(f"s_lshl_b32 s34, s{sCB}, 10")
    A(f"s_add_u32 s33, s33, s34")
    for tl in range(2):
        A(f"buffer_store_dwordx2 {V(KVACC + tl * 4, 2)}, v{vQ}, s[{SRD_O}:{SRD_O+3}], s33 offen offset:{tl * 256}")
    A(f"s_branch {NRM}")
    A.label(ISV)
    A(f"s_and_b32 s34, s{sCB}, 1")
    A(f"s_lshl_b32 s34, s34, 8")
    A(f"s_add_u32 s33, s33, s34")
    A(f"s_add_u32 s33, s33, 2048")
    A(f"v_bfe_u32 v{T}, v0, 2, 1")
    A(f"v_lshlrev_b32 v{T+1}, 9, v{T}")
    A(f"v_lshrrev_b32 v{T}, 4, v0")
    A(f"v_lshl_add_u32 v{T+1}, v{T}, 6, v{T+1}")
    A(f"v_bfe_u32 v{T}, v0, 3, 1")
    A(f"v_lshl_add_u32 v{T+1}, v{T}, 3, v{T+1}")
    A(f"v_and_b32 v{T}, 3, v0")
    A(f"v_lshl_add_u32 v{T+1}, v{T}, 1, v{T+1}")
    for tl in range(2):
        a = KVACC + tl * 4
        for r in range(4):
            op = "buffer_store_short" if r % 2 == 0 else "buffer_store_short_d16_hi"
            A(f"{op} v{a + r // 2}, v{T+1}, s[{SRD_O}:{SRD_O+3}], s33 offen offset:{tl * 1024 + r * 16}")
    A.label(NRM)
    for tl in range(2):
        reduce_over_g(A, NS + tl, T + 2)
    A(f"v_max_f32 v{NS}, v{NS}, v{NS+1}")
    A("s_nop 1")
    for sh in (8, 4, 2, 1):
        A(f"v_max_f32_dpp v{NS}, v{NS}, v{NS} row_ror:{sh} row_mask:0xf bank_mask:0xf")
        A("s_nop 1")
    srd(A, SRD_X, 4, WS_NRM, 1024)
    A(f"s_lshl_b32 s33, s{sCB}, 6")
    A(f"s_lshl_b32 s34, s{sTB}, 2")
    A(f"s_add_u32 s33, s33, s34")
    A(f"s_add_u32 s33, s33, s{sW}")
    A(f"s_lshl_b32 s33, s33, 2")
    A(f"v_mov_b32 v{T}, 0")
    A(f"buffer_store_dword v{NS}, v{T}, s[{SRD_X}:{SRD_X+3}], s33 offen")
    A.label(DONE)
    wbar_job()
    return finish(A, name, opts, END, NV1)
```

```python
from gen_common import *

QSCALE = (32 ** -0.5) * 1.4426950408889634
T_BOUND = 80.0
V_BOUND2 = 2.0 ** 60


def wave_max(A, reg, tmp):
    for sh in (8, 4, 2, 1):
        A("s_nop 1")
        A(f"v_max_f32_dpp v{reg}, v{reg}, v{reg} row_ror:{sh} row_mask:0xf bank_mask:0xf")
    for sw in ("16", "32"):
        A(f"v_mov_b32 v{tmp}, v{reg}")
        A("s_nop 1")
        A(f"v_permlane{sw}_swap_b32 v{reg}, v{tmp}")
        A(f"v_max_f32 v{reg}, v{reg}, v{tmp}")


def n_prefetch(opts):
    return 0 if opts.get("no_pf") else 4


PK = 156
vPS, vPD = 184, 185


def side_setup(A, opts, sW, vt):
    A(f"s_lshl_b32 s33, s2, 2")
    A(f"s_and_b32 s34, s{sW}, 3")
    A(f"s_add_u32 s33, s33, s34")
    A(f"s_mul_i32 s34, s33, {56 * 128}")
    A(f"v_lshlrev_b32 v{vt}, 7, v0")
    A(f"v_add_u32 v155, s34, v{vt}")
    A("s_mov_b32 s92, 3584")
    srd(A, 48, 88, 0, 3584 * 2048)
    srd(A, 52, 4, WS_WD, 3584 * 2048)
    A("s_mov_b32 s93, s33")
    A(f"v_lshrrev_b32 v{vt}, 3, v0")
    A(f"v_lshlrev_b32 v{vt}, 11, v{vt}")
    A(f"v_and_b32 v{vt+1}, 7, v0")
    A(f"v_bfe_u32 v{vt+2}, v0, 4, 2")
    A(f"v_lshlrev_b32 v{vt+2}, 1, v{vt+2}")
    A(f"v_xor_b32 v{vt+1}, v{vt+1}, v{vt+2}")
    A(f"v_lshl_add_u32 v{vPS}, v{vt+1}, 4, v{vt}")
    A(f"v_lshlrev_b32 v{vPD}, 4, v0")


def pack_loads(A, opts, lo, hi):
    for i in range(lo, hi):
        if opts.get("x_nopackld"): continue
        A(f"s_add_u32 s34, s93, {1024 * i}")
        A("s_mul_i32 s35, s34, 9363")
        A("s_lshr_b32 s35, s35, 22")
        A("s_mul_i32 s36, s35, 448")
        A("s_sub_u32 s34, s34, s36")
        if opts.get("grp", 1):
            A("s_lshr_b32 s36, s34, 2")
            A("s_and_b32 s34, s34, 3")
            A("s_cmp_ge_u32 s36, 56")
            A("s_cselect_b32 s37, 56, 0")
            A("s_sub_u32 s36, s36, s37")
            A("s_lshr_b32 s46, s36, 2")
            A("s_and_b32 s47, s36, 3")
            A("s_sub_u32 s62, s36, 32")
            A("s_mul_i32 s63, s62, 43")
            A("s_lshr_b32 s63, s63, 7")
            A("s_mul_i32 s90, s63, 3")
            A("s_sub_u32 s62, s62, s90")
            A("s_add_u32 s90, s62, 2")
            A("s_cmp_lt_u32 s36, 32")
            A("s_cselect_b32 s46, s46, s63")
            A("s_cselect_b32 s90, s47, s90")
            A("s_cselect_b32 s47, s47, s62")
            A("s_lshr_b32 s47, s47, 1")
            A("s_lshl_b32 s47, s47, 1")
            A("s_add_u32 s90, s90, s47")
            A("s_mul_i32 s46, s46, 7")
            A("s_add_u32 s46, s46, s90")
            A("s_add_u32 s46, s46, s37")
            A("s_lshl_b32 s46, s46, 2")
            A("s_add_u32 s34, s34, s46")
        A("s_lshl_b32 s34, s34, 14")
        A("s_lshl_b32 s35, s35, 7")
        A("s_add_u32 s35, s35, s34")
        A(f"buffer_load_dwordx4 v[{PK + 4*i}:{PK + 4*i + 3}], v{vPS}, s[48:51], s35 offen")


def prefetch_step(opts, name):
    if opts.get("x_nogather"): return []
    return [["s_mov_b64 exec, 0xfffffff", "global_load_dword v154, v155, s[84:85]", "s_mov_b64 exec, -1"],
            ["v_add_u32 v155, s92, v155", "s_sub_u32 s92, 0, s92",
             "s_cmp_gt_i32 s92, 0",
             "s_cselect_b32 s84, s86, s84", "s_cselect_b32 s85, s87, s85"]]


def l2_prefetch(A, opts, sW, vt, part):
    if opts.get("no_pf"):
        A("s_nop 0")
        return
    A("s_lshr_b32 s33, s2, 3")
    A("s_lshl_b32 s33, s33, 2")
    A(f"s_and_b32 s34, s{sW}, 3")
    A(f"s_add_u32 s33, s33, s34")
    A("s_lshl_b32 s34, s33, 13")
    if part:
        A("s_add_u32 s34, s34, 0x100000")
    A(f"v_lshlrev_b32 v{vt}, 7, v0")
    A(f"v_add_u32 v{vt+1}, s34, v{vt}")
    A(f"global_load_dword v154, v{vt+1}, s[80:81]")
    if part:
        A("s_lshl_b32 s34, s33, 12")
        A("s_and_b32 s35, s2, 7")
        A("s_lshl_b32 s35, s35, 19")
        A("s_add_u32 s34, s34, s35")
        A(f"v_add_u32 v{vt+1}, s34, v{vt}")
        A("s_mov_b32 exec_lo, -1"); A("s_mov_b32 exec_hi, 0")
        A(f"global_load_dword v154, v{vt+1}, s[98:99]")
        A("s_mov_b64 exec, -1")


def once_jobs(A, opts, name, tag, sW, vt):
    L = lambda x: f"L_{name}_{x}{tag}"
    A("s_cmp_ge_u32 s44, 2")
    A(f"s_cbranch_scc1 {L('j')}")
    A.label(L('go'))
    ng = opts.get("x_nogather")

    def stores(lo, hi):
        for i in range(lo, hi):
            if opts.get("x_nopackst"): continue
            A(f"s_add_u32 s35, s93, {1024 * i}")
            A("s_lshl_b32 s35, s35, 10")
            A(f"buffer_store_dwordx4 v[{PK + 4*i}:{PK + 4*i + 3}], v{vPD}, s[52:55], s35 offen {opts.get('packflag', 'sc1')}")

    def outline():
        A.label(L('j'))
        plan = {8: (None, None, (0, 2), None), 7: (None, None, (2, 4), None), 6: (None, None, (4, 5), None),
                5: (6, (0, 2), (5, 6), None), 4: (7, (2, 4), (6, 7), None), 3: (5, (4, 6), None, 0), 2: (4 if opts.get('no_pf') else 5, (6, 7), None, 1)}
        for k in (8, 7, 6, 5, 4, 3, 2):
            wait, st, ld, pf = plan[k]
            if k > 2:
                A(f"s_cmp_lg_u32 s44, {k}")
                A(f"s_cbranch_scc1 {L('n' + str(k))}")
            if wait is not None:
                A(f"s_waitcnt vmcnt({0 if ng else wait})")
            if st: stores(*st)
            if ld: pack_loads(A, opts, *ld)
            if pf is not None: l2_prefetch(A, opts, sW, vt, pf)
            A(f"s_branch {L('go')}")
            if k > 2:
                A.label(L('n' + str(k)))
    return outline


def reduce_over_g(A, reg, tmp, op="v_add_f32"):
    for sw in ("16", "32"):
        A(f"v_mov_b32 v{tmp}, v{reg}")
        A("s_nop 1")
        A(f"v_permlane{sw}_swap_b32 v{reg}, v{tmp}")
        A(f"{op} v{reg}, v{reg}, v{tmp}")


def phase_a(A, opts, name, sW, SCR, hook, hook2, hook0):
    sTF, sKV, sROW = 31, 32, 38
    SRD_X, SRD_W, SRD_O, SRD_N = 8, 12, 16, 20
    XL, WL = 0, 32768
    vt = 2
    T = 16
    WF = 32
    SUM, GR = 96, 100
    ONES = 112
    D = 116
    WROW = 124
    A(f"s_lshr_b32 s{sTF}, s2, 1")
    A(f"s_and_b32 s{sKV}, s2, 1")
    srd(A, SRD_X, 98, 0, 2048 * 2048)
    A(f"v_lshrrev_b32 v{vt}, 4, v0")
    A(f"v_and_b32 v{vt+1}, 15, v0")
    A(f"s_lshl_b32 s33, s{sTF}, 15")
    A(f"s_lshl_b32 s34, s{sW}, 8")
    A(f"s_add_u32 s33, s33, s34")
    A(f"s_lshl_b32 s35, s{sW}, 12")
    for m in range(4):
        A(f"v_add_u32 v{vt+2}, {4 * m}, v{vt}")
        A(f"v_xor_b32 v{vt+3}, v{vt+2}, v{vt+1}")
        A(f"v_lshlrev_b32 v{vt+3}, 4, v{vt+3}")
        A(f"v_lshl_add_u32 v{vt+3}, v{vt+2}, 11, v{vt+3}")
        A(f"s_add_u32 m0, s35, {XL + m * 1024}")
        A("s_nop 0")
        A(f"buffer_load_dwordx4 v{vt+3}, s[{SRD_X}:{SRD_X+3}], s33 offen lds")
    A(f"s_cmp_eq_u32 s{sKV}, 0")
    A("s_cselect_b32 s6, s40, s42")
    A("s_cselect_b32 s7, s41, s43")
    srd(A, SRD_W, 6, 0, 1024 * 64)
    A(f"v_bfe_u32 v{vt+2}, v0, 1, 1")
    A(f"v_lshrrev_b32 v{vt+3}, 5, v0")
    A(f"v_xor_b32 v{vt+2}, v{vt+2}, v{vt+3}")
    A(f"v_and_b32 v{vt+3}, 1, v0")
    A(f"v_lshl_or_b32 v{vt+2}, v{vt+2}, 1, v{vt+3}")
    A(f"v_lshrrev_b32 v{vt+3}, 2, v0")
    A(f"v_lshlrev_b32 v{vt+3}, 6, v{vt+3}")
    A(f"v_lshl_add_u32 v{vt+4}, v{vt+2}, 4, v{vt+3}")
    A(f"s_lshl_b32 s34, s{sW}, 13")
    A(f"s_mov_b32 s39, s34")

    def w_fill(lo, hi):
        for m in range(lo, hi):
            if m % 4 == 0:
                A(f"s_add_u32 m0, s39, {WL + m * 1024}")
                A(f"s_add_u32 s36, s39, {m * 1024}")
            A(f"buffer_load_dwordx4 v15, s[{SRD_W}:{SRD_W+3}], s36 offen offset:{(m % 4) * 1024} lds")
    A(f"v_mov_b32 v15, v{vt+4}")
    w_fill(0, 4)

    def late_fills():
        w_fill(4, 8)
        srd(A, SRD_N, 80, 0, 1024 * 2048)
        A(f"s_lshl_b32 s{sROW}, s2, 2")
        A(f"s_and_b32 s33, s{sW}, 3")
        A(f"s_add_u32 s{sROW}, s{sROW}, s33")
        A(f"s_lshl_b32 s33, s{sROW}, 11")
        A(f"s_cmp_ge_u32 s{sW}, 4")
        A(f"s_cselect_b32 s33, s33, 0x7ff00000")
        A(f"v_lshlrev_b32 v{vt+2}, 5, v0")
        A(f"buffer_load_dwordx4 {V(WROW, 4)}, v{vt+2}, s[{SRD_N}:{SRD_N+3}], s33 offen")
        A(f"buffer_load_dwordx4 {V(WROW + 4, 4)}, v{vt+2}, s[{SRD_N}:{SRD_N+3}], s33 offen offset:16")
        srd(A, SRD_N, 60, 0, 1024 * 2048)
        A(f"v_lshlrev_b32 v{vt+2}, 7, v0")
        A("s_mov_b64 exec, 0xffff")
        A(f"buffer_load_dword v{vt+10}, v{vt+2}, s[{SRD_N}:{SRD_N+3}], s33 offen")
        A("s_mov_b64 exec, -1")

    xstamp(A, opts, "aissued")
    hook0()
    for i in range(4):
        A(f"v_mov_b32 v{ONES + i}, 0x3f803f80")
    for i in range(0, 8, 2):
        A(f"v_mov_b64 v[{SUM + i}:{SUM + i + 1}], 0")
        A(f"v_mov_b64 v[{D + i}:{D + i + 1}], 0")
    A(f"v_and_b32 v{vt}, 15, v0")
    A(f"v_lshrrev_b32 v{vt+1}, 4, v0")
    A(f"v_xor_b32 v{vt+2}, v{vt}, v{vt+1}")
    A(f"v_lshlrev_b32 v{vt+2}, 4, v{vt+2}")
    A(f"v_lshl_add_u32 v{vt+2}, v{vt}, 8, v{vt+2}")
    A(f"v_add_u32 v{vt+2}, s35, v{vt+2}")
    A("s_waitcnt vmcnt(4)")
    xstamp(A, opts, "axin")
    hook()
    for s in range(4):
        A(f"v_xor_b32 v{vt+3}, {s << 6}, v{vt+2}")
        A(f"ds_read_b128 {V(T + 4 * s, 4)}, v{vt+3}")
    for s in range(4):
        A(f"s_waitcnt lgkmcnt({3 - s})")
        A(mfma16(V(SUM, 4), V(ONES, 4), V(T + 4 * s, 4)))
        A(mfma16(V(GR, 4), V(T + 4 * s, 4), V(T + 4 * s, 4)))
    late_fills()
    A(f"v_and_b32 v{vt+3}, 3, v0")
    A(f"v_bfe_u32 v{vt+4}, v0, 2, 2")
    A(f"v_cmp_eq_u32 s[34:35], v{vt+4}, v{vt+1}")
    A(f"v_cmp_eq_u32 s[36:37], 1, v{vt+3}")
    A(f"v_cmp_eq_u32 s[42:43], 2, v{vt+3}")
    A(f"v_cmp_eq_u32 s[96:97], 3, v{vt+3}")
    A("s_nop 3")
    A(f"v_cndmask_b32 v{vt+5}, v{GR}, v{GR+1}, s[36:37]")
    A(f"v_cndmask_b32 v{vt+5}, v{vt+5}, v{GR+2}, s[42:43]")
    A(f"v_cndmask_b32 v{vt+5}, v{vt+5}, v{GR+3}, s[96:97]")
    A(f"v_cndmask_b32 v{vt+5}, 0, v{vt+5}, s[34:35]")
    reduce_over_g(A, vt + 5, vt + 6)
    A(f"v_mov_b32 v{vt+4}, v{SUM}")
    A(f"s_lshl_b32 s33, s{sW}, 7")
    A(f"s_add_u32 s33, s33, {SCR}")
    A(f"v_lshlrev_b32 v{vt+6}, 3, v{vt}")
    A(f"v_add_u32 v{vt+7}, s33, v{vt+6}")
    A(f"ds_write_b64 v{vt+7}, {V(vt + 4, 2)}")
    A("s_waitcnt lgkmcnt(0)")
    A("s_barrier")
    A(f"v_add_u32 v{vt+7}, {SCR}, v{vt+6}")
    for w in range(8):
        A(f"ds_read_b64 {V(SUM + 2 * w, 2)}, v{vt+7} offset:{w * 128}")
    A(f"v_lshrrev_b32 v{vt+4}, 4, v0")
    A(f"v_bfe_u32 v{vt+5}, v0, 2, 2")
    A(f"v_lshl_add_u32 v{vt+5}, v{vt+4}, 3, v{vt+5}")
    A(f"v_lshlrev_b32 v{vt+5}, 6, v{vt+5}")
    A(f"v_and_b32 v{vt+6}, 3, v0")
    A(f"v_lshl_add_u32 v{vt+5}, v{vt+6}, 3, v{vt+5}")
    A(f"v_and_b32 v{vt+4}, 1, v{vt+4}")
    A(f"v_lshl_add_u32 v{vt+5}, v{vt+4}, 5, v{vt+5}")
    A(f"s_lshl_b32 s33, s{sW}, 13")
    A(f"s_add_u32 s33, s33, {WL}")
    A(f"v_add_u32 v{vt+5}, s33, v{vt+5}")
    A(f"v_xor_b32 v{vt+6}, 32, v{vt+5}")
    A(f"v_mov_b32 v{WROW + 8}, v{vt+5}")
    A("s_waitcnt lgkmcnt(0)")
    for wd in (8, 4, 2):
        for x in range(wd):
            A(f"v_add_f32 v{SUM + x}, v{SUM + x}, v{SUM + wd + x}")
    MEAN, RS, NMR = SUM + 2, SUM + 3, SUM + 4
    A(f"v_mul_f32 v{MEAN}, {f32hex(1.0 / 1024)}, v{SUM}")
    A(f"v_mul_f32 v{vt+4}, {f32hex(1.0 / 1024)}, v{SUM+1}")
    A(f"v_fma_f32 v{vt+4}, -v{MEAN}, v{MEAN}, v{vt+4}")
    A(f"v_max_f32 v{vt+4}, 0, v{vt+4}")
    A(f"v_add_f32 v{vt+4}, {f32hex(EPS)}, v{vt+4}")
    A(f"v_rsq_f32 v{RS}, v{vt+4}")
    A("s_nop 0")
    A(f"v_mul_f32 v{NMR}, v{MEAN}, v{RS}")
    for q in range(16):
        r = T + q
        A(f"v_lshlrev_b32 v{vt+8}, 16, v{r}")
        A(f"v_and_b32 v{vt+9}, 0xffff0000, v{r}")
        A(f"v_fma_f32 v{vt+8}, v{vt+8}, v{RS}, -v{NMR}")
        A(f"v_fma_f32 v{vt+9}, v{vt+9}, v{RS}, -v{NMR}")
        A(f"v_cvt_pk_bf16_f32 v{r}, v{vt+8}, v{vt+9}")
    A(f"s_lshl_b32 s33, s{sTF}, 7")
    A(f"s_or_b32 s34, s{sKV}, s{sW}")
    A(f"s_cmp_eq_u32 s34, 0")
    A(f"s_cselect_b32 s33, s33, 0x7ff00000")
    srd(A, SRD_O, 4, WS_XM, 16384)
    A(f"v_lshlrev_b32 v{vt+4}, 3, v{vt}")
    A(f"buffer_store_dwordx2 {V(MEAN, 2)}, v{vt+4}, s[{SRD_O}:{SRD_O+3}], s33 offen sc1")
    A(f"v_xor_b32 v11, 32, v{WROW + 8}")
    xstamp(A, opts, "anorm")
    A("s_waitcnt vmcnt(4)")
    xstamp(A, opts, "awin")
    for s in range(4):
        for F in range(2):
            for i in range(2):
                A(f"ds_read_b64_tr_b16 {V(WF + (F * 4 + s) * 4 + 2 * i, 2)}, v{(WROW + 8, 11)[F]} offset:{(32 * s + 4 * i) * 64}")
    A("s_waitcnt lgkmcnt(0)")
    for s in range(4):
        for F in range(2):
            A(mfma16(V(D + 4 * F, 4), V(WF + (F * 4 + s) * 4, 4), V(T + 4 * s, 4)))
    A(f"s_lshl_b32 s33, s{sW}, 11")
    A(f"s_add_u32 s33, s33, {XL}")
    A(f"v_lshlrev_b32 v{vt+4}, 4, v0")
    A(f"v_add_u32 v{vt+5}, s33, v{vt+4}")
    A("s_nop 4")
    for F in range(2):
        A(f"ds_write_b128 v{vt+5}, {V(D + 4 * F, 4)} offset:{F * 1024}")
    A("s_waitcnt lgkmcnt(0)")
    A("s_barrier")
    xstamp(A, opts, "abar2")
    hook2()
    xstamp(A, opts, "afill")
    WB, ADONE = f"L_{name}_wbar", f"L_{name}_adone"
    A(f"s_cmp_lg_u32 s{sW}, 0")
    A(f"s_cbranch_scc1 {WB}")
    for w in range(1, 8):
        for F in range(2):
            A(f"ds_read_b128 {V(WF + (w - 1) * 8 + 4 * F, 4)}, v{vt+4} offset:{XL + w * 2048 + F * 1024}")
    for w in range(1, 8):
        A(f"s_waitcnt lgkmcnt({2 * (7 - w)})")
        for i in range(8):
            A(f"v_add_f32 v{D + i}, v{D + i}, v{WF + (w - 1) * 8 + i}")
    NS = WF
    A(f"v_mul_f32 v{NS}, v{D}, v{D}")
    for i in range(1, 8):
        A(f"v_fmac_f32 v{NS}, v{D + i}, v{D + i}")
    for F in range(2):
        a = D + 4 * F
        A(f"v_cvt_pk_bf16_f32 v{a}, v{a}, v{a+1}")
        A(f"v_cvt_pk_bf16_f32 v{a+1}, v{a+2}, v{a+3}")
    srd(A, SRD_O, 4, WS_KV, 256 * 1024)
    A(f"s_lshr_b32 s33, s{sTF}, 1")
    A(f"s_lshl_b32 s33, s33, 12")
    A(f"s_and_b32 s34, s{sTF}, 1")
    ISV, NRM = f"L_{name}_isv", f"L_{name}_nrm"
    A(f"s_cmp_lg_u32 s{sKV}, 0")
    A(f"s_cbranch_scc1 {ISV}")
    A(f"s_lshl_b32 s34, s34, 8")
    A(f"s_add_u32 s33, s33, s34")
    A(f"v_bfe_u32 v{vt+4}, v0, 4, 1")
    A(f"v_lshlrev_b32 v{vt+4}, 9, v{vt+4}")
    A(f"v_lshrrev_b32 v{vt+5}, 5, v0")
    A(f"v_lshl_add_u32 v{vt+4}, v{vt+5}, 3, v{vt+4}")
    A(f"v_lshl_add_u32 v{vt+4}, v{vt}, 4, v{vt+4}")
    for F in range(2):
        A(f"buffer_store_dwordx2 {V(D + 4 * F, 2)}, v{vt+4}, s[{SRD_O}:{SRD_O+3}], s33 offen offset:{F * 1024} sc1")
    A(f"s_branch {NRM}")
    A.label(ISV)
    A(f"s_lshl_b32 s34, s34, 10")
    A(f"s_add_u32 s33, s33, s34")
    A(f"s_add_u32 s33, s33, 2048")
    A(f"v_bfe_u32 v{vt+4}, v0, 2, 1")
    A(f"v_lshlrev_b32 v{vt+5}, 9, v{vt+4}")
    A(f"v_lshrrev_b32 v{vt+4}, 4, v0")
    A(f"v_lshl_add_u32 v{vt+5}, v{vt+4}, 6, v{vt+5}")
    A(f"v_bfe_u32 v{vt+4}, v0, 3, 1")
    A(f"v_lshl_add_u32 v{vt+5}, v{vt+4}, 3, v{vt+5}")
    A(f"v_and_b32 v{vt+4}, 3, v0")
    A(f"v_lshl_add_u32 v{vt+5}, v{vt+4}, 1, v{vt+5}")
    for F in range(2):
        for r in range(4):
            op = "buffer_store_short" if r % 2 == 0 else "buffer_store_short_d16_hi"
            A(f"{op} v{D + 4 * F + r // 2}, v{vt+5}, s[{SRD_O}:{SRD_O+3}], s33 offen offset:{F * 256 + r * 16} sc1")
    A.label(NRM)
    reduce_over_g(A, NS, vt + 6)
    for sh in (8, 4, 2, 1):
        A("s_nop 1")
        A(f"v_max_f32_dpp v{NS}, v{NS}, v{NS} row_ror:{sh} row_mask:0xf bank_mask:0xf")
    srd(A, SRD_N, 4, WS_NRM, 1024)
    A(f"s_lshl_b32 s33, s{sKV}, 7")
    A(f"s_add_u32 s33, s33, s{sTF}")
    A(f"s_lshl_b32 s33, s33, 2")
    A(f"v_mov_b32 v{vt+4}, 0")
    A(f"buffer_store_dword v{NS}, v{vt+4}, s[{SRD_N}:{SRD_N+3}], s33 offen sc1")
    A(f"s_branch {ADONE}")
    A.label(WB)
    A(f"s_cmp_lt_u32 s{sW}, 4")
    A(f"s_cbranch_scc1 {ADONE}")
    A("s_waitcnt vmcnt(0)")
    A(f"v_mov_b32 v{vt}, 0")
    for i in range(8):
        A(f"v_dot2c_f32_bf16 v{vt}, v{WROW + i}, v{ONES}")
    A("s_nop 2")
    for sh in (8, 4, 2, 1):
        A(f"v_add_f32_dpp v{vt}, v{vt}, v{vt} row_ror:{sh} row_mask:0xf bank_mask:0xf")
        A("s_nop 1")
    reduce_over_g(A, vt, vt + 1)
    A(f"v_mul_f32 v{vt}, {f32hex(1.0 / 1024)}, v{vt}")
    A(f"v_cvt_pk_bf16_f32 v{vt+1}, v{vt}, v{vt}")
    A(f"v_lshlrev_b32 v{vt+2}, 16, v{vt+1}")
    A(f"v_sub_f32 v{vt+2}, v{vt}, v{vt+2}")
    A(f"v_cvt_pk_bf16_f32 v{vt+2}, v{vt+2}, v{vt+2}")
    r_ = f"s{sROW}"
    A(f"s_lshr_b32 s33, {r_}, 5"); A("s_lshl_b32 s33, s33, 7")
    A(f"s_bfe_u32 s34, {r_}, 0x10004"); A("s_lshl_b32 s34, s34, 5"); A("s_add_u32 s33, s33, s34")
    A(f"s_bfe_u32 s34, {r_}, 0x10002"); A("s_lshl_b32 s34, s34, 4"); A("s_add_u32 s33, s33, s34")
    A(f"s_bfe_u32 s34, {r_}, 0x10003"); A("s_lshl_b32 s34, s34, 3"); A("s_add_u32 s33, s33, s34")
    A(f"s_and_b32 s34, {r_}, 3"); A("s_lshl_b32 s34, s34, 1"); A("s_add_u32 s33, s33, s34")
    srd(A, SRD_N, 4, WS_WB, 4096)
    A(f"v_mov_b32 v{vt+3}, 0")
    A(f"buffer_store_short v{vt+1}, v{vt+3}, s[{SRD_N}:{SRD_N+3}], s33 offen")
    A(f"buffer_store_short v{vt+2}, v{vt+3}, s[{SRD_N}:{SRD_N+3}], s33 offen offset:64")
    A.label(ADONE)


def poll(A, name, tag, srd_, voff, soff, nlanes, vtmp, sNONCE, wide=False):
    L, G = f"L_{name}_poll{tag}", f"L_{name}_got{tag}"
    A("s_mov_b32 s37, 0x8000")
    A.label(L)
    if wide:
        A(f"buffer_load_dwordx4 {V(vtmp, 4)}, v{voff}, s[{srd_}:{srd_+3}], {soff} offen sc1")
        A("s_waitcnt vmcnt(0)")
        A(f"v_xor_b32 v{vtmp}, s{sNONCE}, v{vtmp}")
        for i in range(1, 4):
            A(f"v_xor_b32 v{vtmp+i}, s{sNONCE}, v{vtmp+i}")
        A(f"v_or3_b32 v{vtmp}, v{vtmp}, v{vtmp+1}, v{vtmp+2}")
        A(f"v_or_b32 v{vtmp}, v{vtmp}, v{vtmp+3}")
        A(f"v_cmp_ne_u32 vcc, 0, v{vtmp}")
    else:
        A(f"s_mov_b64 exec, {hex((1 << nlanes) - 1)}")
        A(f"buffer_load_dword v{vtmp}, v{voff}, s[{srd_}:{srd_+3}], {soff} offen sc1")
        A("s_waitcnt vmcnt(0)")
        A(f"v_cmp_ne_u32 vcc, s{sNONCE}, v{vtmp}")
        A("s_mov_b64 exec, -1")
    A("s_sub_u32 s37, s37, 1")
    A("s_cmp_eq_u32 s37, 0")
    A(f"s_cbranch_scc1 {G}")
    A("s_nop 3")
    A(f"s_cbranch_vccnz {L}")
    A.label(G)


def gen_k2(A, name="k2_attn_kernel", opts=None):
    opts = opts or {}
    kernel_begin(A, name)
    END = f"L_{name}_end"
    sW, sTB, sHG, sH = 24, 25, 26, 27
    sCoff, sM0, sHalf = 28, 29, 30
    CH = 32768
    RMASK = 4 * CH - 1
    SRD_KV, SRD_Q, SRD_O, SRD_N = 8, 12, 16, 20
    vL, vLn, vD, vt = 1, 2, 3, 4
    Q = [12, 20]
    Sx = [28, 44]
    P = [60, 68]
    O = [76, 92]
    L = [108, 112]
    KB = [116, 124]
    VB = [132, 140]
    SEL = 148
    MX = [152, 153]
    NV = 188
    NRM_LDS = 4 * CH
    QX = NRM_LDS + 4352

    A("s_cmp_ge_u32 s2, 256")
    A(f"s_cbranch_scc1 {END}")
    stamp(A, opts, 0)
    A(f"s_load_dwordx2 s[4:5], s[0:1], {KA_WS}")
    if True:
        A(f"s_load_dwordx2 s[80:81], s[0:1], {KA_WO}")
        A(f"s_load_dwordx4 s[84:87], s[0:1], {KA_WG}")
        A(f"s_load_dwordx2 s[88:89], s[0:1], {KA_WD}")
        A(f"s_load_dwordx2 s[98:99], s[0:1], {KA_X}")
        A(f"s_load_dwordx2 s[60:61], s[0:1], {KA_WQ}")
        A(f"s_load_dwordx4 s[40:43], s[0:1], {KA_WK}")
        A(f"s_load_dwordx2 s[100:101], s[0:1], {KA_DBG}")
    A(f"v_lshrrev_b32 v{vt}, 6, v0")
    A("v_and_b32 v0, 63, v0")
    A(f"s_and_b32 s{sTB}, s2, 7")
    A(f"s_lshl_b32 s{sTB}, s{sTB}, 2")
    A(f"s_bfe_u32 s33, s2, 0x20003")
    A(f"s_add_u32 s{sTB}, s{sTB}, s33")
    A(f"v_readfirstlane_b32 s{sW}, v{vt}")
    A(f"s_lshr_b32 s{sHG}, s2, 5")
    A(f"v_lshlrev_b32 v{vL}, 4, v0")
    A(f"s_and_b32 s33, s{sW}, 3")
    A(f"s_lshr_b32 s{sHalf}, s{sW}, 2")
    A(f"s_lshl_b32 s{sH}, s{sHG}, 2")
    A(f"s_add_u32 s{sH}, s{sH}, s33")
    A(f"s_lshl_b32 s{sM0}, s33, 12")
    if opts.get("selfpf"):
        SKP = f"L_{name}_selfpf"
        A("s_lshr_b32 s33, s2, 3")
        A("s_cmp_ge_u32 s33, 2")
        A(f"s_cbranch_scc1 {SKP}")
        A(f"s_cmp_lg_u32 s{sW}, 7")
        A(f"s_cbranch_scc1 {SKP}")
        A("s_getpc_b64 s[46:47]")
        A.label(f"L_{name}_selfpc")
        A(f"s_add_u32 s46, s46, {name}-L_{name}_selfpc")
        A("s_addc_u32 s47, s47, -1")
        A("s_lshl_b32 s33, s33, 13")
        A("v_lshlrev_b32 v12, 7, v0")
        A("v_add_u32 v12, s33, v12")
        if True:
            A("s_cmp_eq_u32 s33, 0")
            A("s_cselect_b32 exec_hi, -1, 0xffffff")
        A("global_load_dword v11, v12, s[46:47]")
        A("s_mov_b64 exec, -1")
        A.label(SKP)
    A("s_waitcnt lgkmcnt(0)")
    xstamp(A, opts, "karg")
    sNONCE = 94
    A(f"v_mov_b32 v13, {WS_NONCE}")
    A(f"global_load_dword v14, v13, s[4:5] sc1")

    def publish_nonce():
        NN = f"L_{name}_nononce"
        A("s_cmp_lg_u32 s2, 0")
        A(f"s_cbranch_scc1 {NN}")
        A(f"s_cmp_lg_u32 s{sW}, 0")
        A(f"s_cbranch_scc1 {NN}")
        A("v_add_u32 v14, 1, v14")
        A("v_max_u32 v14, 1, v14")
        A("global_store_dword v13, v14, s[4:5] sc1")
        A("v_mov_b32 v13, 0")
        A("global_store_dword v13, v14, s[100:101] sc1")
        A.label(NN)
    A(f"s_add_u32 s46, s4, {WS_F3}")
    A("s_addc_u32 s47, s5, 0")
    A(f"s_mul_i32 s33, s2, {6 * 128}")
    A("v_lshlrev_b32 v12, 7, v0")
    A("v_add_u32 v12, s33, v12")
    A("v_mov_b32 v11, 0")
    A("s_mov_b64 exec, 63")
    A("global_store_dword v12, v11, s[46:47]")
    A("s_mov_b64 exec, -1")
    SRD_F = 20
    QL, QS = CH, 24576
    QACC, QWF, QXF = Sx[0], Sx[1], O[0]
    QCS, QSEL, QST = 156, 172, 176
    vXd, vWd0, vWd1 = 134, 135, 136
    vXr = [[137 + 4 * h + k for k in range(4)] for h in range(2)]
    vWr = [[145 + 4 * h + k for k in range(4)] for h in range(2)]
    sXo, sWo, sXraw, sMX, sMW, sRot = 62, 63, 90, 91, 47, 95
    sKV0 = 93
    SRD_WQ = 56
    srd(A, SRD_WQ, 60, 0, 1024 * 2048)
    A(f"v_lshrrev_b32 v{vt}, 3, v0")
    A(f"s_lshl_b32 s33, s{sW}, 3")
    A(f"v_add_u32 v{vt}, s33, v{vt}")
    A(f"v_lshrrev_b32 v{vt+1}, 1, v{vt}")
    A(f"v_and_b32 v{vt+1}, 7, v{vt+1}")
    A(f"v_and_b32 v{vt+2}, 7, v0")
    A(f"v_xor_b32 v{vt+1}, v{vt+1}, v{vt+2}")
    A(f"v_lshlrev_b32 v{vt}, 11, v{vt}")
    A(f"v_lshl_add_u32 v{vXd}, v{vt+1}, 4, v{vt}")
    A(f"s_lshl_b32 s33, s{sTB}, 17")
    A(f"v_add_u32 v{vXd}, s33, v{vXd}")
    A(f"s_lshl_b32 s{sMX}, s{sW}, 10")
    A(f"s_add_u32 s{sMW}, s{sMX}, {QL + 8192}")
    A(f"s_add_u32 s{sMX}, s{sMX}, {QL}")
    A(f"v_bfe_u32 v{vt+1}, v0, 4, 1")
    A(f"v_lshlrev_b32 v{vt+1}, 2, v{vt+1}")
    A(f"v_xor_b32 v{vt+1}, v{vt+1}, v{vt+2}")
    A(f"v_lshrrev_b32 v{vt}, 3, v0")
    A(f"s_lshl_b32 s33, s{sW}, 3")
    A(f"v_add_u32 v{vt}, s33, v{vt}")
    A(f"v_lshlrev_b32 v{vt}, 11, v{vt}")
    A(f"v_lshl_add_u32 v{vt}, v{vt+1}, 4, v{vt}")
    A(f"s_lshl_b32 s33, s{sHG}, 8")
    A(f"v_add_u32 v{vWd0}, s33, v{vt}")
    A(f"v_add_u32 v{vWd1}, 128, v{vWd0}")
    sSt, sCn = 90, 45
    if opts.get("qrot", 1):
        A(f"s_and_b32 s{sSt}, s{sTB}, 15")
    else:
        A(f"s_mov_b32 s{sSt}, 0")
    A(f"s_mov_b32 s{sCn}, 0")
    A(f"s_lshl_b32 s{sXo}, s{sSt}, 7")
    A(f"s_lshl_b32 s{sWo}, s{sSt}, 17")

    def q_dma(slot):
        return [[f"s_add_u32 m0, s{sMX}, {slot * QS}", "s_nop 0",
                 f"buffer_load_dwordx4 v{vXd}, s[{SRD_Q}:{SRD_Q+3}], s{sXo} offen lds",
                 f"s_add_u32 m0, s{sMW}, {slot * QS}",
                 f"s_add_u32 s{sSt}, s{sSt}, 1", f"s_and_b32 s{sSt}, s{sSt}, 15", f"s_add_u32 s{sCn}, s{sCn}, 1"],
                [f"buffer_load_dwordx4 v{vWd0}, s[{SRD_WQ}:{SRD_WQ+3}], s{sWo} offen lds",
                 f"s_add_u32 m0, s{sMW}, {slot * QS + 8192}", "s_nop 0"],
                [f"buffer_load_dwordx4 v{vWd1}, s[{SRD_WQ}:{SRD_WQ+3}], s{sWo} offen lds",
                 f"s_lshl_b32 s{sXo}, s{sSt}, 7", f"s_lshl_b32 s{sWo}, s{sSt}, 17", f"s_cmp_lt_u32 s{sCn}, 16",
                 f"s_cselect_b32 s{sXo}, s{sXo}, 0x7ff00000", f"s_cselect_b32 s{sWo}, s{sWo}, 0x7ff00000"]]

    def first_fills():
        srd(A, SRD_F, 100, 0, 256)
        A("v_mov_b32 v13, 0")
        A(f"buffer_load_dword v14, v13, s[{SRD_F}:{SRD_F+3}], 0 offen sc1")
        srd(A, SRD_Q, 98, 0, 2048 * 2048)
        for sl in range(2):
            for g in q_dma(sl):
                for l in g: A(l)

    def early_setup():
        A(f"s_and_b32 s33, s{sW}, 3")
        A(f"s_add_u32 s33, s33, s{sHalf}")
        A(f"s_and_b32 s{sRot}, s33, 3")
        A(f"v_and_b32 v{vt}, 31, v0")
        A(f"v_lshrrev_b32 v{vt+1}, 1, v{vt}")
        A(f"v_and_b32 v{vt+1}, 7, v{vt+1}")
        A(f"v_lshrrev_b32 v{vt+2}, 5, v0")
        A(f"v_xor_b32 v{vt+1}, v{vt+1}, v{vt+2}")
        A(f"v_lshlrev_b32 v{vt+1}, 4, v{vt+1}")
        A(f"v_lshl_add_u32 v{vt+1}, v{vt}, 7, v{vt+1}")
        A(f"s_lshl_b32 s33, s{sHalf}, 12")
        A(f"s_add_u32 s33, s33, {QL}")
        A(f"v_add_u32 v{vt+3}, s33, v{vt+1}")
        A(f"v_bfe_u32 v{vt+1}, v0, 2, 2")
        A(f"v_lshl_add_u32 v{vt+2}, v{vt+2}, 3, v{vt+1}")
        A(f"v_lshlrev_b32 v{vt+2}, 7, v{vt+2}")
        A(f"v_bfe_u32 v{vt}, v0, 4, 1")
        A(f"s_and_b32 s33, s{sW}, 1")
        A(f"s_lshl_b32 s33, s33, 1")
        A(f"v_or_b32 v{vt}, s33, v{vt}")
        A(f"v_lshrrev_b32 v{vt+1}, 1, v{vt+1}")
        A(f"v_lshlrev_b32 v{vt+1}, 1, v{vt+1}")
        A(f"v_xor_b32 v{vt}, v{vt}, v{vt+1}")
        A(f"v_lshl_add_u32 v{vt+2}, v{vt}, 5, v{vt+2}")
        A(f"v_and_b32 v{vt}, 3, v0")
        A(f"v_lshl_add_u32 v{vt+2}, v{vt}, 3, v{vt+2}")
        A(f"s_bfe_u32 s33, s{sW}, 0x10001")
        A(f"s_lshl_b32 s33, s33, 13")
        A(f"s_add_u32 s33, s33, {QL + 8192}")
        A(f"v_add_u32 v{vt+2}, s33, v{vt+2}")
        for k in range(4):
            A(f"s_add_u32 s33, s{sRot}, {k}")
            A("s_and_b32 s33, s33, 3")
            A("s_lshl_b32 s34, s33, 5")
            A(f"v_xor_b32 v{vXr[0][k]}, s34, v{vt+3}")
            A(f"v_add_u32 v{vXr[1][k]}, {2 * QS}, v{vXr[0][k]}")
            A("s_lshl_b32 s34, s33, 11")
            A(f"v_add_u32 v{vWr[0][k]}, s34, v{vt+2}")
            A(f"v_add_u32 v{vWr[1][k]}, {2 * QS}, v{vWr[0][k]}")
        for i in range(0, 4, 2):
            A(f"v_mov_b64 v[{QCS + i}:{QCS + i + 1}], 0")
        A(f"v_lshrrev_b32 v{vt}, 4, v0")
        A(f"v_lshrrev_b32 v{vt+1}, 2, v0")
        A(f"v_xor_b32 v{vt}, v{vt}, v{vt+1}")
        A(f"v_and_b32 v{vt}, 1, v{vt}")
        A(f"v_mov_b32 v{vt+1}, 0x3f803f80")
        A(f"v_cmp_eq_u32 vcc, 0, v{vt}")
        A("s_nop 1")
        A(f"v_cndmask_b32 v{QSEL}, 0, v{vt+1}, vcc")
        for i in range(1, 4):
            A(f"v_mov_b32 v{QSEL + i}, v{QSEL}")

    phase_a(A, opts, name, sW, NRM_LDS, publish_nonce, first_fills, early_setup)
    xstamp(A, opts, "adone")
    for i in range(0, 16, 2):
        A(f"v_mov_b64 v[{QACC + i}:{QACC + i + 1}], 0")
    GN = f"L_{name}_gn"
    A("s_waitcnt vmcnt(0)")
    A(f"v_readfirstlane_b32 s{sNONCE}, v14")
    A("s_mov_b32 s37, 0x8000")
    A(f"s_cmp_lg_u32 s{sNONCE}, 0")
    A(f"s_cbranch_scc1 {GN}x")
    srd(A, SRD_F, 100, 0, 256)
    A.label(GN)
    A(f"buffer_load_dword v14, v13, s[{SRD_F}:{SRD_F+3}], 0 offen sc1")
    A("s_waitcnt vmcnt(0)")
    A(f"v_readfirstlane_b32 s{sNONCE}, v14")
    A("s_sub_u32 s37, s37, 1")
    A("s_cmp_eq_u32 s37, 0")
    A(f"s_cbranch_scc1 {GN}x")
    A(f"s_cmp_eq_u32 s{sNONCE}, 0")
    A(f"s_cbranch_scc1 {GN}")
    A.label(GN + "x")
    srd(A, SRD_F, 4, WS_FA, 128 * 128 + 1024)
    NF = f"L_{name}_noflag"
    A(f"s_cmp_lg_u32 s{sW}, 0")
    A(f"s_cbranch_scc1 {NF}")
    A(f"v_mov_b32 v14, s{sNONCE}")
    A("s_lshl_b32 s33, s2, 2")
    A(f"s_add_u32 s33, s33, {128 * 128}")
    A(f"buffer_store_dword v14, v13, s[{SRD_F}:{SRD_F+3}], s33 offen sc1")
    A.label(NF)
    for sl in range(2, 4):
        for g in q_dma(sl):
            for l in g: A(l)
    A(f"v_add_u32 v{vD}, s{sM0}, v{vL}")
    srd(A, SRD_KV, 4, WS_KV, 256 * 1024)
    srd(A, SRD_O, 4, WS_O, 4 * MB)

    def kv_dma(slot):
        out = []
        for hf in range(2):
            if isinstance(slot, int):
                pre = [f"s_add_u32 m0, s{sM0}, {slot * CH + hf * 16384}"]
            else:
                pre = [f"s_add_u32 m0, s{sM0}, {slot}"] + (["s_add_u32 m0, m0, 16384"] if hf else [])
            pre.append(f"s_add_u32 s46, s{sCoff}, {hf * 131072}")
            out.append(pre + [f"buffer_load_dwordx4 v{vD}, s[{SRD_KV}:{SRD_KV+3}], s46 offen sc1 lds"])
            for i in range(1, 4):
                out.append([f"buffer_load_dwordx4 v{vD}, s[{SRD_KV}:{SRD_KV+3}], s46 offen offset:{i * 1024} sc1 lds"])
        out[-1].append(f"s_add_u32 s{sCoff}, s{sCoff}, 16384")
        return out

    def q_reads(par, slot):
        h, sl = slot // 2, slot % 2
        out = []
        for k in range(4):
            out.append(f"ds_read_b128 {V(QXF + par * 16 + 4 * k, 4)}, v{vXr[h][k]} offset:{sl * QS}")
            for i in range(2):
                out.append(f"ds_read_b64_tr_b16 {V(QWF + par * 16 + 4 * k + 2 * i, 2)}, v{vWr[h][k]} offset:{sl * QS + 4 * i * 128}")
        return out

    A("s_barrier")
    for l in q_reads(0, 0): A(l)
    xstamp(A, opts, "qstart")

    def kv0_and_norms(tag):
        NOD0 = f"L_{name}_nod0{tag}"
        srd(A, SRD_N, 4, WS_NRM, 1024)
        A(f"s_mov_b32 s{sCoff}, 0")
        A(f"s_cmp_lg_u32 s{sHalf}, 0")
        A(f"s_cbranch_scc1 {NOD0}")
        for g in kv_dma(0):
            for l in g: A(l)
        A.label(NOD0)
        A(f"buffer_load_dwordx4 {V(vt + 4, 4)}, v{vL}, s[{SRD_N}:{SRD_N+3}], 0 offen sc1")
        srd(A, SRD_N, 4, WS_XM, 16384)
        A(f"s_lshl_b32 s33, s{sTB}, 1")
        A(f"s_add_u32 s33, s33, s{sHalf}")
        A(f"s_lshl_b32 s33, s33, 8")
        A(f"v_and_b32 v178, 31, v0")
        A(f"v_lshlrev_b32 v178, 3, v178")
        A(f"buffer_load_dwordx2 {V(QST, 2)}, v178, s[{SRD_N}:{SRD_N+3}], s33 offen sc1")

    A(f"s_mov_b32 s{sKV0}, 0")
    QLOOP = f"L_{name}_qloop"
    A("s_mov_b32 s44, 4")
    A.loop_begin(QLOOP)
    for sl in range(4):
        par = sl % 2
        A("s_waitcnt vmcnt(6) lgkmcnt(0)")
        A("s_barrier")
        wf = lambda k: V(QWF + par * 16 + 4 * k, 4)
        xf = lambda k: V(QXF + par * 16 + 4 * k, 4)
        main = [mfma32(V(QACC, 16), wf(0), xf(0)), mfma16(V(QCS, 4), V(QSEL, 4), wf(0)), mfma32(V(QACC, 16), wf(1), xf(1)),
                mfma32(V(QACC, 16), wf(2), xf(2)), mfma16(V(QCS, 4), V(QSEL, 4), wf(2)), mfma32(V(QACC, 16), wf(3), xf(3))]
        vm = q_dma(sl)
        rd = q_reads(1 - par, (sl + 1) % 4)
        f = {-1: list(vm[0]), 0: list(vm[1]) + rd[0:4], 1: list(vm[2]) + rd[4:8], 2: rd[8:12]}
        for l in interleave(main, f): A(l)
    A("s_cmp_le_u32 s44, 3")
    A(f"s_cbranch_scc1 L_{name}_fb")
    A.label(f"L_{name}_fbback")
    A("s_sub_u32 s44, s44, 1")
    A("s_cmp_lg_u32 s44, 0")
    A(f"s_cbranch_scc1 {QLOOP}")
    A.loop_end()
    xstamp(A, opts, "qend")
    A("s_waitcnt lgkmcnt(0)")
    A(f"s_cmp_eq_u32 s{sKV0}, 1")
    A(f"s_cbranch_scc1 L_{name}_kv0done")
    A("s_waitcnt vmcnt(0)")
    A(f"s_mov_b32 s33, {128 * 128}")
    poll(A, name, "b2", SRD_F, vL, "s33", 64, vt + 4, sNONCE, wide=True)
    kv0_and_norms("late")
    A.label(f"L_{name}_kv0done")
    CSL = QX + 16384
    A(f"s_and_b32 s34, s{sW}, 3")
    A(f"s_lshl_b32 s35, s34, 8")
    A(f"s_add_u32 s35, s35, {CSL}")
    A(f"s_lshl_b32 s36, s{sHalf}, 7")
    A(f"s_add_u32 s36, s36, s35")
    A(f"v_and_b32 v{vt}, 31, v0")
    A(f"v_lshlrev_b32 v{vt}, 2, v{vt}")
    A(f"v_add_u32 v{vt}, s36, v{vt}")
    A(f"ds_write_b32 v{vt}, v{QCS}")
    A(f"v_lshrrev_b32 v{vt+1}, 5, v0")
    A(f"v_lshlrev_b32 v{vt+1}, 4, v{vt+1}")
    A(f"v_add_u32 v{vt+1}, s35, v{vt+1}")
    A("s_waitcnt lgkmcnt(0)")
    A("s_barrier")
    for X in range(2):
        for q in range(4):
            A(f"ds_read_b128 {V(QXF + X * 16 + 4 * q, 4)}, v{vt+1} offset:{X * 128 + q * 32}")
    A("s_waitcnt vmcnt(0)")
    A(f"v_mul_f32 v{QST+1}, {f32hex(QSCALE)}, v{QST+1}")
    A("s_waitcnt lgkmcnt(0)")
    for i in range(16):
        A(f"v_add_f32 v{QXF + i}, v{QXF + i}, v{QXF + 16 + i}")
    for i in range(16):
        A(f"v_fma_f32 v{QACC + i}, -v{QST}, v{QXF + i}, v{QACC + i}")
        A(f"v_mul_f32 v{QACC + i}, v{QST+1}, v{QACC + i}")
    A(f"v_mul_f32 v{vt}, v{QACC}, v{QACC}")
    for i in range(1, 16):
        A(f"v_fmac_f32 v{vt}, v{QACC + i}, v{QACC + i}")
    for jq in range(8):
        A(f"v_cvt_pk_bf16_f32 v{P[0] + jq}, v{QACC + 2 * jq}, v{QACC + 2 * jq + 1}")
    A(f"s_and_b32 s33, s{sW}, 3")
    A(f"s_lshl_b32 s33, s33, 12")
    A(f"s_add_u32 s34, s33, {QX}")
    A(f"v_add_u32 v186, s34, v{vL}")
    A(f"s_lshl_b32 s35, s{sHalf}, 11")
    A(f"v_add_u32 v{vt+3}, s35, v186")
    for m in range(2):
        A(f"ds_write_b128 v{vt+3}, {V(P[0] + 4 * m, 4)} offset:{m * 1024}")
    A(f"v_mov_b32 v{vt+1}, v{vt}")
    A("s_nop 1")
    A(f"v_permlane32_swap_b32 v{vt}, v{vt+1}")
    A(f"v_add_f32 v{vt}, v{vt}, v{vt+1}")
    wave_max(A, vt, vt + 1)
    A(f"v_mov_b32 v{vt+1}, {NRM_LDS}")
    A(f"s_lshl_b32 s33, s{sW}, 2")
    A(f"v_add_u32 v{vt+1}, s33, v{vt+1}")
    A(f"ds_write_b32 v{vt+1}, v{vt}")
    A(f"s_lshl_b32 s33, s{sHalf}, 14")
    A(f"v_add_u32 v{vL}, s33, v{vL}")
    A(f"v_lshrrev_b32 v{vt}, 4, v0")
    A(f"v_lshrrev_b32 v{vt+1}, 2, v0")
    A(f"v_xor_b32 v{vt}, v{vt}, v{vt+1}")
    A(f"v_and_b32 v{vt}, 1, v{vt}")
    A(f"v_mov_b32 v{vt+1}, 0x3f803f80")
    A(f"v_cmp_eq_u32 vcc, 0, v{vt}")
    A("s_nop 1")
    A(f"v_cndmask_b32 v{SEL}, 0, v{vt+1}, vcc")
    for i in range(1, 4):
        A(f"v_mov_b32 v{SEL + i}, v{SEL}")
    for X in range(2):
        for i in range(0, 16, 2): A(f"v_mov_b64 v[{O[X] + i}:{O[X] + i + 1}], 0")
        for i in range(0, 4, 2): A(f"v_mov_b64 v[{L[X] + i}:{L[X] + i + 1}], 0")
    for i in range(0, 8, 2):
        A(f"v_mov_b64 v[{P[1] + i}:{P[1] + i + 1}], 0")
        A(f"v_mov_b64 v[{VB[1] + i}:{VB[1] + i + 1}], 0")
    side_setup(A, opts, sW, vt)
    n = vt + 4
    xstamp(A, opts, "prewait")
    A("s_waitcnt vmcnt(0) lgkmcnt(0)")
    A(f"v_max_f32 v{n}, v{n}, v{n+1}")
    A(f"v_max3_f32 v{n}, v{n}, v{n+2}, v{n+3}")
    for sh in (8, 4, 2, 1):
        A("s_nop 1")
        A(f"v_max_f32_dpp v{n}, v{n}, v{n} row_ror:{sh} row_mask:0xf bank_mask:0xf")
    xstamp(A, opts, "w0")
    A("s_barrier")
    xstamp(A, opts, "bar0")
    for X in range(2):
        for m in range(2):
            A(f"ds_read_b128 {V(Q[X] + 4 * m, 4)}, v186 offset:{X * 2048 + m * 1024}")
    A(f"v_mov_b32 v{vt+1}, {NRM_LDS}")
    A(f"ds_read_b128 {V(KB[1], 4)}, v{vt+1}")
    A(f"ds_read_b128 {V(KB[1] + 4, 4)}, v{vt+1} offset:16")
    A(f"v_readlane_b32 s34, v{n}, 0")
    A(f"v_readlane_b32 s35, v{n}, 16")
    A(f"v_readlane_b32 s36, v{n}, 32")
    A(f"v_readlane_b32 s37, v{n}, 48")
    A(f"v_add_u32 v{vLn}, {CH}, v{vL}")
    for m in range(2):
        A(f"ds_read_b128 {V(KB[0] + 4 * m, 4)}, v{vL} offset:{m * 1024}")
    A("s_max_u32 s34, s34, s35")
    A("s_max_u32 s36, s36, s37")
    A("s_waitcnt lgkmcnt(0)")
    k1 = KB[1]
    A(f"v_max3_f32 v{k1}, v{k1}, v{k1+1}, v{k1+2}")
    A(f"v_max3_f32 v{k1}, v{k1}, v{k1+3}, v{k1+4}")
    A(f"v_max3_f32 v{k1}, v{k1}, v{k1+5}, v{k1+6}")
    A(f"v_max_f32 v{k1}, v{k1}, v{k1+7}")
    A(f"v_mul_f32 v{vt}, s34, v{k1}")
    A(f"v_mov_b32 v{vt+2}, s36")
    A(f"v_mov_b32 v{vt+1}, {f32hex(T_BOUND * T_BOUND / 1.05)}")
    A(f"v_cmp_le_f32 vcc, v{vt}, v{vt+1}")
    A(f"v_mov_b32 v{vt+1}, {f32hex(V_BOUND2)}")
    A(f"v_cmp_le_f32 s[36:37], v{vt+2}, v{vt+1}")
    A("s_nop 1")
    A("s_and_b64 vcc, vcc, s[36:37]")
    SLOW = f"L_{name}_slow"
    FIN = f"L_{name}_fin"
    if opts.get("force_slow"):
        A("s_mov_b64 vcc, 0")
    A("s_nop 4")
    A(f"s_cbranch_vccz {SLOW}")

    def k_reads(buf, base, off):
        return [f"ds_read_b128 {V(KB[buf] + 4 * m, 4)}, v{base} offset:{off + m * 1024}" for m in range(2)]

    def v_reads(buf, base, off):
        return [f"ds_read_b128 {V(VB[buf] + 4 * m, 4)}, v{base} offset:{off + 2048 + m * 1024}" for m in range(2)]

    def s_mfma(X, kb):
        return [mfma32(V(Sx[X], 16), V(KB[kb], 4), V(Q[X], 4), "0"),
                mfma32(V(Sx[X], 16), V(KB[kb] + 4, 4), V(Q[X] + 4, 4))]

    def pv_mfma(X, vb):
        return [mfma32(V(O[X], 16), V(VB[vb], 4), V(P[X], 4)),
                mfma16(V(L[X], 4), V(SEL, 4), V(P[X], 4)),
                mfma32(V(O[X], 16), V(VB[vb] + 4, 4), V(P[X] + 4, 4)),
                mfma16(V(L[X], 4), V(SEL, 4), V(P[X] + 4, 4))]

    def softmax_valu(X):
        out = []
        s, p = Sx[X], P[X]
        lag = opts.get("lag", 1)
        if opts.get("no_valu"): return ["s_nop 0"] * 24
        if opts.get("exp_const"):
            for j in range(8):
                out.append(f"v_exp_f32 v{s + 2*j}, v{SEL}")
                out.append(f"v_exp_f32 v{s + 2*j + 1}, v{SEL}")
                if j >= lag:
                    out.append(f"v_cvt_pk_bf16_f32 v{p + j - lag}, v{SEL}, v{SEL}")
            for jj in range(8 - lag, 8):
                out.append(f"v_cvt_pk_bf16_f32 v{p + jj}, v{SEL}, v{SEL}")
            return out
        for j in range(8):
            out.append(f"v_exp_f32 v{s + 2*j}, v{s + 2*j}")
            out.append(f"v_exp_f32 v{s + 2*j + 1}, v{s + 2*j + 1}")
            if j >= lag:
                jj = j - lag
                out.append(f"v_cvt_pk_bf16_f32 v{p + jj}, v{s + 2*jj}, v{s + 2*jj + 1}")
        for jj in range(8 - lag, 8):
            out.append(f"v_cvt_pk_bf16_f32 v{p + jj}, v{s + 2*jj}, v{s + 2*jj + 1}")
        return out

    def phase(valu, mf, lds, extra=None):
        valu = list(valu)
        out = []
        n = len(valu)
        pos = opts.get("mfpos", [1, 5, 10, 14, 18, 22])
        items = {}
        for k, m in enumerate(mf):
            items.setdefault(pos[k], []).append(m)
        for k, l in enumerate(lds):
            items.setdefault(opts.get("ldspos", [1, 3, 5, 7])[k], []).append(l)
        for k, e in enumerate(extra or []):
            items.setdefault(6 + 2 * k, []).extend(e if isinstance(e, list) else [e])
        for i, v in enumerate(valu):
            out += items.get(i, [])
            if v == "NOPSLOT":
                if not items.get(i): out.append("s_nop 0")
                continue
            out.append(v)
        return out

    for l in s_mfma(0, 0): A(l)
    A("s_nop 7")
    A("s_nop 3")
    stamp(A, opts, 1)
    xstamp(A, opts, "loopstart")
    A("s_mov_b32 s44, 8")
    A(f"s_mov_b32 s45, {3 * CH}")
    A(f"s_cmp_lg_u32 s{sHalf}, 0")
    A(f"s_cbranch_scc1 L_{name}_sstart")

    def fast_loop(role):
        if opts.get("prio") == role:
            A("s_setprio 1")
        LOOP = f"L_{name}_loop{role}"
        A.loop_begin(LOOP)
        for t in range(4):
            kb, vb = t % 2, t % 2
            if t < 2 and role == "p":
                A("s_cmp_eq_u32 s44, 8")
                A(f"s_cbranch_scc1 L_{name}_ramp{t}")
                A.label(f"L_{name}_rampback{t}")
            extra, extra2 = [], []
            if t == 3:
                if role == "p":
                    A("s_waitcnt vmcnt(8)")
                    A("s_barrier")
                    g = kv_dma("s45")
                    g[-1] = g[-1] + [f"s_add_u32 s45, s45, {CH}", f"s_and_b32 s45, s45, {RMASK}"]
                    extra, extra2 = g[:4], g[4:]
                else:
                    A("s_barrier")
                    extra = prefetch_step(opts, name)
                lds = k_reads(1 - kb, vLn, 0) + v_reads(vb, vL, t * 4096)
            else:
                lds = k_reads(1 - kb, vL, (t + 1) * 4096) + v_reads(vb, vL, t * 4096)
            mf = s_mfma(1, kb) + pv_mfma(1, 1 - vb)
            if opts.get("no_lds"): lds = []
            if opts.get("no_L"): mf = [m for m in mf if "16x16" not in m]
            if opts.get("no_mfma"): mf = []
            for l in phase(softmax_valu(0), mf, lds, extra): A(l)
            A("s_waitcnt lgkmcnt(0)")
            if t == 3:
                extra2 = extra2 + [[f"v_mov_b32 v{vL}, v{vLn}"], [f"v_add_u32 v{vLn}, {CH}, v{vLn}"], [f"v_and_b32 v{vLn}, {RMASK}, v{vLn}"]]
            mf = s_mfma(0, 1 - kb) + pv_mfma(0, vb)
            if opts.get("no_L"): mf = [m for m in mf if "16x16" not in m]
            if opts.get("no_mfma"): mf = []
            for l in phase(softmax_valu(1), mf, [], extra2): A(l)
        out = once_jobs(A, opts, name, "f", sW, vt) if role == "s" else None
        A("s_sub_u32 s44, s44, 1")
        A("s_cmp_lg_u32 s44, 0")
        A(f"s_cbranch_scc1 {LOOP}")
        A.loop_end()
        A("s_nop 1")
        for l in pv_mfma(1, 1): A(l)
        A(f"s_branch {FIN}")
        if role == "p":
            for t in range(2):
                A.label(f"L_{name}_ramp{t}")
                for g in kv_dma(t + 1):
                    for l in g: A(l)
                A(f"s_branch L_{name}_rampback{t}")
        else:
            out()

    fast_loop("p")
    A.label(f"L_{name}_fb")
    A("s_cmp_lg_u32 s44, 3")
    A(f"s_cbranch_scc1 L_{name}_fb2")
    A(f"s_mov_b32 s33, {128 * 128}")
    A(f"buffer_load_dwordx4 {V(vt + 4, 4)}, v{vL}, s[{SRD_F}:{SRD_F+3}], s33 offen sc1")
    A(f"s_branch L_{name}_fbback")
    A.label(f"L_{name}_fb2")
    A("s_cmp_lg_u32 s44, 2")
    A(f"s_cbranch_scc1 L_{name}_fbback")
    FB = vt + 4
    for i in range(4):
        A(f"v_xor_b32 v{FB + i}, s{sNONCE}, v{FB + i}")
    A(f"v_or3_b32 v{FB}, v{FB}, v{FB+1}, v{FB+2}")
    A(f"v_or_b32 v{FB}, v{FB}, v{FB+3}")
    A(f"v_cmp_ne_u32 vcc, 0, v{FB}")
    A("s_nop 4")
    A(f"s_cbranch_vccnz L_{name}_fbback")
    A(f"s_mov_b32 s{sKV0}, 1")
    kv0_and_norms("early")
    A(f"s_branch L_{name}_fbback")
    A.label(f"L_{name}_sstart")
    fast_loop("s")

    A.label(SLOW)
    A(f"s_cmp_lg_u32 s{sHalf}, 0")
    A(f"s_cbranch_scc1 L_{name}_s12")
    for c in (1, 2):
        for g in kv_dma(c):
            for l in g: A(l)
    A.label(f"L_{name}_s12")
    for X in range(2):
        A(f"v_mov_b32 v{MX[X]}, 0xff7fffff")
    A("s_mov_b32 s44, 8")
    A(f"s_mov_b32 s45, {3 * CH}")
    OUTER, INNER = f"L_{name}_so", f"L_{name}_si"
    A.loop_begin(OUTER)
    A(f"v_mov_b32 v{vt+6}, v{vL}")
    A("s_mov_b32 s46, 4")
    A.loop_begin(INNER)
    for l in k_reads(0, vt + 6, 0) + v_reads(0, vt + 6, 0): A(l)
    A("s_waitcnt lgkmcnt(0)")
    for X in range(2):
        s, p = Sx[X], P[X]
        for l in s_mfma(X, 0): A(l)
        A("s_nop 7"); A("s_nop 4")
        A(f"v_max_f32 v{vt}, v{s}, v{s+1}")
        for i in range(2, 16, 2):
            A(f"v_max3_f32 v{vt}, v{vt}, v{s+i}, v{s+i+1}")
        A(f"v_mov_b32 v{vt+1}, v{vt}")
        A("s_nop 1")
        A(f"v_permlane32_swap_b32 v{vt}, v{vt+1}")
        A(f"v_max3_f32 v{vt}, v{vt}, v{vt+1}, v{MX[X]}")
        A(f"v_sub_f32 v{vt+1}, v{MX[X]}, v{vt}")
        A(f"v_exp_f32 v{vt+1}, v{vt+1}")
        A(f"v_mov_b32 v{MX[X]}, v{vt}")
        for i in range(16):
            A(f"v_sub_f32 v{s+i}, v{s+i}, v{vt}")
        for i in range(16):
            A(f"v_exp_f32 v{s+i}, v{s+i}")
        for i in range(16):
            A(f"v_mul_f32 v{O[X]+i}, v{O[X]+i}, v{vt+1}")
        for i in range(4):
            A(f"v_mul_f32 v{L[X]+i}, v{L[X]+i}, v{vt+1}")
        for j in range(8):
            A(f"v_cvt_pk_bf16_f32 v{p+j}, v{s+2*j}, v{s+2*j+1}")
        A("s_nop 1")
        for l in pv_mfma(X, 0): A(l)
        A("s_nop 7"); A("s_nop 4")
    A(f"v_add_u32 v{vt+6}, 4096, v{vt+6}")
    A("s_sub_u32 s46, s46, 1")
    A("s_cmp_lg_u32 s46, 0")
    A(f"s_cbranch_scc1 {INNER}")
    A.loop_end()
    A(f"s_cmp_lg_u32 s{sHalf}, 0")
    A(f"s_cbranch_scc1 L_{name}_sside")
    A("s_waitcnt vmcnt(8)")
    A("s_barrier")
    for g in kv_dma("s45"):
        for l in g: A(l)
    A(f"s_add_u32 s45, s45, {CH}")
    A(f"s_and_b32 s45, s45, {RMASK}")
    A(f"s_branch L_{name}_snext")
    A.label(f"L_{name}_sside")
    A("s_barrier")
    for g in prefetch_step(opts, name):
        for l in g: A(l)
    out_s = once_jobs(A, opts, name, "s", sW, vt)
    A.label(f"L_{name}_snext")
    A(f"v_add_u32 v{vL}, {CH}, v{vL}")
    A(f"v_and_b32 v{vL}, {RMASK}, v{vL}")
    A("s_sub_u32 s44, s44, 1")
    A("s_cmp_lg_u32 s44, 0")
    A(f"s_cbranch_scc1 {OUTER}")
    A.loop_end()
    A(f"s_branch L_{name}_sdone")
    out_s()
    A.label(f"L_{name}_sdone")
    A(f"v_lshlrev_b32 v{vt}, 3, v0")
    A(f"s_lshl_b32 s33, s{sW}, 9")
    A(f"s_add_u32 s33, s33, {NRM_LDS + 64}")
    A(f"v_add_u32 v{vt+1}, s33, v{vt}")
    A(f"ds_write_b64 v{vt+1}, {V(MX[0], 2)}")
    A(f"s_xor_b32 s34, s{sW}, 4")
    A(f"s_lshl_b32 s34, s34, 9")
    A(f"s_add_u32 s34, s34, {NRM_LDS + 64}")
    A(f"v_add_u32 v{vt+1}, s34, v{vt}")
    A("s_waitcnt lgkmcnt(0)")
    A("s_barrier")
    A(f"ds_read_b64 {V(vt + 2, 2)}, v{vt+1}")
    A("s_waitcnt lgkmcnt(0)")
    for X in range(2):
        A(f"v_max_f32 v{vt+2+X}, v{vt+2+X}, v{MX[X]}")
        A(f"v_sub_f32 v{vt+2+X}, v{MX[X]}, v{vt+2+X}")
        A(f"v_exp_f32 v{vt+2+X}, v{vt+2+X}")
        A("s_nop 0")
        for i in range(16):
            A(f"v_mul_f32 v{O[X]+i}, v{O[X]+i}, v{vt+2+X}")
        A(f"v_mul_f32 v{L[X]}, v{L[X]}, v{vt+2+X}")

    A.label(FIN)
    stamp(A, opts, 2)
    xstamp(A, opts, "loopend")
    code_prefetch(A, opts, name, opts.get("next"), opts.get("next_bytes", 8192), sW, vt + 4, 46)
    A(f"v_lshlrev_b32 v{vt}, 4, v0")
    A(f"s_lshl_b32 s33, s{sW}, 12")
    A(f"v_add_u32 v{vt+1}, s33, v{vt}")
    A(f"s_xor_b32 s34, s{sW}, 4")
    A(f"s_lshl_b32 s35, s34, 12")
    A(f"v_add_u32 v{vt+2}, s35, v{vt}")
    A(f"v_lshlrev_b32 v{vt}, 2, v0")
    A(f"s_lshl_b32 s33, s{sW}, 8")
    A(f"s_add_u32 s33, s33, {QX}")
    A(f"v_add_u32 v{vt+3}, s33, v{vt}")
    A(f"s_lshl_b32 s34, s34, 8")
    A(f"s_add_u32 s34, s34, {QX}")
    A(f"v_add_u32 v{vt+4}, s34, v{vt}")
    A("s_nop 3")
    KEEPB = f"L_{name}_keepb"
    JOIN = f"L_{name}_join"
    A(f"s_cmp_lg_u32 s{sHalf}, 0")
    A(f"s_cbranch_scc1 {KEEPB}")
    for i in range(4):
        A(f"ds_write_b128 v{vt+1}, {V(O[1] + 4*i, 4)} offset:{i * 1024}")
    A(f"ds_write_b32 v{vt+3}, v{L[1]}")
    A(f"s_branch {JOIN}")
    A.label(KEEPB)
    for i in range(4):
        A(f"ds_write_b128 v{vt+1}, {V(O[0] + 4*i, 4)} offset:{i * 1024}")
    A(f"ds_write_b32 v{vt+3}, v{L[0]}")
    A("s_waitcnt lgkmcnt(0)")
    for i in range(0, 16, 2):
        A(f"v_mov_b64 v[{O[0]+i}:{O[0]+i+1}], v[{O[1]+i}:{O[1]+i+1}]")
    A(f"v_mov_b32 v{L[0]}, v{L[1]}")
    A.label(JOIN)
    A("s_waitcnt lgkmcnt(0)")
    A("s_barrier")
    xstamp(A, opts, "xbar")
    for i in range(4):
        A(f"ds_read_b128 {V(O[1] + 4*i, 4)}, v{vt+2} offset:{i * 1024}")
    A(f"ds_read_b32 v{L[1]}, v{vt+4}")
    A(f"v_bfe_u32 v{vt}, v0, 4, 1")
    A(f"v_lshlrev_b32 v{vt+1}, 11, v{vt}")
    A(f"v_lshrrev_b32 v{vt}, 5, v0")
    A(f"v_lshl_add_u32 v{vt+1}, v{vt}, 8, v{vt+1}")
    A(f"v_and_b32 v{vt}, 15, v0")
    A(f"v_lshl_add_u32 v{vt+1}, v{vt}, 4, v{vt+1}")
    A(f"s_lshr_b32 s33, s{sH}, 1")
    A(f"s_lshl_b32 s33, s33, 18")
    A(f"s_and_b32 s34, s{sH}, 1")
    A(f"s_lshl_b32 s34, s34, 10")
    A(f"s_add_u32 s33, s33, s34")
    A(f"s_lshl_b32 s34, s{sTB}, 13")
    A(f"s_add_u32 s33, s33, s34")
    A(f"s_lshl_b32 s34, s{sHalf}, 12")
    A(f"s_add_u32 s33, s33, s34")
    A("s_waitcnt lgkmcnt(0)")
    A(f"v_add_f32 v{L[0]}, v{L[0]}, v{L[1]}")
    A(f"v_rcp_f32 v{vt+2}, v{L[0]}")
    for i in range(16):
        A(f"v_add_f32 v{O[0]+i}, v{O[0]+i}, v{O[1]+i}")
    for i in range(16):
        A(f"v_mul_f32 v{O[0]+i}, v{O[0]+i}, v{vt+2}")
    for j in range(8):
        A(f"v_cvt_pk_bf16_f32 v{P[0]+j}, v{O[0]+2*j}, v{O[0]+2*j+1}")
    for c in range(2):
        A(f"buffer_store_dwordx4 {V(P[0] + 4*c, 4)}, v{vt+1}, s[{SRD_O}:{SRD_O+3}], s33 offen offset:{c * 512}")
    xstamp(A, opts, "stored")
    if opts.get("prof"):
        A("s_waitcnt vmcnt(0)")
        stamp(A, opts, 3)
        prof_store(A, opts, 4, opts.get("kidx", 0))
    A.label(END)
    A("s_endpgm")
    return kernel_desc(name, NV, 0, 102)
```

```python
from gen_common import *
import gen_gs, gen_k4, gen_k5b

K345_LDS = 65536 + 57344


def add_flag(A, l0, flag):
    for i in range(l0, len(A.lines)):
        t = A.lines[i].strip()
        if t.startswith("buffer_store") and flag not in t:
            A.lines[i] = A.lines[i] + " " + flag


def gen_k345(A, name="k3_ffn_kernel", opts=None):
    opts = dict(opts or {})
    base = {k: v for k, v in opts.items() if k in ("prof", "kidx", "st", "no_cpf")}
    if not opts.get("st"):
        base["st"] = ["_none_"]
    kernel_begin(A, name)
    END = f"L_{name}_end"
    sW = 24
    A("s_cmp_ge_u32 s2, 256")
    A(f"s_cbranch_scc1 {END}")
    stamp(A, opts, 0)
    A(f"s_load_dwordx2 s[4:5], s[0:1], {KA_WS}")
    A(f"s_load_dwordx2 s[80:81], s[0:1], {KA_WO}")
    A(f"s_load_dwordx2 s[82:83], s[0:1], {KA_X}")
    A(f"s_load_dwordx4 s[84:87], s[0:1], {KA_WG}")
    A(f"s_load_dwordx2 s[88:89], s[0:1], {KA_OUT}")
    A("v_lshrrev_b32 v10, 6, v0")
    A("v_and_b32 v0, 63, v0")
    A("s_nop 0")
    A(f"v_readfirstlane_b32 s{sW}, v10")

    ATOM = opts.get("atomic", 0)

    def publish(tag, own_sgpr, region_own):
        xstamp(A, opts, f"h{tag}pre")
        A("s_waitcnt vmcnt(0)")
        xstamp(A, opts, f"h{tag}drain")
        A("s_barrier")
        SK = f"L_{name}_pub{tag}"
        A(f"s_cmp_lg_u32 s{sW}, 0")
        A(f"s_cbranch_scc1 {SK}")
        A(f"s_add_u32 s46, s4, {region_own}")
        A("s_addc_u32 s47, s5, 0")
        A("v_mov_b32 v13, 1")
        if ATOM:
            A("v_lshlrev_b32 v12, 7, v0")
            A(f"v_add_u32 v12, s{own_sgpr}, v12")
            A("s_mov_b64 exec, 15")
            A("global_atomic_add v12, v13, s[46:47] sc1")
            A("s_mov_b64 exec, -1")
        else:
            A(f"v_mov_b32 v12, s{own_sgpr}")
            A("global_store_dword v12, v13, s[46:47] sc1")
        A.label(SK)

    def await_(tag, region_poll, base_calc, nl=32):
        SK, L, G = f"L_{name}_h{tag}", f"L_{name}_p{tag}", f"L_{name}_g{tag}"
        A(f"s_cmp_lg_u32 s{sW}, 0")
        A(f"s_cbranch_scc1 {SK}")
        base_calc()
        A(f"s_add_u32 s46, s4, {region_poll}")
        A("s_addc_u32 s47, s5, 0")
        A("s_mov_b32 s37, 0x8000")
        if ATOM:
            A("s_bfe_u32 s34, s2, 0x20003")
            A("s_lshl_b32 s34, s34, 7")
            A("s_add_u32 s33, s33, s34")
            A("v_mov_b32 v12, s33")
            A.label(L)
            A("v_mov_b32 v14, 0")
            A("s_mov_b64 exec, 1")
            A("global_atomic_add v13, v12, v14, s[46:47] sc0 sc1")
            A("s_mov_b64 exec, -1")
            A("s_waitcnt vmcnt(0)")
            A("v_readfirstlane_b32 s34, v13")
            A("s_sub_u32 s37, s37, 1")
            A("s_cmp_eq_u32 s37, 0")
            A(f"s_cbranch_scc1 {G}")
            A(f"s_cmp_lt_u32 s34, {nl}")
            A(f"s_cbranch_scc1 {L}")
        else:
            A("v_lshlrev_b32 v12, 7, v0")
            A("v_add_u32 v12, s33, v12")
            A.label(L)
            A(f"s_mov_b32 exec_lo, {hex((1 << nl) - 1)}"); A("s_mov_b32 exec_hi, 0")
            A("global_load_dword v13, v12, s[46:47] sc1")
            A("s_waitcnt vmcnt(0)")
            A("v_cmp_ne_u32 vcc, 1, v13")
            A("s_mov_b64 exec, -1")
            A("s_sub_u32 s37, s37, 1")
            A("s_cmp_eq_u32 s37, 0")
            A(f"s_cbranch_scc1 {G}")
            A("s_nop 3")
            A(f"s_cbranch_vccnz {L}")
        A.label(G)
        A.label(SK)
        A("s_waitcnt vmcnt(0)")
        A("s_barrier")

    o3 = dict(dict(base, emb=1, next=f"L_{name}_k4", next_bytes=10240, no_l2w=1), **opts.get("k3", {}))
    l0 = len(A.lines)
    gen_gs.gen_k3(A, name + "_3", o3)
    add_flag(A, l0, "sc1")
    xstamp(A, opts, "k3end")
    if ATOM:
        A(f"s_lshr_b32 s90, s{gen_gs.sTB}, 1")
        A("s_lshl_b32 s90, s90, 9")
    else:
        A(f"s_lshl_b32 s90, s{gen_gs.sTB}, 4")
        A(f"s_add_u32 s90, s90, s{gen_gs.sCB}")
        A("s_lshl_b32 s90, s90, 7")

    A.label(f"L_{name}_k4")

    def h4(sTB4):
        await_("4", WS_F3, lambda: A(f"s_lshl_b32 s33, s{sTB4}, {9 if ATOM else 12}"))
        xstamp(A, opts, "got3")
    o4 = dict(dict(base, emb=1, lds_base=65536, grp=opts.get("grp", 1), publish=lambda: publish("4", 90, WS_F3), handoff=h4, next=f"L_{name}_k5", next_bytes=5120,
                   l2w_emb=1), **opts.get("k4", {}))
    l0 = len(A.lines)
    gen_k4.gen_k4(A, name + "_4", o4)
    add_flag(A, l0, "sc1")
    xstamp(A, opts, "k4end")
    if ATOM:
        A("s_lshl_b32 s91, s25, 1")
        A("s_lshr_b32 s33, s26, 4")
        A("s_add_u32 s91, s91, s33")
        A("s_lshl_b32 s91, s91, 9")
    else:
        A("s_lshl_b32 s91, s25, 5")
        A("s_add_u32 s91, s91, s26")
        A("s_lshl_b32 s91, s91, 7")

    A.label(f"L_{name}_k5")

    if opts.get("split", 1) and opts.get("grp", 1):
        A("s_lshl_b32 s91, s25, 1")
        A(f"s_lshr_b32 s33, s{sW}, 1")
        A("s_add_u32 s91, s91, s33")
        A("s_lshl_b32 s91, s91, 1")
        A("s_lshr_b32 s33, s26, 4")
        A("s_add_u32 s91, s91, s33")
        A("s_lshl_b32 s91, s91, 8")

        def arrive(g):
            A(f"s_add_u32 s46, s4, {WS_F4 + 128 * g}")
            A("s_addc_u32 s47, s5, 0")
            A("v_mov_b32 v12, s91")
            A("v_mov_b32 v13, 1")
            A("s_mov_b64 exec, 1")
            A("global_atomic_add v12, v13, s[46:47] sc1")
            A("s_mov_b64 exec, -1")

        def pub5():
            xstamp(A, opts, "h5pre")
            A("s_waitcnt vmcnt(8)")
            arrive(0)

        def counter_addr(sTB5, sKH5, g):
            A(f"s_lshl_b32 s33, s{sTB5}, 1")
            A(f"s_add_u32 s33, s33, s{sKH5}")
            A("s_lshl_b32 s33, s33, 8")
            A(f"s_add_u32 s46, s4, {WS_F4 + 128 * g}")
            A("s_addc_u32 s47, s5, 0")

        def spin(tag):
            L, G = f"L_{name}_sp{tag}", f"L_{name}_sg{tag}"
            A("s_mov_b32 s37, 0x8000")
            A.label(L)
            A("global_load_dword v13, v12, s[46:47] sc1")
            A("s_waitcnt vmcnt(0)")
            A("v_readfirstlane_b32 s34, v13")
            A("s_sub_u32 s37, s37, 1")
            A("s_cmp_eq_u32 s37, 0")
            A(f"s_cbranch_scc1 {G}")
            A("s_cmp_lt_u32 s34, 32")
            A(f"s_cbranch_scc1 {L}")
            A.label(G)

        def h5(sTB5, sKH5):
            SK = f"L_{name}_h5"
            A(f"s_cmp_lg_u32 s{sW}, 0")
            A(f"s_cbranch_scc1 {SK}")
            counter_addr(sTB5, sKH5, 0)
            A("v_mov_b32 v12, s33")
            spin("0")
            A.label(SK)
            A("s_waitcnt vmcnt(0)")
            A("s_barrier")
            arrive(1)
            xstamp(A, opts, "got4")

        def g1_read(sTB5, sKH5, reg):
            counter_addr(sTB5, sKH5, 1)
            A("v_mov_b32 v12, s33")
            A(f"global_load_dword v{reg}, v12, s[46:47] sc1")

        def g1_check(sTB5, sKH5, reg, back):
            A(f"v_readfirstlane_b32 s34, v{reg}")
            A("s_nop 0")
            A("s_cmp_ge_u32 s34, 32")
            A(f"s_cbranch_scc1 {back}")
            counter_addr(sTB5, sKH5, 1)
            A("v_mov_b32 v12, s33")
            spin("1")
            A(f"s_branch {back}")
        A("s_mov_b64 s[42:43], s[88:89]")
        o5 = dict(base, publish=pub5, handoff=h5, g1_read=g1_read, g1_check=g1_check, **opts.get("k5", {}))
        gen_k5b.gen_k5b(A, name + "_5", o5)
    elif opts.get("split", 1):
        def h5(sTB5, sKH5):
            def bc():
                A(f"s_lshr_b32 s33, s{sTB5}, 1")
                if ATOM:
                    A("s_lshl_b32 s33, s33, 1")
                    A(f"s_add_u32 s33, s33, s{sKH5}")
                    A("s_lshl_b32 s33, s33, 9")
                else:
                    A("s_lshl_b32 s33, s33, 12")
                    A(f"s_lshl_b32 s34, s{sKH5}, 11")
                    A("s_add_u32 s33, s33, s34")
            await_("5", WS_F4, bc, 16)
            xstamp(A, opts, "got4")
        A("s_mov_b64 s[42:43], s[88:89]")
        o5 = dict(base, publish=lambda: publish("5", 91, WS_F4), handoff=h5, **opts.get("k5", {}))
        gen_k5b.gen_k5b(A, name + "_5", o5)
    else:
        def h5():
            def bc():
                A(f"s_lshr_b32 s33, s{gen_gs.sTB}, 1")
                A("s_lshl_b32 s33, s33, 12")
            await_("5", WS_F4, bc)
            xstamp(A, opts, "got4")
        o5 = dict(base, emb=1, U=4, publish=lambda: publish("5", 91, WS_F4), handoff=h5, **opts.get("k5", {}))
        gen_gs.gen_k5(A, name + "_5", o5)
    if opts.get("prof"):
        A("s_waitcnt vmcnt(0)")
        stamp(A, opts, 3)
        prof_store(A, opts, 4, opts.get("kidx", 0))
    A.label(END)
    A("s_endpgm")
    return kernel_desc(name, 256, 176, 102)
```

```python
from gen_common import *
import math

C0 = -2.0 * math.sqrt(2.0 / math.pi) * math.log2(math.e)
C1 = C0 * 0.044715


def gen_k4(A, name="k4_gateup_kernel", opts=None):
    opts = opts or {}
    emb = opts.get("emb")
    LB = opts.get("lds_base", 0)
    END = f"L_{name}_end"
    if not emb:
        kernel_begin(A, name)
    vT0, vT1 = 1, 2
    vWo = 3
    vWa = 10
    vt = 12
    ACC = 32
    R = [0, 56]
    TS = 112
    SLOT = 28672
    sW, sTB, sJB = 24, 25, 26
    sToff, sWoff, sM0b = 27, 28, 31
    SRD_T, SRD_W, SRD_O, SRD_V = 8, 12, 16, 20

    def acc(wf, tl):
        return V(ACC + (wf * 4 + tl) * 4, 4)

    if emb:
        A("s_mov_b64 s[40:41], s[84:85]")
        A("s_mov_b64 s[42:43], s[86:87]")
        A(f"s_and_b32 s3, s2, 7")
    else:
        A(f"s_cmp_ge_u32 s2, 256")
        A(f"s_cbranch_scc1 {END}")
        stamp(A, opts, 0)
        A(f"s_load_dwordx2 s[4:5], s[0:1], {KA_WS}")
        A(f"s_load_dwordx4 s[40:43], s[0:1], {KA_WG}")
        A(f"v_lshrrev_b32 v{vt}, 6, v0")
        A(f"v_and_b32 v0, 63, v0")
        A(f"s_and_b32 s3, s2, 7")
        A(f"v_readfirstlane_b32 s{sW}, v{vt}")
    A(f"s_lshr_b32 s30, s2, 3")
    if opts.get("map", "4x8") == "4x8":
        A(f"s_and_b32 s{sTB}, s3, 1")
        A(f"s_lshl_b32 s{sTB}, s{sTB}, 2")
        A(f"s_and_b32 s33, s30, 3")
        A(f"s_add_u32 s{sTB}, s{sTB}, s33")
        A(f"s_lshr_b32 s{sJB}, s3, 1")
        A(f"s_lshl_b32 s{sJB}, s{sJB}, 3")
        A(f"s_lshr_b32 s33, s30, 2")
        A(f"s_add_u32 s{sJB}, s{sJB}, s33")
    else:
        A(f"s_lshr_b32 s{sTB}, s3, 1")
        A(f"s_lshl_b32 s{sTB}, s{sTB}, 1")
        A(f"s_and_b32 s33, s30, 1")
        A(f"s_add_u32 s{sTB}, s{sTB}, s33")
        A(f"s_and_b32 s{sJB}, s3, 1")
        A(f"s_lshl_b32 s{sJB}, s{sJB}, 4")
        A(f"s_lshr_b32 s33, s30, 1")
        A(f"s_add_u32 s{sJB}, s{sJB}, s33")
    A(f"s_lshl_b32 s33, s{sTB}, 2")
    A(f"s_add_u32 s33, s33, s{sW}")
    A(f"s_lshl_b32 s33, s33, 13")
    A(f"v_lshlrev_b32 v{vT0}, 4, v0")
    A(f"v_add_u32 v{vT0}, s33, v{vT0}")
    A(f"v_add_u32 v{vT1}, 0x1000, v{vT0}")
    A(f"s_waitcnt lgkmcnt(0)")
    xstamp(A, opts, "karg")
    srd(A, SRD_T, 4, WS_HC, 4 * MB)
    srd(A, SRD_V, 4, WS_VP, 2048 * 64)
    A(f"s_cmp_lt_u32 s{sW}, 2")
    A(f"s_cselect_b32 s6, s40, s42")
    A(f"s_cselect_b32 s7, s41, s43")
    srd(A, SRD_W, 6, 0, 1024 * 7168)
    srd(A, SRD_O, 4, WS_ACT, ACT_BYTES)

    def tr_reads(rbuf, vbase, slot, s2):
        out = []
        for F in range(7):
            for mat in range(2):
                wf = mat * 7 + F
                for i in range(2):
                    off = slot * SLOT + mat * 14336 + (32 * s2 + 16 * i) * 224 + F * 32
                    out.append(f"ds_read_b64_tr_b16 {Ac(R[rbuf] + wf * 4 + 2 * i, 2)}, v{vbase} offset:{off}")
        return out

    TRR = tr_reads

    def t_load(u, soff):
        out = []
        for tl in range(4):
            dst = Ac(TS + (u % 4) * 16 + tl * 4, 4)
            vo = vT0 if tl < 2 else vT1
            out.append(f"buffer_load_dwordx4 {dst}, v{vo}, s[{SRD_T}:{SRD_T+3}], {soff} offen offset:{(tl % 2) * 2048 + (u % 2) * 1024}")
        return out

    def w_dma(slot, soff):
        out = []
        for m in range(7):
            grp = []
            if m % 4 == 0:
                grp.append(f"s_add_u32 m0, s{sM0b}, {slot * SLOT + (m // 4) * 4096}")
                grp.append("s_nop 0")
            grp.append(f"buffer_load_dwordx4 v{vWo + m}, s[{SRD_W}:{SRD_W+3}], {soff} offen offset:{(m % 4) * 1024} lds")
            out.append(grp)
        return out

    if opts.get("k5s"):
        A(f"s_add_u32 s46, s4, {WS_FL}")
        A(f"s_addc_u32 s47, s5, 0")
        A(f"s_lshl_b32 s33, s2, 10")
        A(f"v_lshlrev_b32 v{ACC}, 7, v0")
        A(f"v_add_u32 v{ACC}, s33, v{ACC}")
        A(f"v_mov_b32 v{ACC+1}, 0")
        A("s_mov_b64 exec, 0xff")
        A(f"global_store_dword v{ACC}, v{ACC+1}, s[46:47]")
        A("s_mov_b64 exec, -1")

    def first_token_loads():
        A(f"s_lshl_b32 s33, s{sTB}, 2")
        A(f"s_add_u32 s33, s33, s{sW}")
        A(f"s_lshl_b32 s33, s33, 12")
        A(f"v_lshlrev_b32 v11, 4, v0")
        for i in range(4):
            A(f"buffer_load_dwordx4 {V(vt + 4 * i, 4)}, v11, s[{SRD_V}:{SRD_V+3}], s33 offen offset:{1024 * i}")
        A(f"s_mov_b32 s{sToff}, 0")
        for l in t_load(0, f"s{sToff}"):
            A(l)

    if not emb:
        first_token_loads()
    A(f"s_and_b32 s34, s{sJB}, 1")
    A(f"s_lshl_b32 s34, s34, 1")
    A(f"s_mul_i32 s35, s{sJB}, 224")
    A(f"s_and_b32 s36, s{sW}, 1")
    A(f"s_mul_i32 s36, s36, {32 * 7168}")
    A(f"s_add_u32 s35, s35, s36")
    A(f"s_movk_i32 s37, 4682")
    A(f"s_movk_i32 s38, 7168")
    A(f"s_mul_i32 s{sM0b}, s{sW}, 7168")
    if LB: A(f"s_add_u32 s{sM0b}, s{sM0b}, {LB}")
    A(f"s_mov_b32 s{sWoff}, 0")
    w0 = w_dma(0, f"s{sWoff}")
    t0 = ACC + 4
    for m in range(7):
        d = vWo + m
        A(f"v_add_u32 v{t0}, {64 * m}, v0")
        A(f"v_mul_u32_u24 v{t0+1}, s37, v{t0}")
        A(f"v_lshrrev_b32 v{t0+1}, 16, v{t0+1}")
        A(f"v_mul_u32_u24 v{t0+2}, 14, v{t0+1}")
        A(f"v_sub_u32 v{t0}, v{t0}, v{t0+2}")
        A(f"v_add_u32 v{t0}, s34, v{t0}")
        A(f"v_subrev_u32 v{t0+2}, 14, v{t0}")
        A(f"v_min_u32 v{t0}, v{t0}, v{t0+2}")
        A(f"v_mul_u32_u24 v{t0+1}, s38, v{t0+1}")
        A(f"v_lshl_add_u32 v{d}, v{t0}, 4, v{t0+1}")
        A(f"s_sub_u32 s39, s35, {(m % 4) * 1024}")
        A(f"v_add_u32 v{d}, s39, v{d}")
        if not emb:
            for l in w0[m]: A(l)

    NIT = 8

    def seq(tr, it):
        if it == -1:
            for t, n in ((("FL", 0), 1), (("VP", 0), 4), (("T", 0), 4), (("W", 0), 7), (("W", 1), 7), (("T", 1), 4)):
                for _ in range(n): tr.issue(t)
            return None
        ns = []
        for s in (2 * it, 2 * it + 1):
            ns.append(tr.wait_for(lambda t: t == ("T", 2 * s)))
            for _ in range(4): tr.issue(("T", 2 * s + 2))
            ns.append(tr.wait_for(lambda t: t == ("T", 2 * s + 1) or t == ("W", s + 1)))
            for _ in range(7): tr.issue(("W", s + 2))
            for _ in range(4): tr.issue(("T", 2 * s + 3))
        return ns

    waits = resolve_waits(seq, NIT)
    waits = [63 if w is None else w for w in waits]
    if emb:
        waits = [11, 4, 11, 4]
        opts["publish"]()
        for g in w0:
            for l in g: A(l)
        A(f"s_add_u32 s{sWoff}, s{sWoff}, {64 * 7168}")
        if not opts.get("w1late"):
            for g in w_dma(1, f"s{sWoff}"):
                for l in g: A(l)
            A(f"s_add_u32 s{sWoff}, s{sWoff}, {64 * 7168}")
        for i in range(0, 224, 2):
            A(f"v_mov_b64 v[{ACC + i}:{ACC + i + 1}], 0")
        opts["handoff"](sTB)
        first_token_loads()
        if opts.get("w1late"):
            for g in w_dma(1, f"s{sWoff}"):
                for l in g: A(l)
            A(f"s_add_u32 s{sWoff}, s{sWoff}, {64 * 7168}")
        for l in t_load(1, f"s{sToff}"): A(l)
        A(f"s_mov_b32 s{sToff}, {STAGE_BYTES}")

    xstamp(A, opts, "issued")
    A(f"v_lshrrev_b32 v11, 2, v0")
    A(f"v_mul_u32_u24 v{vWa}, 224, v11")
    A(f"v_and_b32 v11, 3, v0")
    A(f"v_lshl_add_u32 v{vWa}, v11, 3, v{vWa}")
    if LB: A(f"v_add_u32 v{vWa}, {LB}, v{vWa}")
    if emb:
        for l in TRR(0, vWa, 0, 0): A(l)
    if not emb:
        for i in range(0, 224, 2):
            A(f"v_mov_b64 v[{ACC + i}:{ACC + i + 1}], 0")
    cAB = 20
    cR = 28
    A(f"s_waitcnt vmcnt({(15 if opts.get('w1late') else 8) if emb else 11})")
    A(f"s_mov_b32 s45, {f32hex(1.0 / 1024)}")
    for tl in range(4):
        b = vt + 4 * tl
        A(f"v_add_f32 v{b}, v{b}, v{b+1}")
        A(f"v_add_f32 v{b+2}, v{b+2}, v{b+3}")
    for tl in range(4):
        b = vt + 4 * tl
        A(f"v_add_f32 v{b}, v{b}, v{b+2}")
    for pm in ("[1,0,3,2]", "[2,3,0,1]"):
        A("s_nop 1")
        for tl in range(4):
            b = vt + 4 * tl
            A(f"v_add_f32_dpp v{b}, v{b}, v{b} quad_perm:{pm} row_mask:0xf bank_mask:0xf")
    A(f"v_and_b32 v{vt+1}, 15, v0")
    A(f"v_lshlrev_b32 v{vt+1}, 4, v{vt+1}")
    A(f"v_mov_b32 v{vt+2}, {f32hex(EPS)}")
    for tl in range(4):
        A(f"ds_bpermute_b32 v{cR + tl}, v{vt+1}, v{vt + 4 * tl}")
    A(f"s_waitcnt lgkmcnt(0)")
    for tl in range(4):
        A(f"v_fma_f32 v{cR + tl}, v{cR + tl}, s45, v{vt+2}")
    for tl in range(4):
        A(f"v_rsq_f32 v{vt + 4 + tl}, v{cR + tl}")
    for tl in range(4):
        r = vt + 4 + tl
        A(f"v_mul_f32 v{cAB + 2 * tl}, {f32hex(C0)}, v{r}")
        A(f"v_mul_f32 v{cAB + 2 * tl + 1}, v{r}, v{r}")
        A(f"v_mul_f32 v{cAB + 2 * tl + 1}, v{cAB + 2 * tl + 1}, v{r}")
        A(f"v_mul_f32 v{cAB + 2 * tl + 1}, {f32hex(C1)}, v{cAB + 2 * tl + 1}")

    if emb:
        A(f"s_waitcnt vmcnt({11 if opts.get('w1late') else 4})")
    else:
        xstamp(A, opts, "prewait")
        A(f"s_waitcnt vmcnt(0)")
        xstamp(A, opts, "w0")
        A(f"s_barrier")
        rd0 = tr_reads(0, vWa, 0, 0)
        A(f"s_add_u32 s{sWoff}, s{sWoff}, {64 * 7168}")
        g1 = w_dma(1, f"s{sWoff}")
        for m in range(7):
            for l in g1[m]: A(l)
            for l in rd0[4 * m: 4 * m + 4]: A(l)
        A(f"s_add_u32 s{sWoff}, s{sWoff}, {64 * 7168}")
        for l in t_load(1, f"s{sToff}"): A(l)
        A(f"s_mov_b32 s{sToff}, {STAGE_BYTES}")

    def step_mfmas(rbuf, tslot):
        out = []
        order = opts.get("order", "snake")
        if order == "F":
            seq_ = [(mat * 7 + F, tl) for F in range(7) for mat in range(2) for tl in range(4)]
        elif order == "tl":
            seq_ = [(mat * 7 + F, tl) for tl in range(4) for F in range(7) for mat in range(2)]
        elif order == "2x2":
            seq_ = []
            for F in range(7):
                for tp in range(2):
                    a, b = F, 7 + F
                    seq_ += [(a, 2 * tp), (a, 2 * tp + 1), (b, 2 * tp + 1), (b, 2 * tp)]
        elif order == "snake":
            seq_ = []
            for k, wf in enumerate([mat * 7 + F for F in range(7) for mat in range(2)]):
                seq_ += [(wf, tl) for tl in (range(4) if k % 2 == 0 else range(3, -1, -1))]
        for wf, tl in seq_:
            out.append(mfma16(acc(wf, tl), Ac(R[rbuf] + wf * 4, 4), Ac(TS + tslot * 16 + tl * 4, 4)))
        return out

    LOOP = f"L_{name}_loop"
    stamp(A, opts, 1)
    xstamp(A, opts, "k4loop")
    A(f"s_mov_b32 s44, {NIT}")
    A.loop_begin(LOOP)
    wi = 0
    for sp in range(2):
        u = 2 * sp
        A(f"s_waitcnt vmcnt({waits[wi]}) lgkmcnt(0)"); wi += 1
        f = {}
        P = opts.get("sched", {})
        spread(f, tr_reads(1, vWa, sp, 1), P.get("ra0", 0), P.get("ra1", 44))
        spread(f, t_load(u + 2, f"s{sToff}"), P.get("ta0", 2), P.get("ta1", 24))
        main = step_mfmas(0, u % 4)
        for l in interleave(main, f): A(l)
        A(f"s_waitcnt vmcnt({waits[wi]}) lgkmcnt(0)"); wi += 1
        A(f"s_barrier")
        f = {}
        spread(f, tr_reads(0, vWa, 1 - sp, 0), P.get("rb0", 0), P.get("rb1", 44))
        spread(f, w_dma(sp, f"s{sWoff}"), P.get("wb0", 0), P.get("wb1", 28))
        spread(f, t_load(u + 3, f"s{sToff}"), P.get("tb0", 30), P.get("tb1", 46))
        f.setdefault(48, []).append(f"s_add_u32 s{sWoff}, s{sWoff}, {64 * 7168}")
        f[48].append(f"s_add_u32 s{sToff}, s{sToff}, {STAGE_BYTES}")
        if sp == 1:
            f.setdefault(54, []).append(f"s_sub_u32 s44, s44, 1")
            f[54].append(f"s_cmp_lg_u32 s44, 0")
        main = step_mfmas(1, (u + 1) % 4)
        for l in interleave(main, f): A(l)
    A(f"s_cbranch_scc1 {LOOP}")
    A.loop_end()

    stamp(A, opts, 2)
    xstamp(A, opts, "k4loopend")
    A(f"s_waitcnt lgkmcnt(0)")
    if (not opts.get("no_l2w") and not emb) or opts.get("l2w_emb"):
        A(f"s_lshr_b32 s33, s2, 3")
        A(f"s_lshl_b32 s33, s33, 2")
        A(f"s_add_u32 s33, s33, s{sW}")
        if opts.get("k5s") or opts.get("l2w_emb"):
            A(f"s_lshr_b32 s34, s33, 3")
            A(f"s_mul_i32 s34, s34, {56 * 8192}")
            A(f"s_and_b32 s35, s2, 1")
            A(f"s_mul_i32 s35, s35, {28 * 8192}")
            A(f"s_add_u32 s34, s34, s35")
            A(f"s_and_b32 s33, s33, 7")
            A(f"s_lshl_b32 s33, s33, 12")
            mask = "0xffffffff"
        else:
            A(f"s_lshr_b32 s34, s33, 4")
            A(f"s_and_b32 s35, s2, 1")
            A(f"s_lshl_b32 s35, s35, 3")
            A(f"s_add_u32 s34, s34, s35")
            A(f"s_mul_i32 s34, s34, {56 * 8192}")
            A(f"s_and_b32 s33, s33, 15")
            A(f"s_lshl_b32 s33, s33, 11")
            mask = "0xffff"
        A(f"s_add_u32 s33, s33, s34")
        A(f"s_add_u32 s33, s33, {WS_WD}")
        A(f"v_lshlrev_b32 v12, 7, v0")
        A(f"v_add_u32 v12, s33, v12")
        A(f"s_mov_b32 exec_lo, {mask}"); A("s_mov_b32 exec_hi, 0")
        A(f"global_load_dword v13, v12, s[4:5]")
        A("s_mov_b64 exec, -1")
    code_prefetch(A, opts, name, opts.get("next"), opts.get("next_bytes", 8192), sW, 14, 46)
    GRP = opts.get("grp")
    if GRP:
        A(f"s_and_b32 s34, s{sJB}, 1")
        A(f"s_bfe_u32 s35, s{sJB}, 0x30001")
        A(f"s_lshr_b32 s36, s{sJB}, 4")
        A(f"s_mul_i32 s36, s36, 56")
        for P in range(4):
            if P < 2:
                A("s_lshl_b32 s37, s35, 2")
                A("s_lshl_b32 s39, s34, 1")
                A("s_add_u32 s37, s37, s39")
                A(f"s_add_u32 s37, s37, {P}")
            else:
                A("s_mul_i32 s37, s35, 3")
                if P == 2:
                    A("s_lshl_b32 s39, s34, 1")
                    A("s_add_u32 s37, s37, s39")
                    A("s_add_u32 s37, s37, 32")
                else:
                    A("s_add_u32 s37, s37, 33")
            A("s_add_u32 s37, s37, s36")
            A("s_lshr_b32 s39, s37, 1")
            A("s_lshl_b32 s39, s39, 18")
            A("s_and_b32 s37, s37, 1")
            A("s_lshl_b32 s37, s37, 10")
            A(f"s_add_u32 s{48 + P}, s37, s39")
        A("s_lshl_b32 s34, s34, 3")
        A("s_add_u32 s51, s51, s34")
    else:
        A(f"s_and_b32 s34, s{sJB}, 1")
        A(f"s_mul_i32 s35, s{sJB}, 7")
        A(f"s_add_u32 s35, s35, s34")
        A(f"s_lshr_b32 s35, s35, 1")
        for P in range(4):
            if P < 3:
                A(f"s_add_u32 s36, s35, {P}")
            else:
                A(f"s_lshl_b32 s37, s34, 2")
                A(f"s_add_u32 s36, s35, 3")
                A(f"s_sub_u32 s36, s36, s37")
            A(f"s_lshr_b32 s37, s36, 1")
            A(f"s_lshl_b32 s37, s37, 18")
            A(f"s_and_b32 s36, s36, 1")
            A(f"s_lshl_b32 s36, s36, 10")
            A(f"s_add_u32 s{48 + P}, s36, s37")
        A(f"s_lshl_b32 s34, s34, 3")
        A(f"s_add_u32 s51, s51, s34")

    xstamp(A, opts, "epi1")
    TA, TB = 4, 6

    def glu(F, tl, h, T, dst):
        a = V(acc(F, tl).base + 2 * h, 2)
        u = V(acc(7 + F, tl).base + 2 * h, 2)
        AB = V(cAB + 2 * tl, 2)
        Rr = cR + tl
        Rp = V(Rr & ~1, 2)
        sel = "op_sel:[0,1,1] op_sel_hi:[1,1,1]" if Rr & 1 else "op_sel:[0,0,0] op_sel_hi:[1,0,0]"
        t = V(T, 2)
        return [
            f"v_pk_mul_f32 {t}, {a}, {a}",
            f"v_pk_fma_f32 {t}, {t}, {AB}, {AB} op_sel:[0,1,0] op_sel_hi:[1,1,0]",
            f"v_pk_mul_f32 {t}, {t}, {a}",
            f"v_exp_f32 v{T}, v{T}",
            f"v_exp_f32 v{T+1}, v{T+1}",
            f"v_pk_mul_f32 {a}, {a}, {u}",
            f"v_pk_fma_f32 {t}, {t}, {Rp}, {Rp} {sel}",
            f"v_rcp_f32 v{T}, v{T}",
            f"v_rcp_f32 v{T+1}, v{T+1}",
            "NOP",
            f"v_pk_mul_f32 {a}, {a}, {t}",
            f"v_cvt_pk_bf16_f32 v{dst}, v{a.base}, v{a.base+1}",
        ]

    order = [(tl, P) for P in range(4) for tl in range(4)] if GRP else [(tl, P) for tl in range(4) for P in range(4)]
    for tl, P in order:
        vo = vT0 if tl < 2 else vT1
        Fs = (2 * P, 2 * P + 1) if P < 3 else (6,)
        dbase = acc(7 + Fs[0], tl).base
        for n, F in enumerate(Fs):
            s0 = glu(F, tl, 0, TA, dbase + 2 * n)
            s1 = glu(F, tl, 1, TB, dbase + 2 * n + 1)
            for x, y in zip(s0, s1):
                if x != "NOP": A(x)
                if y != "NOP": A(y)
        if P < 3:
            A(f"buffer_store_dwordx4 {V(dbase, 4)}, v{vo}, s[{SRD_O}:{SRD_O+3}], s{48 + P} offen offset:{(tl % 2) * 2048}")
        else:
            A(f"buffer_store_dwordx2 {V(dbase, 2)}, v{vo}, s[{SRD_O}:{SRD_O+3}], s{48 + P} offen offset:{(tl % 2) * 2048}")
    xstamp(A, opts, "stored")
    if emb:
        return None
    if opts.get("prof"):
        A("s_waitcnt vmcnt(0)")
        stamp(A, opts, 3)
        prof_store(A, opts, 4, opts.get("kidx", 0))
    A.label(END)
    A("s_endpgm")
    return kernel_desc(name, 256, 176, 80)
```

```python
from gen_common import *

sW, sTB, sCB, sKH = 24, 25, 26, 27
sToff, sWoff, sM0b = 28, 29, 30
sTraw, sWraw, sTlim, sWlim = 56, 57, 58, 59
SRD_T, SRD_W, SRD_O, SRD_X = 8, 12, 16, 20
vT = [1, 2]
vW0, vW1 = 3, 4
vR = 6
vt = 10
ACC = 16
RB = [80, 144]
XTRA = 208
U, SLOT = 4, 16384


def acc(F, tl):
    return V(ACC + (tl * 8 + F) * 4, 4)


def wfrag(par, s2, F):
    return V(RB[par] + s2 * 32 + F * 4, 4)


def tslot(sl, s2, tl):
    return Ac(sl * 16 + s2 * 8 + tl * 4, 4)


def advance(off, raw, stride, limit):
    return [f"s_add_u32 s{raw}, s{raw}, {stride}", f"s_cmp_lt_u32 s{raw}, s{limit}", f"s_cselect_b32 s{off}, s{raw}, 0x7ff00000"]


def reduce_none():
    pass


def gen_k5b(A, name, opts):
    A("s_and_b32 s3, s2, 7")
    A("s_lshr_b32 s33, s2, 3")
    A(f"s_and_b32 s{sKH}, s3, 1")
    A(f"s_lshr_b32 s{sTB}, s3, 1")
    A(f"s_lshl_b32 s{sTB}, s{sTB}, 2")
    A("s_and_b32 s34, s33, 3")
    A(f"s_add_u32 s{sTB}, s{sTB}, s34")
    A(f"s_lshr_b32 s{sCB}, s33, 2")
    A(f"s_lshl_b32 s34, s{sTB}, 3")
    A(f"s_lshl_b32 s35, s{sW}, 1")
    A(f"s_add_u32 s34, s34, s35")
    A(f"s_add_u32 s60, s34, s{sKH}")
    A(f"s_lshl_b32 s34, s60, 11")
    A(f"v_lshlrev_b32 v{vt}, 4, v0")
    A(f"v_add_u32 v{vT[0]}, s34, v{vt}")
    A(f"v_xor_b32 v{vT[1]}, 2048, v{vT[0]}")
    A(f"s_mul_i32 s34, s{sCB}, {2 * 56 * 8192}")
    A(f"s_lshl_b32 s{sM0b}, s{sW}, 11")
    A(f"s_add_u32 s34, s34, s{sM0b}")
    A(f"v_add_u32 v{vW0}, s34, v{vt}")
    A(f"v_add_u32 v{vW1}, {56 * 8192}, v{vW0}")
    A(f"s_mul_i32 s{sTraw}, s{sKH}, {28 * STAGE_BYTES}")
    A(f"s_add_u32 s{sTlim}, s{sTraw}, {28 * STAGE_BYTES}")
    A(f"s_mul_i32 s{sWraw}, s{sKH}, {28 * 8192}")
    A(f"s_add_u32 s{sWlim}, s{sWraw}, {28 * 8192}")
    A(f"s_mov_b32 s{sToff}, s{sTraw}")
    A(f"s_mov_b32 s{sWoff}, s{sWraw}")
    A(f"v_lshrrev_b32 v{vt}, 4, v0")
    A(f"v_bfe_u32 v{vt+1}, v0, 2, 2")
    A(f"v_lshl_add_u32 v{vt+2}, v{vt}, 2, v{vt+1}")
    A(f"v_lshlrev_b32 v{vt+2}, 7, v{vt+2}")
    A(f"v_and_b32 v{vt+3}, 3, v0")
    A(f"v_lshl_add_u32 v{vt+2}, v{vt+3}, 3, v{vt+2}")
    A(f"v_lshrrev_b32 v{vt+1}, 1, v{vt+1}")
    A(f"v_and_b32 v{vt}, 1, v{vt}")
    A(f"v_lshl_or_b32 v{vt}, v{vt}, 1, v{vt+1}")
    A(f"v_lshl_or_b32 v{vR}, v{vt}, 5, v{vt+2}")
    for F in range(1, 4):
        A(f"v_xor_b32 v{vR+F}, {F << 5}, v{vR}")
    srd(A, SRD_T, 4, WS_ACT, ACT_BYTES)
    srd(A, SRD_W, 4, WS_WD, 3584 * 2048)

    def w_dma(slot):
        out = []
        for sub, vo in enumerate((vW0, vW1)):
            out.append([f"s_add_u32 m0, s{sM0b}, {slot * SLOT + sub * 8192}", "s_nop 0",
                        f"buffer_load_dwordx4 v{vo}, s[{SRD_W}:{SRD_W+3}], s{sWoff} offen lds"])
            out.append([f"buffer_load_dwordx4 v{vo}, s[{SRD_W}:{SRD_W+3}], s{sWoff} offen offset:1024 lds"])
        out[-1] = out[-1] + advance(sWoff, sWraw, 8192, sWlim)
        return out

    def t_loads(sl):
        out = [[f"buffer_load_dwordx4 {tslot(sl, s2, tl)}, v{vT[tl]}, s[{SRD_T}:{SRD_T+3}], s{sToff} offen offset:{s2 * 1024}"]
               for tl in range(2) for s2 in range(2)]
        out[-1] = out[-1] + advance(sToff, sTraw, STAGE_BYTES, sTlim)
        return out

    def tr_reads(par, slot):
        out = []
        for s2 in range(2):
            for F in range(8):
                for i in range(2):
                    off = slot * SLOT + (F // 4) * 8192 + (32 * s2 + 16 * i) * 128
                    out.append(f"ds_read_b64_tr_b16 {V(wfrag(par, s2, F).base + 2 * i, 2)}, v{vR + F % 4} offset:{off}")
        return out

    HR, MH = XTRA, XTRA + 16
    PEEL = opts.get("peel", 1)
    NIT = 6 if PEEL else 7

    def seq(tr, it):
        if it == -1:
            for s in range(U - 1):
                for _ in range(4): tr.issue(("T", s))
            for _ in range(5): tr.issue(("Y", 0))
            return None
        ns = []
        for s in range(U * it, U * it + U):
            ns.append(tr.wait_for(lambda t: t == ("T", s) or t == ("W", s + 1)))
            for _ in range(4): tr.issue(("W", s + U))
            for _ in range(4): tr.issue(("T", s + U - 1))
        return ns

    waits = [63 if w is None else min(w, 63) for w in resolve_waits(seq, NIT)]

    opts["publish"]()
    for s in range(U):
        for g in w_dma(s):
            for l in g: A(l)
    for i in range(0, 64, 2):
        A(f"v_mov_b64 v[{ACC + i}:{ACC + i + 1}], 0")
    opts["handoff"](sTB, sKH)
    for l in tr_reads(0, 0): A(l)
    for s in range(U - 1):
        for g in t_loads(s):
            for l in g: A(l)
    srd(A, SRD_X, 4, WS_HC, 4 * MB)
    A(f"s_lshl_b32 s34, s{sCB}, 19")
    A(f"s_add_u32 s35, s34, {STAGE_BYTES}")
    for c in range(4):
        A(f"buffer_load_dwordx4 {V(HR + 4 * c, 4)}, v{vT[0]}, s[{SRD_X}:{SRD_X+3}], s{34 + c // 2} offen offset:{(c % 2) * 1024}")
    srd(A, SRD_X, 4, WS_MH, 8192)
    A(f"v_and_b32 v{vt}, 15, v0")
    A(f"v_lshlrev_b32 v{vt}, 2, v{vt}")
    A(f"s_lshl_b32 s34, s60, 6")
    A(f"buffer_load_dword v{MH}, v{vt}, s[{SRD_X}:{SRD_X+3}], s34 offen")
    xstamp(A, opts, "k5loop")
    LOOP = f"L_{name}_loop"
    A(f"s_mov_b32 s44, {NIT}")
    A.loop_begin(LOOP)
    for sl in range(U):
        par = sl % 2
        A(f"s_waitcnt vmcnt({waits[sl]}) lgkmcnt(0)")
        A("s_barrier")
        main = [mfma16(acc(F, tl), wfrag(par, s2, F), tslot(sl, s2, tl)) for s2 in range(2) for F in range(8) for tl in range(2)]
        n_m = len(main)
        vm = w_dma(sl) + t_loads((sl + U - 1) % U)
        reads = tr_reads(1 - par, (sl + 1) % U)
        f = {-1: list(vm[0])}
        P = opts.get("sched5", {})
        spread(f, vm[1:], P.get("v0", 0), P.get("v1", 22))
        spread(f, reads, P.get("r0", 0), P.get("r1", n_m - 4))
        if sl == U - 1 and not opts.get("g1_read"):
            f.setdefault(n_m - 1, [])
            f[n_m - 1] += ["s_sub_u32 s44, s44, 1", "s_cmp_lg_u32 s44, 0"]
        for l in interleave(main, f): A(l)
    if opts.get("g1_read"):
        A(f"s_cmp_eq_u32 s44, {NIT - 1}")
        A(f"s_cbranch_scc1 L_{name}_g1r")
        A(f"s_cmp_eq_u32 s44, {NIT - 2}")
        A(f"s_cbranch_scc1 L_{name}_g1c")
        A.label(f"L_{name}_g1b")
        A("s_sub_u32 s44, s44, 1")
        A("s_cmp_lg_u32 s44, 0")
    A(f"s_cbranch_scc1 {LOOP}")
    A.loop_end()
    def one_tl(par, sl, tl, reads):
        main = [mfma16(acc(F, tl), wfrag(par, s2, F), tslot(sl, s2, tl)) for s2 in range(2) for F in range(8)]
        f = {}
        spread(f, reads, 0, len(main) - 2)
        return main, f

    if PEEL:
        for k in range(4):
            A(f"s_waitcnt vmcnt({(16, 12, 4, 0)[k]}) lgkmcnt(0)")
            if k < 3:
                A("s_barrier")
            main, f = one_tl(k % 2, k, 1, tr_reads(1 - k % 2, (k + 1) % 4))
            if k == 0:
                ld = t_loads(3)
                f.setdefault(-1, [])
                f[-1] = [l for g in ld for l in g] + f[-1]
            for l in interleave(main, f): A(l)
    xstamp(A, opts, "k5loopend")

    A(f"s_lshl_b32 s34, s{sTB}, 3")
    A(f"s_add_u32 s34, s34, s{sCB}")
    A(f"s_lshl_b32 s34, s34, 1")
    A(f"s_add_u32 s35, s34, s{sKH}")
    A(f"s_lshl_b32 s35, s35, 2")
    A(f"s_add_u32 s35, s35, s{sW}")
    A(f"s_xor_b32 s36, s35, 4")
    srd(A, SRD_T, 4, WS_XB, 8 * MB)
    srd(A, SRD_W, 4, WS_FL, 1024 * 128)
    A(f"v_lshlrev_b32 v{vt}, 4, v0")
    A(f"s_lshl_b32 s37, s35, 13")
    A(f"s_add_u32 s38, s37, 4096")
    for F in range(8):
        A(f"buffer_store_dwordx4 {acc(F, 1)}, v{vt}, s[{SRD_T}:{SRD_T+3}], s{37 + F // 4} offen offset:{(F % 4) * 1024} sc1")
    if PEEL:
        for k in range(4):
            A("s_waitcnt lgkmcnt(0)")
            main, f = one_tl(k % 2, k, 0, tr_reads(1 - k % 2, (k + 1) % 4) if k < 3 else [])
            for l in interleave(main, f): A(l)
        A("s_nop 7")
    T = vt + 1
    for F in range(8):
        h = HR + (F // 2) * 4 + (F % 2) * 2
        a = acc(F, 0).base
        for x in range(2):
            A(f"v_lshlrev_b32 v{T}, 16, v{h + x}")
            A(f"v_and_b32 v{T+1}, 0xffff0000, v{h + x}")
            A(f"v_add_f32 v{T}, v{T}, v{MH}")
            A(f"v_add_f32 v{T+1}, v{T+1}, v{MH}")
            A(f"v_add_f32 v{a + 2*x}, v{a + 2*x}, v{T}")
            A(f"v_add_f32 v{a + 2*x + 1}, v{a + 2*x + 1}, v{T+1}")
    vF = MH + 2
    A(f"v_mov_b32 v{vF}, 0")
    A(f"v_mov_b32 v{vF+1}, 1")
    A("s_lshl_b32 s35, s35, 7")
    A("s_lshl_b32 s39, s36, 7")
    A("s_waitcnt vmcnt(0)")
    A(f"buffer_store_dword v{vF+1}, v{vF}, s[{SRD_W}:{SRD_W+3}], s35 offen sc1")
    xstamp(A, opts, "sent")
    srd(A, SRD_O, 42, 0, 2048 * 2048)
    A(f"s_lshl_b32 s45, s{sW}, 12")
    vA, vO = RB[0], RB[0] + 4
    A(f"v_and_b32 v{T}, 15, v0")
    A(f"v_lshrrev_b32 v{T+1}, 1, v{T}")
    A(f"v_lshrrev_b32 v{T+2}, 5, v0")
    A(f"v_xor_b32 v{T+1}, v{T+1}, v{T+2}")
    A(f"v_lshlrev_b32 v{T+1}, 4, v{T+1}")
    A(f"v_lshl_add_u32 v{T+1}, v{T}, 7, v{T+1}")
    A(f"v_bfe_u32 v{T+2}, v0, 4, 1")
    A(f"v_lshl_add_u32 v{T+1}, v{T+2}, 3, v{T+1}")
    A(f"v_add_u32 v{vA}, s45, v{T+1}")
    for F in range(1, 4):
        A(f"v_xor_b32 v{vA+F}, {F << 5}, v{vA}")
    A(f"s_lshl_b32 s34, s60, 15")
    A(f"s_lshl_b32 s47, s{sCB}, 8")
    A(f"s_add_u32 s34, s34, s47")
    A(f"v_lshrrev_b32 v{T}, 3, v0")
    A(f"v_lshlrev_b32 v{T}, 11, v{T}")
    A(f"v_add_u32 v{T}, s34, v{T}")
    A(f"v_and_b32 v{T+1}, 7, v0")
    A(f"v_lshrrev_b32 v{T+2}, 4, v0")
    A(f"v_xor_b32 v{T+1}, v{T+1}, v{T+2}")
    A(f"v_lshl_add_u32 v{vO}, v{T+1}, 4, v{T}")
    A(f"v_xor_b32 v{T+1}, 4, v{T+1}")
    A(f"v_lshl_add_u32 v{vO+1}, v{T+1}, 4, v{T}")
    A(f"v_add_u32 v{vO+1}, 16384, v{vO+1}")
    POLL, GOT = f"L_{name}_poll", f"L_{name}_got"
    A("s_mov_b32 s44, 0x8000")
    A.label(POLL)
    A(f"v_mov_b32 v{T}, 0")
    A("s_mov_b64 exec, 1")
    A(f"buffer_atomic_or v{T}, v{vF}, s[{SRD_W}:{SRD_W+3}], s39 offen sc0 sc1")
    A("s_mov_b64 exec, -1")
    A("s_waitcnt vmcnt(0)")
    A(f"v_readfirstlane_b32 s34, v{T}")
    A("s_sub_u32 s44, s44, 1")
    A("s_cmp_eq_u32 s44, 0")
    A(f"s_cbranch_scc1 {GOT}")
    A("s_cmp_lg_u32 s34, 1")
    A(f"s_cbranch_scc1 {POLL}")
    A.label(GOT)
    xstamp(A, opts, "got5")
    RX = RB[1]
    A("s_lshl_b32 s37, s36, 13")
    A("s_add_u32 s38, s37, 4096")
    for F in range(8):
        A(f"buffer_load_dwordx4 {V(RX + 4 * F, 4)}, v{vt}, s[{SRD_T}:{SRD_T+3}], s{37 + F // 4} offen offset:{(F % 4) * 1024} sc1")
    A("s_barrier")
    for F in range(8):
        a = acc(F, 0).base
        A(f"s_waitcnt vmcnt({7 - F})")
        for r in range(4):
            A(f"v_add_f32 v{a + r}, v{a + r}, v{RX + 4 * F + r}")
        A(f"v_cvt_pk_bf16_f32 v{a}, v{a}, v{a+1}")
        A(f"v_cvt_pk_bf16_f32 v{a+1}, v{a+2}, v{a+3}")
        A(f"ds_write_b64 v{vA + F % 4}, {V(a, 2)} offset:{(F // 4) * 2048}")
    A(f"v_lshlrev_b32 v{T}, 4, v0")
    A(f"v_add_u32 v{T}, s45, v{T}")
    A("s_waitcnt lgkmcnt(0)")
    for m in range(4):
        A(f"ds_read_b128 {V(RB[0] + 8 + 4 * m, 4)}, v{T} offset:{m * 1024}")
    for m in range(4):
        A(f"s_waitcnt lgkmcnt({3 - m})")
        A(f"buffer_store_dwordx4 {V(RB[0] + 8 + 4 * m, 4)}, v{vO + m % 2}, s[{SRD_O}:{SRD_O+3}], 0 offen offset:{(m // 2) * 128}")
    xstamp(A, opts, "stored")
    if opts.get("g1_read"):
        DONE = f"L_{name}_done"
        A(f"s_branch {DONE}")
        A.label(f"L_{name}_g1r")
        opts["g1_read"](sTB, sKH, XTRA + 20)
        A(f"s_branch L_{name}_g1b")
        A.label(f"L_{name}_g1c")
        opts["g1_check"](sTB, sKH, XTRA + 20, f"L_{name}_g1b")
        A.label(DONE)
```

```python
import sys, json
sys.path.insert(0,'work')
from mk_all import make
V = json.loads(sys.argv[1])
for n,o in V.items():
    asm, probs = make(0, o)
    if probs: print(n, "hazards", len(probs), probs[:2])
    open(f'var/{n}.s','w').write(asm)
```
